```python
import torch

def _softmax(x, axis=-1):
    return torch.softmax(x, dim=axis)
def _gelu(x):
    return torch.nn.functional.gelu(x, approximate="tanh")
def _silu(x):
    return torch.nn.functional.silu(x)
def _sigmoid(x):
    return torch.sigmoid(x)
def _layernorm(x, axis=-1, eps=1e-5):
    m = x.mean(dim=axis, keepdim=True)
    v = x.var(dim=axis, keepdim=True, unbiased=False)
    return (x - m) / torch.sqrt(v + eps)
def _scatter_add(tgt, idx, src, axis=0):
    return tgt.clone().index_add_(axis, idx, src)
def _segment_sum(src, seg, n):
    out = torch.zeros((n,) + src.shape[1:], dtype=src.dtype)
    return out.index_add_(0, seg, src)
def _pad(x, pw):
    flat = tuple(v for pair in reversed(pw) for v in pair)
    return torch.nn.functional.pad(x, flat)

kernel_name = 'interleave_layers__spectral_gfnet__glu_gated_bilinear__prompt'

def setup_inputs():

    _w = (lambda a: (lambda t: t.to(torch.bfloat16) if t.is_floating_point() else t)(torch.as_tensor(a)))
    def _A_setup():
        B, S, D = 1, 2048, 1024
        Df = D // 2 + 1
        return {
            "x": _w((lambda *s: torch.randn(*s, dtype=torch.bfloat16) * 0.05)(B, S, D)),
            "w_r": _w((lambda *s: torch.randn(*s, dtype=torch.bfloat16) * 0.4)(S, Df) * 0.02),
            "w_i": _w((lambda *s: torch.randn(*s, dtype=torch.bfloat16) * 0.4)(S, Df) * 0.02),
        }
    _A_in = _A_setup()

    def _B_setup():
        B, S, D, F = 1, 2048, 1024, 3584
        return {
            "x": _w((lambda *s: torch.randn(*s, dtype=torch.bfloat16) * 0.05)(B, S, D)),
            "w_gate": _w((lambda *s: torch.randn(*s, dtype=torch.bfloat16) * 0.2)(D, F) * (D ** -0.5)),
            "w_up": _w((lambda *s: torch.randn(*s, dtype=torch.bfloat16) * 0.2)(D, F) * (D ** -0.5)),
            "w_down": _w((lambda *s: torch.randn(*s, dtype=torch.bfloat16) * 0.2)(F, D) * (F ** -0.5)),
        }
    _B_in = _B_setup()

    return {
        "A_x": _A_in["x"],
        "A_w_r": _A_in["w_r"],
        "A_w_i": _A_in["w_i"],
        "B_x": _B_in["x"],
        "B_w_gate": _B_in["w_gate"],
        "B_w_up": _B_in["w_up"],
        "B_w_down": _B_in["w_down"],
    }

def reference(A_x, A_w_r, A_w_i, B_x, B_w_gate, B_w_up, B_w_down):
    def _A_ref(x, w_r, w_i):
        B, S, D = x.shape
        X = (lambda x, axes=(-2,-1): torch.fft.rfft2(x.float(), dim=axes))(x, axes=(-2, -1))
        W = w_r + 1j * w_i
        X = X * W
        y = (lambda x, s, axes=(-2,-1): torch.fft.irfft2(x, s=s, dim=axes).to(torch.bfloat16))(X, (S, D), axes=(-2, -1))
        return y

    def _B_ref(x, w_gate, w_up, w_down):
        g = torch.einsum("bsd,df->bsf", x, w_gate)
        u = torch.einsum("bsd,df->bsf", x, w_up)
        h = g * u
        return torch.einsum("bsf,fd->bsd", h, w_down)

    x = A_x
    x = x + _A_ref(_layernorm(x, axis=-1), A_w_r, A_w_i)
    x = x + _B_ref(_layernorm(x, axis=-1), B_w_gate, B_w_up, B_w_down)
    x = x + _A_ref(_layernorm(x, axis=-1), A_w_r, A_w_i)
    x = x + _B_ref(_layernorm(x, axis=-1), B_w_gate, B_w_up, B_w_down)
    return x
```

```python
class Kern:
    def __init__(self, name, vgprs=256, agprs=0, sgprs=96):
        self.name = name; self.lines = []; self.vgprs = vgprs; self.agprs = agprs; self.sgprs = sgprs
        self.nlabel = 0; self.tail = []
    def __call__(self, s, *a):
        if a: s = s % a
        for l in s.split("\n"):
            l = l.strip()
            if l: self.lines.append(l if l.endswith(":") else "    " + l)
    def label(self, base):
        self.nlabel += 1
        return "L_%s_%s%d" % (self.name[:8], base, self.nlabel)
    def text(self):
        o = [".globl %s" % self.name, ".p2align 8", ".type %s,@function" % self.name, "%s:" % self.name]
        return "\n".join(o + self.lines + self.tail) + "\n"
    def desc(self):
        acc = (self.vgprs + 3) // 4 * 4
        nfv = acc + self.agprs if self.agprs else self.vgprs
        return """.p2align 6
.amdhsa_kernel %s
  .amdhsa_next_free_vgpr %d
  .amdhsa_next_free_sgpr %d
  .amdhsa_accum_offset %d
  .amdhsa_group_segment_fixed_size 0
  .amdhsa_kernarg_size 80
  .amdhsa_user_sgpr_count 2
  .amdhsa_user_sgpr_kernarg_segment_ptr 1
  .amdhsa_system_sgpr_workgroup_id_x 1
  .amdhsa_float_denorm_mode_32 3
.end_amdhsa_kernel
""" % (self.name, nfv, self.sgprs, acc)

def build_file(header, launches, kerns):
    o = [header.rstrip("\n")] if header else []
    for (k, g, b, lds) in launches:
        o.append("; @launch kernel=%s grid=(%d,1,1) block=(%d,1,1) lds=%d" % (k, g, b, lds))
    o.append('.amdgcn_target "amdgcn-amd-amdhsa--gfx950"')
    o.append(".text")
    for k in kerns: o.append(k.text())
    o.append('.section .rodata,"a"')
    for k in kerns: o.append(k.desc())
    return "\n".join(o)

def srd(k, d, base, nbytes, off=0):
    if off:
        k("s_add_u32 s%d, s%d, 0x%x", d, base, off & 0xffffffff)
        k("s_addc_u32 s%d, s%d, 0", d + 1, base + 1)
    else:
        k("s_mov_b32 s%d, s%d", d, base)
        k("s_mov_b32 s%d, s%d", d + 1, base + 1)
    k("s_mov_b32 s%d, 0x%x", d + 2, nbytes)
    k("s_mov_b32 s%d, 0x20000", d + 3)

STAMP_OFF = 240 << 20
def stamp_begin(k, sreg):
    k("s_memrealtime s[%d:%d]", sreg, sreg + 1)
def stamp_end(k, sreg, idx, swg, stmp, vtmp):
    k("s_waitcnt vmcnt(0) lgkmcnt(0)")
    k("s_memrealtime s[%d:%d]", stmp + 4, stmp + 5)
    k("s_load_dwordx2 s[%d:%d], s[0:1], 72", stmp + 6, stmp + 7)
    k("s_waitcnt lgkmcnt(0)")
    srd(k, stmp, stmp + 6, 1 << 20, STAMP_OFF)
    k("v_mov_b32 v%d, s%d", vtmp, sreg); k("v_mov_b32 v%d, s%d", vtmp + 1, sreg + 1)
    k("v_mov_b32 v%d, s%d", vtmp + 2, stmp + 4); k("v_mov_b32 v%d, s%d", vtmp + 3, stmp + 5)
    k("s_lshl_b32 s%d, s%d, 4", stmp + 4, swg)
    k("s_add_u32 s%d, s%d, %d", stmp + 4, stmp + 4, idx * 2048 * 16)
    k("v_mov_b32 v%d, s%d", vtmp + 4, stmp + 4)
    k("buffer_store_dwordx4 v[%d:%d], v%d, s[%d:%d], 0 offen", vtmp, vtmp + 3, vtmp + 4, stmp, stmp + 3)

STAMP2_OFF = 244 << 20
def mark(k, i):
    k("s_memtime s[%d:%d]", 60 + 4 * i, 61 + 4 * i)
    k("s_memrealtime s[%d:%d]", 62 + 4 * i, 63 + 4 * i)
def marks_out(k, n, idx, swg, stmp, vtmp):
    k("s_load_dwordx2 s[%d:%d], s[0:1], 72", stmp + 6, stmp + 7)
    k("s_waitcnt vmcnt(0) lgkmcnt(0)")
    srd(k, stmp, stmp + 6, 4 << 20, STAMP2_OFF)
    k("s_lshl_b32 s%d, s%d, 7", stmp + 4, swg)
    k("s_add_u32 s%d, s%d, %d", stmp + 4, stmp + 4, idx * 2048 * 128)
    k("v_mov_b32 v%d, s%d", vtmp + 4, stmp + 4)
    for i in range(n):
        for j in range(4): k("v_mov_b32 v%d, s%d", vtmp + j, 60 + 4 * i + j)
        k("buffer_store_dwordx4 v[%d:%d], v%d, s[%d:%d], 0 offen offset:%d", vtmp, vtmp + 3, vtmp + 4, stmp, stmp + 3, 16 * i)
        k("s_nop 1")
```

```python
import re
REG = re.compile(r'(?<![\w.])([vas])(?:(\d+)|\[(\d+):(\d+)\])(?![\w])|(?<![\w.])(vcc|exec|m0|vcc_lo|vcc_hi|exec_lo|exec_hi)(?![\w])')
TRANS = ("v_exp_", "v_log_", "v_rcp_", "v_rsq_", "v_sqrt_", "v_sin_", "v_cos_")
def regs(op):
    out = set()
    for m in REG.finditer(op):
        if m.group(5):
            out.add((m.group(5).split("_")[0], 0))
        elif m.group(2) is not None: out.add((m.group(1), int(m.group(2))))
        else:
            for i in range(int(m.group(3)), int(m.group(4)) + 1): out.add((m.group(1), i))
    return out
class I:
    def __init__(s, line):
        s.line = line
        t = line.split(";")[0].strip()
        p = t.split(None, 1); s.op = p[0]
        ops = [x.strip() for x in re.split(r",(?![^\[]*\])", p[1])] if len(p) > 1 else []
        s.ops = ops; op = s.op
        s.w = set(); s.r = set(); s.kind = "other"; s.ws = 1
        s.A = s.B = s.C = set()
        if op == "s_nop": s.ws = int(ops[0], 0) + 1
        if op.startswith("v_mfma"):
            s.kind = "mfma"; s.w = regs(ops[0]); s.A = regs(ops[1]); s.B = regs(ops[2]); s.C = regs(ops[3]); s.r = s.A | s.B | s.C
            s.passes = 8 if "32x32" in op else 4
        elif op.startswith("v_"):
            s.kind = "valu"
            s.w = regs(ops[0]); rest = ops[1:]
            if re.match(r"v_(add|sub|subrev|addc|subb)_co_", op): s.w |= regs(ops[1]); rest = ops[2:]
            for x in rest: s.r |= regs(x)
            if op.startswith(("v_swap", "v_permlane16_swap", "v_permlane32_swap")): s.w |= regs(ops[1]); s.r |= regs(ops[0])
            if op.startswith(("v_fmac", "v_dot2c", "v_writelane")) or "_dpp" in op: s.r |= regs(ops[0])
            s.trans = op.startswith(TRANS)
            s.perm = op.startswith("v_permlane") or "_dpp" in op
            s.rdlane = op.startswith(("v_readlane", "v_readfirstlane"))
        elif op.startswith(("buffer_", "global_")):
            s.kind = "vmem"; s.lds = " lds" in t or "_lds_" in op
            allr = set()
            for x in ops: allr |= regs(x)
            if "_load" in op and not s.lds:
                s.w = regs(ops[0])
                for x in ops[1:]: s.r |= regs(x)
                if "d16" in op: s.r |= s.w
            else:
                s.r = allr
                if "atomic" in op and " sc0" in t: s.w = regs(ops[0])
            s.wide = op.endswith(("store_dwordx4", "store_dwordx3"))
            s.data = regs(ops[0]) if s.wide else set()
        elif op.startswith("ds_"):
            s.kind = "ds"
            if "_read" in op or "permute" in op or "swizzle" in op:
                s.w = regs(ops[0])
                for x in ops[1:]: s.r |= regs(x)
            else:
                for x in ops: s.r |= regs(x)
        elif op.startswith("s_"):
            s.kind = "salu"
            if ops and not op.startswith(("s_cmp", "s_waitcnt", "s_cbranch", "s_branch", "s_nop", "s_sleep", "s_barrier", "s_setprio", "s_bitcmp")):
                s.w = regs(ops[0])
                for x in ops[1:]: s.r |= regs(x)
def vec(x): return {r for r in x if r[0] in "va" and len(r[0]) == 1}
def sca(x): return {r for r in x if not (r[0] in "va" and len(r[0]) == 1)}
def need(p, c):
    n = 0
    if p.kind == "valu":
        vw = vec(p.w); sw = sca(p.w)
        if c.kind == "mfma" and vw & c.r: n = max(n, 2)
        if c.kind == "valu":
            if p.trans and vw & c.r and not c.trans: n = max(n, 1)
            if c.perm and vw & c.r: n = max(n, 2)
            if c.rdlane and vw & c.r: n = max(n, 1)
            if sw & c.r: n = max(n, 4 if c.op.startswith(("v_readlane", "v_writelane")) else 2)
        if c.kind == "vmem" and sw & c.r: n = max(n, 5)
        if c.kind in ("vmem", "ds") and p.trans and vw & c.r: n = max(n, 1)
        if ("exec", 0) in sw: n = max(n, 5)
    if p.kind == "mfma":
        big = p.passes == 8
        if c.kind == "mfma":
            if p.w & (c.A | c.B): n = max(n, 12 if big else 8)
            if p.w & c.C and not (p.w == c.C and p.passes == c.passes): n = max(n, 10 if big else 6)
            if p.w & c.w and not p.w & c.C: n = max(n, 12 if big else 8)
        elif c.kind in ("valu", "vmem", "ds"):
            if p.w & (c.r | c.w): n = max(n, 12 if big else 8)
            if c.kind == "valu" and p.C & c.w: n = max(n, 7 if big else 3)
    if p.kind == "vmem" and p.wide and p.data & c.w: n = max(n, 2 if c.kind in ("valu", "mfma") else 1)
    if p.kind == "salu" and ("m0", 0) in p.w and c.kind == "vmem" and c.lds: n = max(n, 1)
    return n
MAXD = 14
def fix(lines):
    out = []; hist = []
    pend = {}; labelpos = {}
    def age(h, k): return [[i, a + k] for i, a in h if a + k < MAXD]
    def req(h, c): return max([need(p, c) - a for p, a in h] + [0])
    dead = False
    for line in lines:
        t = line.strip()
        if not t or t.startswith((";", ".")): out.append(line); continue
        if t.endswith(":"):
            lab = t[:-1]
            if dead: hist = []
            dead = False
            for h in pend.pop(lab, []): hist = hist + h
            labelpos[lab] = len(out); out.append(line); continue
        c = I(t)
        n = req(hist, c)
        if n > 0:
            out.append("    s_nop %d" % (n - 1)); hist = age(hist, n)
        out.append(line)
        hist = age(hist, c.ws) + [[c, 0]]
        if c.op.startswith(("s_cbranch", "s_branch")):
            lab = c.ops[0]
            if lab in labelpos:
                h = [list(x) for x in hist]
                for l2 in out[labelpos[lab] + 1:]:
                    t2 = l2.strip()
                    if not t2 or t2.startswith((";", ".")) or t2.endswith(":"): continue
                    c2 = I(t2)
                    assert req(h, c2) == 0, "back-edge hazard at %s: %s" % (lab, t2)
                    h = age(h, c2.ws)
                    if not h or c2.op.startswith(("s_cbranch", "s_branch")):
                        assert not [x for x in h if x[0].kind == "mfma"] or not h or True
                        if not h: break
            else: pend.setdefault(lab, []).append([list(x) for x in hist])
            if c.op == "s_branch": dead = True
    return out
```

```python
import sys, math
sys.path.insert(0, "tools")
from asmgen import *
import hazard
KNAME = "interleave_layers__spectral_gfnet__glu_gated_bilinear__prompt_kernel"
U_OFF, V_OFF, XL_OFF, PART_OFF, H_OFF, ST_OFF = 0x0, 0x400000, 0x800000, 0xC00000, 0x1400000, 0x2200000
LSTRIDE = 0x2400000
FL_OFF = 2 * LSTRIDE
FL_B1, FL_B2, FL_B3, FL_B4, FL_B5, FL_LSTRIDE = 0, 0x8000, 0x10000, 0x14000, 0x1C000, 0x24000
L_G1, L_G2 = 0, 0x10000
L_P1, L_P2, L_P3A, L_P3B = 0x10000, 0x14000, 0x18000, 0x1C000
LDS_BYTES = 0x1C000 + 8 * 2112
sWS, sXS, sG, sU, sD, sOUT, sFL, sTM = 4, 8, 12, 16, 20, 24, 28, 32
sN2, sWv, sLay = 40, 41, 42
sMT, sNT, sMT2, sNT2, sKH = 43, 44, 45, 46, 47
sFo = 48
sOx, sOw, sOh, sOd, sM0, sIt = 49, 50, 51, 52, 53, 54
sT = 56
sK = 84
vL, vI, vG = 0, 1, 2
vG1r, vG1x, vG1w = 3, 4, 5
vG2r, vG2w, vG2h = 7, 11, 15
vL128 = 16
vT = 17
aF, aGm, aM1, aM1H, aC, aCH, aW = 176, 184, 192, 208, 224, 228, 232
EPS = 1e-5
import struct
def fl(x): return "0x%x" % struct.unpack("<I", struct.pack("<f", x))[0]
def vr(b, n=4): return "v[%d:%d]" % (b, b + n - 1)
def ar(b, n=4): return "a[%d:%d]" % (b, b + n - 1)
def setexec(k, n):
    if n == 64: k("s_mov_b64 exec, -1"); return
    m = (1 << n) - 1
    k("s_mov_b32 exec_lo, 0x%x" % (m & 0xffffffff)); k("s_mov_b32 exec_hi, 0x%x" % (m >> 32))

class Gen:
    def __init__(self, opt):
        self.opt = opt
        self.k = Kern(KNAME, vgprs=256, agprs=256, sgprs=102)
        self.nmark = 0
        self.SF = " sc1"
        self.LF = opt.get("lf", " sc1")
    def mark(self, name):
        if not self.opt.get("stamp"): return
        k = self.k; i = self.nmark; self.nmark += 1
        self.marknames = getattr(self, "marknames", []) + [name]
        k("s_memrealtime s[96:97]"); k("s_waitcnt lgkmcnt(0)")
        k("s_lshl_b32 s98, s%d, 5", sLay); k("s_add_u32 s98, s98, %d", i); k("s_and_b32 m0, s98, 63")
        k("s_nop 0"); k("v_writelane_b32 v31, s96, m0")
    def cs(self, dc, ds, vint, scale, add=None):
        k = self.k; t = vT + 13
        k("v_cvt_f32_u32 v%d, v%d", t, vint)
        k("v_mul_f32 v%d, %s, v%d", t, fl(scale), t)
        if add is not None: k("v_add_f32 v%d, v%d, v%d", t, add, t)
        k("v_fract_f32 v%d, v%d", t, t)
        k("v_cos_f32 v%d, v%d", dc, t); k("v_sin_f32 v%d, v%d", ds, t)
    def pack_to_a(self, a, lo, hi, neglo=False, neghi=False):
        k = self.k; t = vT + 12
        k("v_cvt_pk_bf16_f32 v%d, %sv%d, %sv%d", t, "-" if neglo else "", lo, "-" if neghi else "", hi)
        k("v_accvgpr_write_b32 a%d, v%d", a, t)
    def arrive(self, sbase, S, R, sshard):
        k = self.k
        k("s_waitcnt vmcnt(0)"); k("s_barrier")
        L = k.label("arr")
        k("s_cmp_lg_u32 s%d, 0", sWv); k("s_cbranch_scc1 " + L)
        if sshard is not None:
            k("s_lshl_b32 s%d, s%d, 7", sT + 3, sshard); k("s_add_u32 s%d, s%d, s%d", sT + 3, sT + 3, sbase)
        else: k("s_mov_b32 s%d, s%d", sT + 3, sbase)
        k("v_mul_u32_u24 v%d, %d, v%d", vT, S, vL128); k("v_mov_b32 v%d, 1", vT + 1)
        setexec(k, R)
        k("buffer_atomic_add v%d, v%d, s[%d:%d], s%d offen sc1", vT + 1, vT, sFL, sFL + 3, sT + 3)
        setexec(k, 64)
        k(L + ":")
    def wait(self, sbase, S, srep, count):
        k = self.k
        L = k.label("wdone"); LP = k.label("poll"); LX = k.label("pollx")
        k("s_cmp_lg_u32 s%d, 0", sWv); k("s_cbranch_scc1 " + L)
        if srep is not None:
            k("s_mul_i32 s%d, s%d, %d", sT + 3, srep, S * 128); k("s_add_u32 s%d, s%d, s%d", sT + 3, sT + 3, sbase)
        else: k("s_mov_b32 s%d, s%d", sT + 3, sbase)
        k("s_mov_b32 s%d, 0", sT + 2)
        setexec(k, S)
        k(LP + ":")
        k("v_mov_b32 v%d, 0", vT)
        k("buffer_atomic_add v%d, v%d, s[%d:%d], s%d offen sc0 sc1", vT, vL128, sFL, sFL + 3, sT + 3)
        k("s_add_u32 s%d, s%d, 1", sT + 2, sT + 2); k("s_cmp_ge_u32 s%d, 0x40000", sT + 2); k("s_cbranch_scc1 " + LX)
        k("s_waitcnt vmcnt(0)")
        k("v_cmp_ne_u32 vcc, %d, v%d", count, vT)
        k("s_cbranch_vccnz " + LP)
        k(LX + ":")
        setexec(k, 64)
        k(L + ":")
        k("s_barrier")
    def reduce4(self, p, q, r, s, c2):
        k = self.k
        k("v_permlane16_swap_b32 v%d, v%d", p, q); k("v_permlane16_swap_b32 v%d, v%d", r, s)
        k("v_add_f32 v%d, v%d, v%d", p, p, q); k("v_add_f32 v%d, v%d, v%d", r, r, s)
        k("v_permlane32_swap_b32 v%d, v%d", p, r)
        k("v_add_f32 v%d, v%d, v%d", r, p, r)
        for sh in (8, 4, 2, 1): k("v_add_f32_dpp v%d, v%d, v%d row_ror:%d row_mask:0xf bank_mask:0xf", r, r, r, sh)
        k("v_mov_b32 v%d, v%d", p, r)
        k("v_permlane32_swap_b32 v%d, v%d", p, r)
        k("v_mul_f32 v%d, %s, v%d", p, fl(1.0 / 1024), p)
        k("v_mul_f32 v%d, %s, v%d", r, fl(c2), r)
        k("v_fma_f32 v%d, -v%d, v%d, v%d", r, p, p, r)
        k("v_max_f32 v%d, 0, v%d", r, r)
        k("v_add_f32 v%d, %s, v%d", r, fl(EPS), r)
    def sums(self, base, t):
        k = self.k
        for j in range(8):
            for q in range(2):
                b = base + 16 * q + 2 * j
                if j == 0: k("v_pk_mul_f32 %s, %s, %s", vr(t + 4 + 2 * q, 2), vr(b, 2), vr(b, 2))
                else: k("v_pk_fma_f32 %s, %s, %s, %s", vr(t + 4 + 2 * q, 2), vr(b, 2), vr(b, 2), vr(t + 4 + 2 * q, 2))
                if j == 1: k("v_pk_add_f32 %s, %s, %s", vr(t + 2 * q, 2), vr(b - 2, 2), vr(b, 2))
                elif j > 1: k("v_pk_add_f32 %s, %s, %s", vr(t + 2 * q, 2), vr(t + 2 * q, 2), vr(b, 2))
        for j in range(4): k("v_add_f32 v%d, v%d, v%d", t + 2 * j, t + 2 * j, t + 2 * j + 1)
    def twiddle(self, re, im, tc, ts, tmp, out, conj=False, e=None):
        k = self.k
        for h in (0, 2):
            if e is None:
                k("v_pk_mul_f32 %s, %s, %s", vr(tmp + h, 2), vr(re + h, 2), vr(tc + h, 2))
                k("v_pk_mul_f32 %s, %s, %s", vr(tmp + 4 + h, 2), vr(im + h, 2), vr(tc + h, 2))
            else:
                k("v_pk_fma_f32 %s, %s, %s, %s op_sel_hi:[1,1,0]", vr(tmp + h, 2), vr(re + h, 2), vr(tc + h, 2), vr(e, 2))
                k("v_pk_fma_f32 %s, %s, %s, %s op_sel_hi:[1,1,0]", vr(tmp + 4 + h, 2), vr(im + h, 2), vr(tc + h, 2), vr(e, 2))
        neg = " neg_lo:[1,0,0] neg_hi:[1,0,0]"
        for h in (0, 2):
            k("v_pk_fma_f32 %s, %s, %s, %s%s", vr(tmp + h, 2), vr(im + h, 2), vr(ts + h, 2), vr(tmp + h, 2), neg if conj else "")
            k("v_pk_fma_f32 %s, %s, %s, %s%s", vr(tmp + 4 + h, 2), vr(re + h, 2), vr(ts + h, 2), vr(tmp + 4 + h, 2), "" if conj else neg)
        for r in range(4): k("v_cvt_pk_bf16_f32 v%d, v%d, v%d", out + r, tmp + r, tmp + 4 + r)
    def mf(self, d, a, b, c="0", kk=32):
        self.k("v_mfma_f32_16x16x%d_bf16 %s, %s, %s, %s", kk, vr(d), a, b, c if isinstance(c, str) else vr(c))

    def prologue(self):
        k = self.k; o = self.opt
        k("s_cmp_ge_u32 s2, 256"); k("s_cbranch_scc1 L_end")
        k("s_load_dwordx4 s[60:63], s[0:1], 0")
        k("s_load_dwordx2 s[64:65], s[0:1], 16")
        k("s_load_dwordx8 s[68:75], s[0:1], 32")
        k("s_load_dwordx4 s[76:79], s[0:1], 64")
        k("v_lshrrev_b32 v%d, 6, v0", vT); k("v_and_b32 v0, 63, v0")
        k("v_readfirstlane_b32 s%d, v%d", sWv, vT)
        k("v_and_b32 v%d, 15, v0", vI); k("v_lshrrev_b32 v%d, 4, v0", vG)
        k("v_lshlrev_b32 v%d, 7, v0", vL128)
        k("s_and_b32 s%d, s2, 7", sT); k("s_lshr_b32 s%d, s2, 3", sT + 1)
        k("s_lshl_b32 s%d, s%d, 5", sN2, sT); k("s_add_u32 s%d, s%d, s%d", sN2, sN2, sT + 1)
        k("s_and_b32 s%d, s%d, 7", sMT, sT + 1); k("s_lshr_b32 s%d, s%d, 3", sNT, sT + 1)
        k("s_lshl_b32 s%d, s%d, 2", sT + 2, sT); k("s_add_u32 s%d, s%d, s%d", sNT, sNT, sT + 2)
        k("s_and_b32 s%d, s%d, 1", sKH, sT); k("s_lshr_b32 s%d, s%d, 1", sT + 2, sT); k("s_lshl_b32 s%d, s%d, 2", sT + 2, sT + 2)
        k("s_and_b32 s%d, s%d, 3", sMT2, sT + 1); k("s_add_u32 s%d, s%d, s%d", sMT2, sMT2, sT + 2)
        k("s_lshr_b32 s%d, s%d, 2", sNT2, sT + 1)
        k("s_mov_b32 s%d, 0", sLay); k("s_mov_b32 s%d, 0", sFo)
        k("s_lshl_b32 s%d, s%d, 12", sM0, sWv)
        if o.get("stamp"): k("v_mov_b32 v31, 0")
        self.p1_addr()
        k("s_waitcnt lgkmcnt(0)")
        srd(k, sXS, 60, 2048 * 2048)
        self.mark("start")
        self.p1_loads(0)
        srd(k, sWS, 78, LSTRIDE)
        srd(k, sFL, 78, 2 * FL_LSTRIDE, FL_OFF)
        srd(k, sTM, 62, 2048 * 1026); srd(k, sTM + 4, 64, 2048 * 1026)
        srd(k, sG, 68, 1024 * 7168)
        k("s_sub_u32 s%d, s70, 2048", sU); k("s_subb_u32 s%d, s71, 0", sU + 1)
        k("s_mov_b32 s%d, 0x%x", sU + 2, 1024 * 7168 + 2048); k("s_mov_b32 s%d, 0x20000", sU + 3)
        k("s_sub_u32 s%d, s72, 1024", sD); k("s_subb_u32 s%d, s73, 0", sD + 1)
        k("s_mov_b32 s%d, 0x%x", sD + 2, 3584 * 2048 + 1024); k("s_mov_b32 s%d, 0x20000", sD + 3)
        srd(k, sOUT, 74, 2048 * 2048)
        k("v_mov_b32 v%d, 0", vT)
        L = k.label("nz"); L2 = k.label("nz2")
        k("s_cmp_lg_u32 s2, 0"); k("s_cbranch_scc1 " + L)
        k("s_lshl_b32 s%d, s%d, 13", sT, sWv)
        k("buffer_store_dword v%d, v%d, s[%d:%d], s%d offen sc1", vT, vL128, sFL, sFL + 3, sT)
        k("s_waitcnt vmcnt(0)"); k("s_barrier")
        k("s_cmp_lg_u32 s%d, 0", sWv); k("s_cbranch_scc1 " + L)
        k("v_mov_b32 v%d, 1", vT + 1)
        setexec(k, 1)
        k("global_store_dword v%d, v%d, s[76:77] sc1", vT, vT + 1)
        setexec(k, 64)
        k(L + ":")
        k("s_lshl_b32 s%d, s2, 10", sT); k("s_add_u32 s%d, s%d, 0x8000", sT, sT)
        setexec(k, 8)
        k("buffer_store_dword v%d, v%d, s[%d:%d], s%d offen sc1", vT, vL128, sFL, sFL + 3, sT)
        setexec(k, 64)
        self.w_loads()
        self.consts()
        self.g_addr()
    WR = 208
    def w_loads(self):
        k = self.k; W = self.WR
        k("s_lshr_b32 s%d, s%d, 5", sT, sN2); k("s_and_b32 s%d, s%d, 31", sT + 1, sN2)
        k("s_lshl_b32 s%d, s%d, 3", sT + 1, sT + 1); k("s_lshl_b32 s%d, s%d, 1", sT + 2, sWv); k("s_add_u32 s%d, s%d, s%d", sT + 1, sT + 1, sT + 2)
        k("v_lshlrev_b32 v%d, 3, v%d", vT, vI); k("v_lshl_add_u32 v%d, v%d, 9, v%d", vT, vG, vT); k("v_add_u32 v%d, s%d, v%d", vT, sT, vT)
        k("s_lshl_b32 s%d, s%d, 1", sT + 2, sT + 1)
        k("s_sub_u32 s%d, 1022, s%d", sT + 3, sT + 2)
        for r in range(4):
            k("v_add_u32 v%d, %d, v%d", vT + 1, 128 * r, vT)
            k("v_mul_u32_u24 v%d, 1026, v%d", vT + 2 + r, vT + 1)
            k("v_sub_u32 v%d, 2048, v%d", vT + 1, vT + 1); k("v_and_b32 v%d, 2047, v%d", vT + 1, vT + 1)
            k("v_mul_u32_u24 v%d, 1026, v%d", vT + 6 + r, vT + 1)
        for r in range(4):
            for m in range(2):
                k("buffer_load_dword v%d, v%d, s[%d:%d], s%d offen", W + 4 * m + r, vT + 2 + r, sTM + 4 * m, sTM + 4 * m + 3, sT + 2)
                k("buffer_load_dword v%d, v%d, s[%d:%d], s%d offen", W + 8 + 4 * m + r, vT + 6 + r, sTM + 4 * m, sTM + 4 * m + 3, sT + 3)
        L = k.label("nsp")
        k("s_cmp_lg_u32 s%d, 0", sT + 1); k("s_cbranch_scc1 " + L)
        for r in range(4):
            for m in range(2):
                k("buffer_load_ushort v%d, v%d, s[%d:%d], 0 offen offset:512", W + 16 + 4 * m + r, vT + 2 + r, sTM + 4 * m, sTM + 4 * m + 3)
                k("buffer_load_ushort v%d, v%d, s[%d:%d], 0 offen offset:1024", W + 24 + 4 * m + r, vT + 2 + r, sTM + 4 * m, sTM + 4 * m + 3)
        k(L + ":")
    def w_park(self):
        k = self.k; W = self.WR
        L = k.label("nsp")
        k("s_and_b32 s%d, s%d, 31", sT, sN2); k("s_or_b32 s%d, s%d, s%d", sT, sT, sWv)
        k("s_cmp_lg_u32 s%d, 0", sT); k("s_cbranch_scc1 " + L)
        k("s_mov_b32 s%d, 0xffff", sT)
        for r in range(4):
            for m in range(2):
                k("v_bfi_b32 v%d, s%d, v%d, v%d", W + 4 * m + r, sT, W + 16 + 4 * m + r, W + 4 * m + r)
                a = W + 8 + 4 * m + r; b = W + 24 + 4 * m + r
                k("v_and_b32 v%d, 0xffff0000, v%d", vT, a); k("v_lshlrev_b32 v%d, 16, v%d", b, b)
                k("v_%s_f32 v%d, v%d, v%d", "sub" if m else "add", vT, vT, b); k("v_mul_f32 v%d, 0.5, v%d", vT, vT)
                k("v_cvt_pk_bf16_f32 v%d, v%d, v%d", vT, vT, vT)
                k("v_bfi_b32 v%d, s%d, v%d, v%d", a, sT, a, vT)
        k(L + ":")
        for j in range(16): k("v_accvgpr_write_b32 a%d, v%d", aW + j, W + j)
    def consts(self):
        k = self.k; c, s, n = vT, vT + 1, vT + 2
        for r in range(4):
            k("v_lshl_add_u32 v%d, v%d, 2, %d", n + 1, vG, r)
            k("v_mul_u32_u24 v%d, v%d, v%d", n, vI, n + 1)
            self.cs(c, s, n, 1.0 / 16)
            self.pack_to_a(aF + r, c, s); self.pack_to_a(aF + 4 + r, s, c, neglo=True)
            self.pack_to_a(aGm + r, c, s, neghi=True); self.pack_to_a(aGm + 4 + r, s, c)
            k("v_lshl_add_u32 v%d, v%d, 1, v%d", n + 2, n, vI)
            self.cs(c, s, n + 2, 1.0 / 32)
            self.pack_to_a(aM1 + r, c, s); self.pack_to_a(aM1 + 4 + r, s, c, neglo=True)
            self.pack_to_a(aM1 + 8 + r, c, s, True, True); self.pack_to_a(aM1 + 12 + r, s, c, neghi=True)
            k("v_lshl_add_u32 v%d, v%d, 1, v%d", n + 2, n, n + 1)
            self.cs(c, s, n + 2, 1.0 / 32)
            self.pack_to_a(aM1H + r, c, s, neghi=True); self.pack_to_a(aM1H + 4 + r, s, c)
            self.pack_to_a(aM1H + 8 + r, c, s, neglo=True); self.pack_to_a(aM1H + 12 + r, s, c, True, True)
        k("v_and_b32 v%d, 1, v%d", n + 3, vI); k("v_cvt_f32_u32 v%d, v%d", n + 4, n + 3); k("v_mul_f32 v%d, 0x3e800000, v%d", n + 4, n + 4)
        k("v_mul_u32_u24 v%d, 0x8000, v%d", n + 3, n + 3); k("v_lshl_or_b32 v%d, v%d, 16, v%d", n + 3, n + 3, n + 3)
        k("v_lshrrev_b32 v%d, 1, v%d", n + 5, vI)
        for q in range(2):
            k("v_lshl_add_u32 v%d, v%d, 1, %d", n + 1, vG, q)
            k("v_lshlrev_b32 v%d, 8, v%d", n, n + 1); k("v_add_u32 v%d, s%d, v%d", n, sN2, n); k("v_mul_u32_u24 v%d, v%d, v%d", n, n, n + 5)
            self.cs(c, s, n, 1.0 / 2048, add=n + 4)
            self.pack_to_a(aC + q, c, s); self.pack_to_a(aC + 2 + q, c, s, neghi=True)
            k("v_lshlrev_b32 v%d, 8, v%d", n, n + 5); k("v_add_u32 v%d, s%d, v%d", n, sN2, n); k("v_mul_u32_u24 v%d, v%d, v%d", n, n, n + 1)
            self.cs(c, s, n, -1.0 / 2048, add=n + 4)
            self.pack_to_a(aCH + q, c, s)
            k("v_xor_b32 v%d, v%d, v%d", vT + 12, vT + 12, n + 3); k("v_accvgpr_write_b32 a%d, v%d", aCH + 2 + q, vT + 12)
    def g_addr(self):
        k = self.k; t = vT
        k("v_lshlrev_b32 v%d, 4, v0", t); k("v_add_u32 v%d, s%d, v%d", vG1x, sM0, t)
        k("v_lshrrev_b32 v%d, 5, v0", t); k("v_lshlrev_b32 v%d, 12, v%d", t, t)
        k("v_bfe_u32 v%d, v0, 4, 1", t + 1); k("v_mul_u32_u24 v%d, 1152, v%d", t + 1, t + 1)
        k("v_bfe_u32 v%d, v0, 2, 2", t + 2); k("v_mul_u32_u24 v%d, 224, v%d", t + 2, t + 2)
        k("v_and_b32 v%d, 3, v0", t + 3); k("v_lshlrev_b32 v%d, 3, v%d", t + 3, t + 3)
        k("v_add3_u32 v%d, v%d, v%d, v%d", t + 1, t, t + 1, t + 2); k("v_add_u32 v%d, v%d, v%d", vG1r, t + 1, t + 3)
        for j in range(2):
            k("s_lshl_b32 s%d, s%d, 1", sT, sWv); k("s_add_u32 s%d, s%d, %d", sT, sT, j)
            k("s_and_b32 s%d, s%d, 3", sT + 1, sT); k("s_lshl_b32 s%d, s%d, 3", sT + 1, sT + 1)
            k("s_and_b32 s%d, s%d, 4", sT, sT); k("s_add_u32 s%d, s%d, s%d", sT, sT, sT + 1)
            k("s_mul_i32 s%d, s%d, 7168", sT, sT); k("s_mul_i32 s%d, s%d, 224", sT + 1, sNT); k("s_add_u32 s%d, s%d, s%d", sT, sT, sT + 1)
            if j: k("s_sub_u32 s%d, s%d, 1024", sT, sT)
            k("v_subrev_u32 v%d, %d, v0", t + 4, 8 * j)
            k("v_mul_u32_u24 v%d, 4682, v%d", t + 5, t + 4); k("v_lshrrev_b32 v%d, 16, v%d", t + 5, t + 5)
            k("v_mul_u32_u24 v%d, 14, v%d", t + 6, t + 5); k("v_sub_u32 v%d, v%d, v%d", t + 6, t + 4, t + 6)
            k("v_mul_u32_u24 v%d, 7168, v%d", t + 5, t + 5); k("v_lshl_add_u32 v%d, v%d, 4, v%d", t + 5, t + 6, t + 5)
            k("v_add_u32 v%d, s%d, v%d", t + 5, sT, t + 5)
            k("v_cmp_gt_u32 vcc, 56, v%d", t + 4)
            k("v_mov_b32 v%d, 0x80000000", t + 6)
            k("v_cndmask_b32 v%d, v%d, v%d, vcc", vG1w + j, t + 6, t + 5)
        k("v_lshlrev_b32 v%d, 4, v%d", t + 4, vI); k("v_lshl_add_u32 v%d, v%d, 9, v%d", vG2h, vG, t + 4)
        k("v_bfe_u32 v%d, v0, 2, 3", t + 4); k("v_lshrrev_b32 v%d, 1, v%d", t + 5, t + 4)
        k("v_lshl_add_u32 v%d, v%d, 7, v%d", t + 4, t + 4, t); k("v_add_u32 v%d, v%d, v%d", t + 4, t + 4, t + 3)
        k("v_add_u32 v%d, 0x%x, v%d", t + 4, L_G2, t + 4)
        for x in range(4):
            k("v_xor_b32 v%d, %d, v%d", t + 6, x, t + 5); k("v_lshl_add_u32 v%d, v%d, 5, v%d", vG2r + x, t + 6, t + 4)
        k("s_and_b32 s%d, s%d, 1", sT, sWv); k("s_lshl_b32 s%d, s%d, 4", sT, sT)
        k("s_lshr_b32 s%d, s%d, 1", sT + 1, sWv); k("s_lshl_b32 s%d, s%d, 2", sT + 1, sT + 1); k("s_add_u32 s%d, s%d, s%d", sT, sT, sT + 1)
        k("s_lshl_b32 s%d, s%d, 11", sT, sT); k("s_lshl_b32 s%d, s%d, 8", sT + 1, sNT2); k("s_add_u32 s%d, s%d, s%d", sT, sT, sT + 1)
        k("v_lshrrev_b32 v%d, 5, v0", t + 4); k("v_bfe_u32 v%d, v0, 3, 2", t + 5); k("v_lshl_add_u32 v%d, v%d, 3, v%d", t + 4, t + 4, t + 5)
        k("v_lshlrev_b32 v%d, 11, v%d", t + 4, t + 4)
        k("v_bfe_u32 v%d, v0, 1, 2", t + 5); k("v_xor_b32 v%d, v%d, v%d", t + 5, t + 5, vG)
        k("v_lshl_add_u32 v%d, v%d, 5, v%d", t + 4, t + 5, t + 4)
        k("v_and_b32 v%d, 1, v0", t + 5); k("v_lshl_add_u32 v%d, v%d, 4, v%d", t + 4, t + 5, t + 4)
        k("v_add_u32 v%d, s%d, v%d", t + 4, sT, t + 4)
        for b in range(4): k("v_add_u32 v%d, 0x%x, v%d", vG2w + b, 1024 + (b >> 1) * 65536 + (b & 1) * 128 - b * 1024, t + 4)

    XA, XB = 32, 48
    vP1x = 240
    def p1_addr(self):
        k = self.k
        k("v_lshlrev_b32 v%d, 3, v%d", self.vP1x, vI); k("v_lshl_add_u32 v%d, v%d, 9, v%d", self.vP1x, vG, self.vP1x)
    def p1_loads(self, src):
        k = self.k; X = self.XB if src else self.XA
        k("s_lshl_b32 s%d, s%d, 20", sT, sWv); k("s_lshl_b32 s%d, s%d, 11", sT + 1, sN2); k("s_add_u32 s%d, s%d, s%d", sT, sT, sT + 1)
        if src: k("s_add_u32 s%d, s%d, 0x400000", sT, sT)
        for q in range(2):
            for j, r in enumerate((0, 2, 1, 3)):
                k("buffer_load_dwordx2 %s, v%d, s[%d:%d], s%d offen offset:%d%s", vr(X + 8 * q + 2 * j, 2), self.vP1x, sXS, sXS + 3, sT, r * 128, self.LF)
            if q == 0: k("s_add_u32 s%d, s%d, 0x80000", sT, sT)
    def exch_addr(self, base, a):
        k = self.k
        k("s_lshl_b32 s%d, s%d, 9", sT, sWv)
        k("v_lshlrev_b32 v%d, 12, v%d", a + 2, vG); k("v_add_u32 v%d, 0x%x, v%d", a + 2, base, a + 2)
        k("v_lshl_add_u32 v%d, v%d, 4, s%d", a + 3, vI, sT)
        k("v_add_u32 v%d, v%d, v%d", a, a + 2, a + 3)
        k("v_sub_u32 v%d, v%d, v%d", a + 1, a + 2, a + 3); k("v_add_u32 v%d, %d, v%d", a + 1, (512 - 33) * 8, a + 1)
        k("v_cmp_eq_u32 vcc, 0, v%d", a + 3)
        k("v_add_u32 v%d, %d, v%d", a + 2, (256 - 33) * 8, a + 2)
        k("v_cndmask_b32 v%d, v%d, v%d, vcc", a + 2, a + 1, a + 2)
        k("v_lshlrev_b32 v%d, 3, v%d", a + 3, vI); k("v_lshl_add_u32 v%d, v%d, 9, v%d", a + 3, vG, a + 3)
        k("s_add_u32 s%d, s%d, 0x%x", sT, sM0, base); k("v_add_u32 v%d, s%d, v%d", a + 3, sT, a + 3)
    def p1_pre(self):
        k = self.k; T1 = 96
        for c in range(2):
            for r in range(4):
                k("v_lshl_add_u32 v%d, v%d, 3, %d", vT, vG, 2 * r + c); k("v_mul_u32_u24 v%d, v%d, v%d", vT, vT, vI)
                self.cs(T1 + 8 * c + r, T1 + 8 * c + 4 + r, vT, 1.0 / 512)
        self.exch_addr(L_P1, 241)
        k("v_cmp_eq_u32 vcc, 0, v%d", vI); k("v_cndmask_b32 v245, 0, 1.0, vcc")
        k("v_lshlrev_b32 v246, 12, v%d", vG); k("v_lshl_add_u32 v246, v%d, 4, v246", vI)
    def p1(self):
        k = self.k; XA, XB = self.XA, self.XB
        D, T1, T1s, O, B, E, tmp = 64, 96, 112, 144, 160, 192, 224
        def swaps(X):
            for q in range(2):
                k("v_swap_b32 v%d, v%d", X + 8 * q + 1, X + 8 * q + 4); k("v_swap_b32 v%d, v%d", X + 8 * q + 3, X + 8 * q + 6)
        self.mark("p1_loaded")
        swaps(XA)
        for l in range(4):
            for p in range(2): self.mf(D + (l * 2 + p) * 4, vr(XA + 4 * l), ar(aF + 4 * p))
        L = k.label("one")
        k("s_cmp_eq_u32 s%d, 0", sLay); k("s_cbranch_scc1 " + L)
        k("s_waitcnt vmcnt(0)")
        swaps(XB)
        for l in range(4):
            for p in range(2): self.mf(D + (l * 2 + p) * 4, vr(XB + 4 * l), ar(aF + 4 * p), D + (l * 2 + p) * 4)
        k(L + ":")
        t = O
        self.sums(D, t)
        k("v_mul_f32 v%d, v245, v%d", t, t); k("v_mul_f32 v%d, v245, v%d", t + 2, t + 2)
        self.reduce4(t, t + 2, t + 4, t + 6, 1.0 / (16 * 1024))
        k("v_rsq_f32 v%d, v%d", t + 4, t + 4)
        k("v_mul_f32 v%d, %s, v%d", t, fl(-16.0), t); k("v_mul_f32 v%d, v%d, v%d", t, t, t + 4)
        for q in range(2):
            k("v_readlane_b32 s%d, v%d, %d", sK + 2 * q, t + 4, 16 * q); k("v_readlane_b32 s%d, v%d, %d", sK + 2 * q + 1, t, 16 * q)
        for q in range(2):
            for j in range(8): k("v_pk_mul_f32 %s, %s, s[%d:%d] op_sel_hi:[1,0]", vr(T1s + 16 * q + 2 * j, 2), vr(T1 + 2 * j, 2), sK + 2 * q, sK + 2 * q + 1)
            k("v_mul_f32 v%d, s%d, v245", 248 + 2 * q, sK + 2 * q + 1)
        for l in range(4):
            q, c = l >> 1, l & 1
            self.twiddle(D + l * 8, D + l * 8 + 4, T1s + 16 * q + 8 * c, T1s + 16 * q + 8 * c + 4, B + 8 * l, O + 4 * l, e=248 + 2 * q)
        def b(q, t_, p): return B + ((q * 2 + t_) * 2 + p) * 4
        for q in range(2):
            for p in range(2): self.mf(b(q, 0, p), ar(aF + 4 * p), vr(O + 8 * q))
        for q in range(2):
            for p in range(2): self.mf(b(q, 1, p), ar(aM1 + 8 + 4 * p), vr(O + 8 * q + 4), b(q, 0, p))
        for q in range(2):
            for p in range(2): self.mf(b(q, 0, p), ar(aM1 + 4 * p), vr(O + 8 * q + 4), b(q, 0, p))
        for t_ in (1, 0):
            for r in range(4):
                e = E + (t_ * 4 + r) * 2
                for q in range(2): k("v_cvt_pk_bf16_f32 v%d, v%d, v%d", e + q, b(q, t_, 0) + r, b(q, t_, 1) + r)
                k("ds_write_b64 v244, %s offset:%d", vr(e, 2), r * 128 + t_ * 2048)
        k("s_waitcnt lgkmcnt(0)"); k("s_barrier")
        for u in range(2): k("ds_read_b128 %s, v241 offset:%d", vr(O + 8 * u), u * 256)
        for u in range(2):
            for e in range(2): k("ds_read_b64 %s, v%d offset:%d", vr(O + 8 * u + 4 + 2 * e, 2), 243 if (u, e) == (0, 0) else 242, (33 - 32 * u - e) * 8)
        k("s_lshl_b32 s%d, s%d, 14", sT, sN2); k("s_lshl_b32 s%d, s%d, 9", sT + 1, sWv); k("s_add_u32 s%d, s%d, s%d", sT, sT, sT + 1)
        if U_OFF: k("s_add_u32 s%d, s%d, 0x%x", sT, sT, U_OFF)
        k("s_waitcnt lgkmcnt(4)")
        for u in range(2):
            for e in range(2): self.mf(D + (u * 4 + e) * 4, ar(aC, 2), vr(O + 8 * u + 2 * e, 2), kk=16)
        k("s_waitcnt lgkmcnt(0)")
        for u in range(2):
            for e in range(2): self.mf(D + (u * 4 + 2 + e) * 4, ar(aC + 2, 2), vr(O + 8 * u + 4 + 2 * e, 2), kk=16)
        for u in range(2):
            for p in range(2):
                e0 = E + (u * 2 + p) * 4
                for e in range(4): k("v_cvt_pk_bf16_f32 v%d, v%d, v%d", e0 + e, D + (u * 4 + e) * 4 + 2 * p, D + (u * 4 + e) * 4 + 2 * p + 1)
                k("buffer_store_dwordx4 %s, v246, s[%d:%d], s%d offen offset:%d%s", vr(e0), sWS, sWS + 3, sT, p * 2048 + u * 256, self.SF)
    def p2_pre(self):
        k = self.k; T2, CO = 64, 72
        for r in range(4):
            k("v_lshl_add_u32 v%d, v%d, 2, %d", vT, vG, r); k("v_mul_u32_u24 v%d, v%d, v%d", vT, vT, vI)
            self.cs(T2 + r, T2 + 4 + r, vT, 1.0 / 256)
        k("s_and_b32 s%d, s%d, 31", sT, sN2); k("s_lshl_b32 s%d, s%d, 3", sT, sT); k("s_lshl_b32 s%d, s%d, 1", sT + 1, sWv); k("s_add_u32 s%d, s%d, s%d", sT, sT, sT + 1)
        k("s_add_u32 s%d, s%d, 1", sT + 1, sT); k("s_cmp_eq_u32 s%d, 0", sT); k("s_cselect_b32 s%d, 256, s%d", sT, sT)
        NRM = 1.0 / (2048 * 512)
        W1, W2 = 120, 128
        for x in range(2):
            k("v_mov_b32 v%d, s%d", vT, sT + x)
            self.cs(vT + 1, vT + 3, vT, 1.0 / 1024)
            k("v_mul_f32 v%d, 0.5, v%d", vT + 1, vT + 1)
            k("v_fma_f32 v%d, v%d, -0.5, 0.5", vT + 3, vT + 3)
            for j in range(8):
                k("v_accvgpr_read_b32 v%d, a%d", W1 + j, aW + j); k("v_accvgpr_read_b32 v%d, a%d", W2 + j, aW + 8 + j)
            for j in range(8):
                k("v_and_b32 v%d, 0xffff0000, v%d" % (W1 + j, W1 + j) if x else "v_lshlrev_b32 v%d, 16, v%d" % (W1 + j, W1 + j))
                k("v_lshlrev_b32 v%d, 16, v%d" % (W2 + j, W2 + j) if x else "v_and_b32 v%d, 0xffff0000, v%d" % (W2 + j, W2 + j))
            for j in range(8):
                k("v_mul_f32 v%d, %s, v%d", W1 + j, fl(NRM), W1 + j); k("v_mul_f32 v%d, %s, v%d", W2 + j, fl(-NRM if j >= 4 else NRM), W2 + j)
            c = CO + 24 * x
            for j in range(0, 8, 2):
                k("v_pk_add_f32 %s, %s, %s neg_lo:[0,1] neg_hi:[0,1]", vr(c + 16 + j, 2), vr(W1 + j, 2), vr(W2 + j, 2))
            for j in range(0, 8, 2):
                k("v_pk_fma_f32 %s, %s, %s, %s op_sel_hi:[1,0,1]", vr(c + j, 2), vr(c + 16 + j, 2), vr(vT + 3, 2), vr(W2 + j, 2))
                k("v_pk_fma_f32 %s, %s, %s, %s op_sel_hi:[1,0,1] neg_lo:[1,0,0] neg_hi:[1,0,0]", vr(c + 8 + j, 2), vr(c + 16 + j, 2), vr(vT + 3, 2), vr(W1 + j, 2))
                k("v_pk_mul_f32 %s, %s, %s op_sel_hi:[1,0]", vr(c + 16 + j, 2), vr(c + 16 + j, 2), vr(vT + 1, 2))
        k("v_lshl_add_u32 v241, v%d, 6, v%d", vG, vI)
        k("v_lshlrev_b32 v240, 14, v241")
        k("v_bfe_u32 v242, v0, 1, 2"); k("v_xor_b32 v242, s%d, v242", sWv); k("v_lshlrev_b32 v242, 4, v242")
        k("v_lshl_add_u32 v241, v241, 6, v242"); k("v_add_u32 v241, 0x%x, v241", L_P2)
        k("v_bfe_u32 v242, v0, 3, 2"); k("v_xor_b32 v242, v0, v242"); k("v_lshlrev_b32 v242, 4, v242")
        k("s_add_u32 s%d, s%d, 0x%x", sT, sM0, L_P2); k("v_add_u32 v242, s%d, v242", sT)
    def p2(self):
        k = self.k; T2, CO = 64, 72
        Lx, D, O, tmp = 136, 152, 184, 200
        k("s_lshl_b32 s%d, s%d, 6", sT, sN2); k("s_lshl_b32 s%d, s%d, 4", sT + 1, sWv); k("s_add_u32 s%d, s%d, s%d", sT, sT, sT + 1)
        if U_OFF: k("s_add_u32 s%d, s%d, 0x%x", sT, sT, U_OFF)
        for r in range(4):
            k("buffer_load_dwordx4 %s, v240, s[%d:%d], s%d offen%s", vr(Lx + 4 * r), sWS, sWS + 3, sT, self.LF)
            if r < 3: k("s_add_u32 s%d, s%d, 0x40000", sT, sT)
        k("s_waitcnt vmcnt(0)")
        self.mark("p2_loaded")
        for a in range(4):
            for b in range(a + 1, 4): k("v_swap_b32 v%d, v%d", Lx + 4 * a + b, Lx + 4 * b + a)
        for e in range(4):
            for p in range(2): self.mf(D + 8 * e + 4 * p, vr(Lx + 4 * e), ar(aF + 4 * p))
        for e in range(4): self.twiddle(D + 8 * e, D + 8 * e + 4, T2, T2 + 4, tmp + 8 * e, O + 4 * e)
        for e in (0, 2, 1, 3):
            for p in range(2): self.mf(D + 8 * e + 4 * p, ar(aF + 4 * p), vr(O + 4 * e))
        neg = " neg_lo:[1,0,0] neg_hi:[1,0,0]"
        for x in range(2):
            c = CO + 24 * x; Z = D + 8 * x; V = D + 8 * (2 + x); z = tmp + 8 * x; v = tmp + 8 * (2 + x)
            terms = [(z, [(c, Z, 0), (c + 4, Z + 4, 1), (c + 20, V, 1), (c + 16, V + 4, 1)]),
                     (z + 4, [(c, Z + 4, 0), (c + 4, Z, 0), (c + 16, V, 0), (c + 20, V + 4, 1)]),
                     (v, [(c + 8, V, 0), (c + 12, V + 4, 1), (c + 20, Z, 0), (c + 16, Z + 4, 0)]),
                     (v + 4, [(c + 8, V + 4, 0), (c + 12, V, 0), (c + 16, Z, 1), (c + 20, Z + 4, 0)])]
            for j in range(4):
                for h in (0, 2):
                    for d, tl in terms:
                        a, b, n = tl[j]
                        if j == 0: k("v_pk_mul_f32 %s, %s, %s", vr(d + h, 2), vr(a + h, 2), vr(b + h, 2))
                        else: k("v_pk_fma_f32 %s, %s, %s, %s%s", vr(d + h, 2), vr(a + h, 2), vr(b + h, 2), vr(d + h, 2), neg if n else "")
            for e in (x, 2 + x):
                for r in range(4): k("v_cvt_pk_bf16_f32 v%d, v%d, v%d", O + 4 * e + r, tmp + 8 * e + r, tmp + 8 * e + 4 + r)
        for e in (0, 2, 1, 3):
            for p in range(2): self.mf(D + 8 * e + 4 * p, vr(O + 4 * e), ar(aGm + 4 * p))
        for e in (0, 2, 1, 3): self.twiddle(D + 8 * e, D + 8 * e + 4, T2, T2 + 4, tmp + 8 * e, O + 4 * e, conj=True)
        for e in (0, 2, 1, 3):
            for p in range(2): self.mf(D + 8 * e + 4 * p, ar(aGm + 4 * p), vr(O + 4 * e))
        for r in range(4):
            for e in (0, 2, 1, 3): k("v_cvt_pk_bf16_f32 v%d, v%d, v%d", Lx + 4 * r + e, D + 8 * e + r, D + 8 * e + 4 + r)
            k("ds_write_b128 v241, %s offset:%d", vr(Lx + 4 * r), r * 1024)
        k("s_lshl_b32 s%d, s%d, 14", sT, sN2); k("s_add_u32 s%d, s%d, 0x%x", sT, sT, V_OFF)
        k("s_waitcnt lgkmcnt(0)"); k("s_barrier")
        for j in range(4): k("ds_read_b128 %s, v242 offset:%d", vr(O + 4 * j), j * 1024)
        for j in range(4):
            k("s_waitcnt lgkmcnt(%d)", 3 - j)
            k("buffer_store_dwordx4 %s, v%d, s[%d:%d], s%d offen offset:%d%s", vr(O + 4 * j), vG1x, sWS, sWS + 3, sT, j * 1024, self.SF)
    def p3_pre(self):
        k = self.k; T3, XI = 64, 80
        for c in range(2):
            for r in range(4):
                k("v_lshl_add_u32 v%d, v%d, 2, %d", vT, vG, r); k("v_lshl_add_u32 v%d, v%d, 1, %d", vT + 1, vI, c); k("v_mul_u32_u24 v%d, v%d, v%d", vT, vT, vT + 1)
                self.cs(T3 + 8 * c + r, T3 + 8 * c + 4 + r, vT, 1.0 / 512)
        for l in range(4):
            for r in range(4):
                k("v_lshlrev_b32 v%d, 16, v%d", XI + 8 * l + r, self.XA + 4 * l + r); k("v_and_b32 v%d, 0xffff0000, v%d", XI + 8 * l + 4 + r, self.XA + 4 * l + r)
        L = k.label("one")
        k("s_cmp_eq_u32 s%d, 0", sLay); k("s_cbranch_scc1 " + L)
        for l in range(4):
            for r in range(4):
                x = self.XB + 4 * l + r
                k("v_lshlrev_b32 v%d, 16, v%d", vT, x); k("v_and_b32 v%d, 0xffff0000, v%d", x, x)
                k("v_add_f32 v%d, v%d, v%d", XI + 8 * l + r, XI + 8 * l + r, vT); k("v_add_f32 v%d, v%d, v%d", XI + 8 * l + 4 + r, XI + 8 * l + 4 + r, x)
        k(L + ":")
        self.exch_addr(L_P3A, 241)
        k("v_add_u32 v245, 2048, v244")
        k("v_lshrrev_b32 v240, 2, v%d", vI); k("v_lshl_add_u32 v240, v%d, 6, v240", vG); k("v_lshlrev_b32 v240, 14, v240")
        k("v_and_b32 v246, 3, v0"); k("v_lshl_add_u32 v240, v246, 4, v240")
        k("s_mul_i32 s%d, s%d, 4224", sT, sWv); k("s_add_u32 s%d, s%d, 0x%x", sT, sT, L_P3B)
        k("v_lshlrev_b32 v246, 3, v%d", vI); k("v_lshl_add_u32 v246, v%d, 9, v246", vG); k("v_add_u32 v246, s%d, v246", sT)
        k("s_lshl_b32 s%d, s%d, 9", sT, sWv); k("s_add_u32 s%d, s%d, 0x%x", sT, sT, L_P3B)
        k("v_and_b32 v248, 7, v0"); k("v_mul_u32_u24 v247, 2112, v248"); k("v_lshrrev_b32 v249, 3, v0")
        k("v_lshl_add_u32 v247, v249, 4, v247"); k("v_add_u32 v247, s%d, v247", sT)
        k("v_lshlrev_b32 v248, 4, v248"); k("v_and_b32 v249, 3, v249"); k("v_lshl_add_u32 v248, v249, 8, v248")
        k("v_lshrrev_b32 v249, 5, v0"); k("v_lshl_add_u32 v248, v249, 14, v248")
        k("v_lshlrev_b32 v249, 3, v%d", vG)
    def p3(self, after_loads=None):
        k = self.k; T3, XI = 64, 80
        Lx, D, O, tmp = 112, 128, 160, 176
        k("s_lshl_b32 s%d, s%d, 6", sT, sN2); k("s_lshl_b32 s%d, s%d, 17", sT + 1, sWv); k("s_add_u32 s%d, s%d, s%d", sT, sT, sT + 1)
        k("s_add_u32 s%d, s%d, 0x%x", sT, sT, V_OFF)
        for u in range(2):
            for p in range(2):
                k("s_add_u32 s%d, s%d, 0x%x", sT + 1, sT, (32 * p + 4 * u) * 16384)
                k("buffer_load_dwordx4 %s, v240, s[%d:%d], s%d offen%s", vr(Lx + 8 * u + 4 * p), sWS, sWS + 3, sT + 1, self.LF)
        n = after_loads() if after_loads else 0
        k("s_waitcnt vmcnt(%d)", n)
        self.mark("p3_loaded")
        for u in range(2):
            b = Lx + 8 * u
            k("v_swap_b32 v%d, v%d", b + 1, b + 4); k("v_swap_b32 v%d, v%d", b + 3, b + 6)
        pos = {0: 0, 2: 2, 1: 4, 3: 6}
        for u in range(2):
            for e in range(4): self.mf(D + (u * 4 + e) * 4, ar(aCH + (2 if e >= 2 else 0), 2), vr(Lx + 8 * u + pos[e], 2), kk=16)
        for u in range(2):
            for e in range(4):
                d = D + (u * 4 + e) * 4
                for q in range(2): k("v_cvt_pk_bf16_f32 v%d, v%d, v%d", O + 8 * u + 2 * e + q, d + 2 * q, d + 2 * q + 1)
                if e == 1: k("ds_write_b128 v241, %s offset:%d", vr(O + 8 * u), u * 256)
                if e >= 2: k("ds_write_b64 v%d, %s offset:%d", 243 if (u, e) == (0, 2) else 242, vr(O + 8 * u + 2 * e, 2), (33 - 32 * u - (e - 2)) * 8)
        k("s_waitcnt lgkmcnt(0)"); k("s_barrier")
        for q in range(2):
            for t_ in range(2):
                for h in (0, 2): k("ds_read2_b32 %s, v%d offset0:%d offset1:%d", vr(Lx + (q * 2 + t_) * 4 + h, 2), 244 + t_, h * 32 + q, (h + 1) * 32 + q)
        for q in range(2):
            k("s_waitcnt lgkmcnt(%d)", 4 - 4 * q)
            for t_ in range(2):
                for c in range(2):
                    for p in range(2):
                        d = D + ((q * 2 + c) * 2 + p) * 4
                        m = aGm + 4 * p if c == 0 else aM1H + 8 * t_ + 4 * p
                        self.mf(d, vr(Lx + (q * 2 + t_) * 4), ar(m), d if t_ else "0")
        for l in range(4):
            c = l & 1
            self.twiddle(D + 8 * l, D + 8 * l + 4, T3 + 8 * c, T3 + 8 * c + 4, tmp + 8 * l, O + 4 * l, conj=True)
        for l in range(4):
            for p in range(2): self.mf(XI + 8 * l + 4 * p, ar(aGm + 4 * p), vr(O + 4 * l), XI + 8 * l + 4 * p)
        t = tmp
        self.sums(XI, t)
        self.reduce4(t, t + 2, t + 4, t + 6, 1.0 / 1024)
        k("v_rsq_f32 v%d, v%d", t + 2, t + 4)
        k("s_lshl_b32 s%d, s%d, 6", sT, sN2); k("s_lshl_b32 s%d, s%d, 4", sT + 1, sWv); k("s_add_u32 s%d, s%d, s%d", sT, sT, sT + 1)
        k("s_add_u32 s%d, s%d, 0x%x", sT, sT, ST_OFF)
        k("v_mul_f32 v%d, v%d, v%d", t + 1, t + 2, t + 4)
        k("v_mul_f32 v%d, -v%d, v%d", t + 3, t, t + 2)
        for q in range(2):
            k("v_readlane_b32 s%d, v%d, %d", sK + 2 * q, t + 2, 16 * q); k("v_readlane_b32 s%d, v%d, %d", sK + 2 * q + 1, t + 3, 16 * q)
        k("s_mov_b64 exec, 0x10001")
        k("buffer_store_dwordx2 %s, v249, s[%d:%d], s%d offen%s", vr(t, 2), sWS, sWS + 3, sT, self.SF)
        setexec(k, 64)
        for q in range(2):
            for j in range(8):
                x = XI + 16 * q + 2 * j
                k("v_pk_fma_f32 %s, %s, s[%d:%d], s[%d:%d] op_sel:[0,0,1] op_sel_hi:[1,0,1]", vr(x, 2), vr(x, 2), sK + 2 * q, sK + 2 * q + 1, sK + 2 * q, sK + 2 * q + 1)
            for r in range(4):
                for c in range(2):
                    x = XI + 16 * q + 8 * c
                    k("v_cvt_pk_bf16_f32 v%d, v%d, v%d", O + 8 * q + 2 * r + c, x + r, x + 4 + r)
                k("ds_write_b64 v246, %s offset:%d", vr(O + 8 * q + 2 * r, 2), q * 2112 + r * 128)
        k("s_lshr_b32 s%d, s%d, 5", sT, sN2); k("s_lshl_b32 s%d, s%d, 19", sT, sT); k("s_lshl_b32 s%d, s%d, 17", sT + 1, sWv); k("s_add_u32 s%d, s%d, s%d", sT, sT, sT + 1)
        k("s_bfe_u32 s%d, s%d, 0x40001", sT + 1, sN2); k("s_lshl_b32 s%d, s%d, 10", sT + 1, sT + 1); k("s_add_u32 s%d, s%d, s%d", sT, sT, sT + 1)
        k("s_and_b32 s%d, s%d, 1", sT + 1, sN2); k("s_lshl_b32 s%d, s%d, 7", sT + 1, sT + 1); k("s_add_u32 s%d, s%d, s%d", sT, sT, sT + 1)
        k("s_add_u32 s%d, s%d, 0x%x", sT, sT, XL_OFF)
        k("s_waitcnt lgkmcnt(0)"); k("s_barrier")
        for j in range(4): k("ds_read_b128 %s, v247 offset:%d", vr(D + 4 * j), j * 128)
        for j in range(4):
            k("s_waitcnt lgkmcnt(%d)", 3 - j)
            k("buffer_store_dwordx4 %s, v248, s[%d:%d], s%d offen%s", vr(D + 4 * j), sWS, sWS + 3, sT, self.SF)
            if j < 3: k("s_add_u32 s%d, s%d, 0x8000", sT, sT)
    def g1_wdma(self, slot):
        o = ["s_add_u32 m0, s%d, 0x%x" % (sM0, L_G1 + slot * 16384)]
        for m in range(2):
            for j in range(2):
                s = sU if m else sG
                o.append("buffer_load_dwordx4 v%d, s[%d:%d], s%d offen offset:%d lds" % (vG1w + j, s, s + 3, sOw, m * 2048 + j * 1024))
        o.append("s_add_u32 s%d, s%d, %d" % (sOw, sOw, 32 * 7168))
        return o
    def g2_wdma(self, slot):
        o = ["s_add_u32 m0, s%d, 0x%x" % (sM0, L_G2 + slot * 16384)]
        for b in range(4):
            o.append("buffer_load_dwordx4 v%d, s[%d:%d], s%d offen offset:%d lds" % (vG2w + b, sD, sD + 3, sOd, b * 1024))
        o.append("s_add_u32 s%d, s%d, %d" % (sOd, sOd, 2 * 65536))
        return o
    def g1_prefetch(self):
        k = self.k
        k("s_mov_b32 s%d, 0", sOw)
        for s in range(4):
            for x in self.g1_wdma(s): k(x)
        return 16
    def gemm_loop(self, NT, R, XD, wdma, xld, reads, mfmas, place, tail_extra=None):
        k = self.k; log = []
        for s in range(XD - 1):
            for x in xld(s): k(x)
            log += [("X", s)] * 4
        def need(tags):
            last = max([i for i, t in enumerate(log) if t in tags] + [-1])
            return min(63, len(log) - 1 - last)
        def step(t, emit=True):
            p = t & 1
            vm = need([("W", t + 1), ("X", t)])
            do_read = t < NT - 1
            rd = reads((t + 1) % R, 1 - p) if do_read else []
            dm = []
            if t + R < NT: dm += wdma(t % R); log.extend([("W", t + R)] * 4)
            elif tail_extra: dm += tail_extra(t + R - NT); log.extend([("E", t)] * 4)
            if t + XD - 1 < NT: dm += xld((t + XD - 1) % XD); log.extend([("X", t + XD - 1)] * 4)
            if not emit: return vm
            k("s_waitcnt vmcnt(%d) lgkmcnt(0)" % vm)
            if do_read: k("s_barrier")
            mf = mfmas(p, t % XD)
            slots = place(len(mf), rd, dm)
            for m, f in zip(mf, slots):
                k(m)
                for x in f: k(x)
            return vm
        U = R * XD // math.gcd(R, XD)
        if U % 2: U *= 2
        nloop = (NT - max(R, XD - 1)) // U
        save = list(log); vms = [step(tt, emit=False) for tt in range(nloop * U)]
        endlog = list(log); log[:] = save
        k("s_mov_b32 s%d, %d", sIt, nloop)
        L = k.label("loop")
        k(".p2align 6"); k(L + ":")
        for u in range(U):
            i = len(k.lines); step(u)
            k.lines[i] = "    s_waitcnt vmcnt(%d) lgkmcnt(0)" % min(vms[u::U])
        log[:] = endlog
        k("s_sub_u32 s%d, s%d, 1", sIt, sIt); k("s_cmp_lg_u32 s%d, 0", sIt); k("s_cbranch_scc1 " + L)
        for t in range(nloop * U, NT): step(t)
    ACC = 32
    def g1_acc(self, ft, m, st): return self.ACC + ((ft * 2 + m) * 4 + st) * 4
    def g1_reads(self, slot, p):
        o = []
        for ft in range(7):
            for m in range(2):
                for h in range(2):
                    r = p * 56 + (ft * 2 + m) * 4 + 2 * h
                    o.append("ds_read_b64_tr_b16 %s, v%d offset:%d" % (ar(r, 2), vG1r, slot * 16384 + h * 8192 + m * 2048 + ft * 32))
        return o
    def g1_pre(self):
        k = self.k
        for x in self.g1_reads(0, 0): k(x)
        for i in range(0, 224, 2): k("v_mov_b64 %s, 0", vr(self.ACC + i, 2))
        k("s_lshl_b32 s%d, s%d, 19", sOx, sMT); k("s_add_u32 s%d, s%d, 0x%x", sOx, sOx, XL_OFF)
        k("s_mul_i32 s%d, s%d, %d", sOd, sKH, 1792 * 2048)
    def g1(self):
        k = self.k; o = self.opt
        def xf(p, st): return 112 + p * 16 + st * 4
        def xld(p):
            return ["buffer_load_dwordx4 %s, v%d, s[%d:%d], s%d offen offset:%d%s" % (ar(xf(p, j)), vG1x, sWS, sWS + 3, sOx, j * 1024, self.LF) for j in range(4)] + \
                   ["s_add_u32 s%d, s%d, 0x4000" % (sOx, sOx)]
        def mfmas(p, px):
            r = []
            for a_ in range(14):
                for b in range(4):
                    st = b if a_ % 2 == 0 else 3 - b
                    a = self.g1_acc(a_ // 2, a_ % 2, st)
                    r.append("v_mfma_f32_16x16x32_bf16 %s, %s, %s, %s" % (vr(a), ar(p * 56 + a_ * 4), ar(xf(px, st)), vr(a)))
            return r
        def place(n, rd, dm):
            slots = [[] for _ in range(n)]; used = set(); pos = 1
            for x in dm:
                if x.startswith("buffer"): slots[pos].append(x); used.add(pos); pos += 6
                else: slots[pos - 1].append(x)
            pos = 0
            for x in rd:
                while pos in used: pos += 1
                slots[pos].append(x); pos += 1
            return slots
        self.gemm_loop(32, 4, 4, self.g1_wdma, xld, self.g1_reads, mfmas, place, tail_extra=self.g2_wdma)
        self.mark("g1_loop")
        k("v_lshlrev_b32 v%d, 4, v0", vT)
        k("s_lshl_b32 s%d, s%d, 2", sT, sMT); k("s_add_u32 s%d, s%d, s%d", sT, sT, sWv); k("s_mul_i32 s%d, s%d, 448", sT, sT)
        k("s_mul_i32 s%d, s%d, 7", sT + 1, sNT); k("s_add_u32 s%d, s%d, s%d", sT, sT, sT + 1)
        k("s_lshl_b32 s%d, s%d, 10", sT, sT); k("s_add_u32 s%d, s%d, 0x%x", sT, sT, H_OFF)
        k("s_add_u32 s%d, s%d, %d", sT + 1, sT, 224 * 1024)
        for ft in range(7):
            for pr in range(2):
                for q in range(2):
                    g = self.g1_acc(ft, 0, 2 * pr + q); u = self.g1_acc(ft, 1, 2 * pr + q)
                    for h in (0, 2): k("v_pk_mul_f32 %s, %s, %s", vr(g + h, 2), vr(g + h, 2), vr(u + h, 2))
            for pr in range(2):
                t4 = self.g1_acc(ft, 1, 2 * pr)
                for q in range(2):
                    g = self.g1_acc(ft, 0, 2 * pr + q)
                    for h in (0, 1): k("v_cvt_pk_bf16_f32 v%d, v%d, v%d", t4 + 2 * q + h, g + 2 * h, g + 2 * h + 1)
            for pr in range(2):
                t4 = self.g1_acc(ft, 1, 2 * pr)
                k("v_permlane16_swap_b32 v%d, v%d", t4, t4 + 2); k("v_permlane16_swap_b32 v%d, v%d", t4 + 1, t4 + 3)
                k("buffer_store_dwordx4 %s, v%d, s[%d:%d], s%d offen offset:%d%s", vr(t4), vT, sWS, sWS + 3, sT + pr, (ft % 4) * 1024, self.SF)
            if ft == 3: k("s_add_u32 s%d, s%d, 4096", sT, sT); k("s_add_u32 s%d, s%d, 4096", sT + 1, sT + 1)
    def g2_acc(self, t, st): return self.ACC + (t * 2 + st) * 4
    def g2_wf(self, p, kk, t): return 96 + ((p * 2 + kk) * 8 + t) * 4
    def g2_reads(self, slot, p):
        o = []
        for kk in range(2):
            for t in range(8):
                for h in range(2):
                    o.append("ds_read_b64_tr_b16 %s, v%d offset:%d" % (vr(self.g2_wf(p, kk, t) + 2 * h, 2), vG2r + (t & 3), slot * 16384 + h * 8192 + kk * 2048 + (t >> 2) * 1024))
        return o
    def g2_pre(self):
        k = self.k
        for x in self.g2_reads(0, 0): k(x)
        k("s_lshl_b32 s%d, s%d, 2", sT, sMT2); k("s_add_u32 s%d, s%d, s%d", sT, sT, sWv)
        k("s_lshl_b32 s%d, s%d, 1", sT, sT); k("s_add_u32 s%d, s%d, s%d", sT, sT, sKH)
        k("s_mul_i32 s%d, s%d, %d", sOh, sT, 112 * 1024); k("s_add_u32 s%d, s%d, 0x%x", sOh, sOh, H_OFF)
        for i in range(0, 64, 2): k("v_mov_b64 %s, 0", vr(self.ACC + i, 2))
    def g2(self):
        k = self.k; RT = 224
        def hf(p, kk, st): return ((p * 2 + kk) * 2 + st) * 4
        def hld(p):
            return ["buffer_load_dwordx4 %s, v%d, s[%d:%d], s%d offen offset:%d%s" % (ar(hf(p, kk, st)), vG2h, sWS, sWS + 3, sOh, kk * 2048 + st * 256, self.LF)
                    for kk in range(2) for st in range(2)] + ["s_add_u32 s%d, s%d, 4096" % (sOh, sOh)]
        def mfmas(p, ph):
            r = []
            for kk in range(2):
                for t in range(8):
                    for st in ((0, 1) if t % 2 == 0 else (1, 0)):
                        a = self.g2_acc(t, st)
                        r.append("v_mfma_f32_16x16x32_bf16 %s, %s, %s, %s" % (vr(a), vr(self.g2_wf(p, kk, t)), ar(hf(ph, kk, st)), vr(a)))
            return r
        def place(n, rd, dm):
            slots = [[] for _ in range(n)]
            for i, x in enumerate(rd): slots[i * 26 // len(rd)].append(x)
            nb = max(1, len([x for x in dm if x.startswith("buffer")])); j = 0
            for x in dm:
                pos = min(n - 1, 1 + j * (n - 1) // nb)
                if x.startswith("buffer"): slots[pos].append(x); j += 1
                elif x.startswith("s_add_u32 m0"): slots[pos - 1].insert(0, x)
                else: slots[min(n - 1, 1 + (j - 1) * (n - 1) // nb)].append(x)
            return slots
        k("v_lshrrev_b32 v%d, 1, v%d", vT + 2, vG); k("v_lshlrev_b32 v%d, 8, v%d", vT + 2, vT + 2); k("v_lshl_add_u32 v%d, v%d, 4, v%d", vT + 2, vI, vT + 2)
        k("v_and_b32 v%d, 1, v%d", vT + 3, vG); k("v_lshl_add_u32 v%d, v%d, 3, v%d", vT + 2, vT + 3, vT + 2)
        k("s_cmp_eq_u32 s%d, 0", sKH); k("s_cselect_b32 s%d, 0, 0x80000000", sT)
        k("v_or_b32 v%d, s%d, v%d", vT + 2, sT, vT + 2)
        k("v_lshlrev_b32 v%d, 3, v%d", vT + 3, vI); k("v_or_b32 v%d, s%d, v%d", vT + 3, sT, vT + 3)
        k("s_lshl_b32 s%d, s%d, 2", sT, sMT2); k("s_add_u32 s%d, s%d, s%d", sT, sT, sWv); k("s_lshl_b32 s%d, s%d, 8", sT, sT); k("s_add_u32 s%d, s%d, 0x%x", sT, sT, ST_OFF)
        for st in range(2): k("buffer_load_dwordx2 %s, v%d, s[%d:%d], s%d offen offset:%d%s", vr(vT + 5 + 2 * st, 2), vT + 3, sWS, sWS + 3, sT, st * 128, self.LF)
        k("s_lshr_b32 s%d, s%d, 1", sT, sMT2); k("s_lshl_b32 s%d, s%d, 5", sT, sT); k("s_lshl_b32 s%d, s%d, 2", sT + 1, sNT2); k("s_add_u32 s%d, s%d, s%d", sT, sT, sT + 1)
        k("s_lshl_b32 s%d, s%d, 4", sT, sT); k("s_and_b32 s%d, s%d, 1", sT + 1, sMT2); k("s_lshl_b32 s%d, s%d, 3", sT + 1, sT + 1); k("s_add_u32 s%d, s%d, s%d", sT, sT, sT + 1)
        k("s_lshl_b32 s%d, s%d, 1", sT + 1, sWv); k("s_add_u32 s%d, s%d, s%d", sT, sT, sT + 1); k("s_lshl_b32 s%d, s%d, 10", sT, sT)
        k("s_add_u32 s%d, s%d, 0x%x", sOx, sT, XL_OFF)
        def resid(j):
            return ["buffer_load_dwordx2 %s, v%d, s[%d:%d], s%d offen offset:%d%s" % (vr(RT + ((2 * j + tt) * 2 + st) * 2, 2), vT + 2, sWS, sWS + 3, sOx, tt * 512 + st * 1024, self.LF)
                    for tt in range(2) for st in range(2)] + ["s_add_u32 s%d, s%d, 16384" % (sOx, sOx)]
        self.gemm_loop(28, 4, 4, self.g2_wdma, hld, self.g2_reads, mfmas, place, tail_extra=resid)
        self.mark("g2_loop")
        P = 272
        k("v_mul_u32_u24 v%d, %d, v%d", vT, P, vI); k("v_lshl_add_u32 v%d, v%d, 3, v%d", vT, vG, vT)
        k("s_mul_i32 s%d, s%d, %d", sT, sWv, 32 * P)
        k("v_add_u32 v%d, s%d, v%d", vT, sT, vT)
        k("v_mul_u32_u24 v%d, %d, v%d", vT + 1, P, vG); k("v_lshl_add_u32 v%d, v%d, 4, v%d", vT + 1, vI, vT + 1); k("v_add_u32 v%d, s%d, v%d", vT + 1, sT, vT + 1)
        k("v_lshlrev_b32 v%d, 19, v%d", vT + 2, vG); k("v_lshl_add_u32 v%d, v%d, 4, v%d", vT + 2, vI, vT + 2)
        k("v_add_u32 v%d, 0x200000, v%d", vT + 3, vT + 2)
        k("s_lshl_b32 s%d, s%d, 2", sT, sMT2); k("s_add_u32 s%d, s%d, s%d", sT, sT, sWv); k("s_lshl_b32 s%d, s%d, 13", sT, sT)
        k("s_lshl_b32 s%d, s%d, 8", sT + 1, sNT2); k("s_add_u32 s%d, s%d, s%d", sT, sT, sT + 1)
        k("s_lshl_b32 s%d, s%d, 22", sT + 1, sKH); k("s_add_u32 s%d, s%d, s%d", sT, sT, sT + 1)
        k("s_add_u32 s%d, s%d, 0x%x", sT, sT, PART_OFF)
        k("s_waitcnt vmcnt(0)")
        X = 160
        for st in range(2):
            mu = vT + 5 + 2 * st
            for t in range(8):
                a = self.g2_acc(t, st); r = RT + (t * 2 + st) * 2; x = X + 4 * (t % 4)
                k("v_lshlrev_b32 v%d, 16, v%d", x, r); k("v_and_b32 v%d, 0xffff0000, v%d", x + 1, r)
                k("v_lshlrev_b32 v%d, 16, v%d", x + 2, r + 1); k("v_and_b32 v%d, 0xffff0000, v%d", x + 3, r + 1)
                for h in (0, 2): k("v_pk_add_f32 %s, %s, %s op_sel_hi:[1,0]", vr(a + h, 2), vr(a + h, 2), vr(mu, 2))
                for h in (0, 2): k("v_pk_fma_f32 %s, %s, %s, %s op_sel:[0,1,0]", vr(a + h, 2), vr(x + h, 2), vr(mu, 2), vr(a + h, 2))
                k("v_cvt_pk_bf16_f32 v%d, v%d, v%d", a, a, a + 1); k("v_cvt_pk_bf16_f32 v%d, v%d, v%d", a + 1, a + 2, a + 3)
                k("ds_write_b64 v%d, %s offset:%d", vT, vr(a, 2), st * 16 * P + t * 32)
            for j in range(4 * st, 4 * st + 4): k("ds_read_b128 %s, v%d offset:%d", vr(96 + 4 * j), vT + 1, j * 4 * P)
            for j in range(4 * st, 4 * st + 4):
                k("s_waitcnt lgkmcnt(%d)", 3 - j % 4)
                k("buffer_store_dwordx4 %s, v%d, s[%d:%d], s%d offen offset:%d%s", vr(96 + 4 * j), vT + 2 + (j & 1), sWS, sWS + 3, sT, ((j >> 1) % 2) * 2048, self.SF)
            if st == 0: k("s_add_u32 s%d, s%d, 4096", sT, sT)
    def final(self):
        k = self.k
        k("v_lshlrev_b32 v%d, 4, v0", vT)
        k("s_lshl_b32 s%d, s%d, 20", sT, sWv); k("s_lshl_b32 s%d, s%d, 11", sT + 1, sN2); k("s_add_u32 s%d, s%d, s%d", sT, sT, sT + 1)
        k("s_add_u32 s%d, s%d, 0x80000", sT + 1, sT)
        k("s_add_u32 s%d, s%d, 0x400000", sT + 2, sT); k("s_add_u32 s%d, s%d, 0x480000", sT + 3, sT)
        for q in range(2):
            for h in range(2):
                for s in range(2):
                    k("buffer_load_dwordx4 %s, v%d, s[%d:%d], s%d offen offset:%d%s", vr(32 + ((q * 2 + h) * 2 + s) * 4), vT, sXS, sXS + 3, sT + 2 * s + q, h * 1024, self.LF)
        for q in range(2):
            for h in range(2):
                a = 32 + (q * 2 + h) * 8; b = a + 4
                k("s_waitcnt vmcnt(%d)", 6 - (q * 2 + h))
                for j in range(4):
                    k("v_lshlrev_b32 v64, 16, v%d", a + j); k("v_and_b32 v65, 0xffff0000, v%d", a + j)
                    k("v_lshlrev_b32 v66, 16, v%d", b + j); k("v_and_b32 v67, 0xffff0000, v%d", b + j)
                    k("v_pk_add_f32 v[64:65], v[64:65], v[66:67]")
                    k("v_cvt_pk_bf16_f32 v%d, v64, v65", a + j)
                k("buffer_store_dwordx4 %s, v%d, s[%d:%d], s%d offen offset:%d", vr(a), vT, sOUT, sOUT + 3, sT + q, h * 1024)
    def flag(self, s, off, sgrp=None):
        k = self.k
        k("s_add_u32 s%d, s%d, 0x%x", s, sFo, off)
        if sgrp is not None: k("s_lshl_b32 s%d, s%d, 11", sgrp, sgrp); k("s_add_u32 s%d, s%d, s%d", s, s, sgrp)
    def build(self):
        k = self.k; o = self.opt
        stop = o.get("stop")
        def stopat(n):
            if stop == n: k("s_branch L_fin")
        S1, R1 = 16, 16; S3, R3 = 2, 4; S4, R4 = 1, 2; S5, R5 = 1, 2
        self.prologue()
        k("L_layer:")
        self.p1_addr(); self.p1_pre()
        k("s_cmp_lg_u32 s%d, 0", sLay); k("s_cbranch_scc1 L_p1b")
        k("s_waitcnt vmcnt(17)"); k("s_branch L_p1")
        k("L_p1b:")
        k("s_lshr_b32 s%d, s%d, 4", sT + 1, sN2); self.flag(sT, FL_B5 - FL_LSTRIDE & 0xffffffff, sT + 1)
        k("s_and_b32 s%d, s%d, %d", sT + 1, sN2, R5 - 1)
        self.wait(sT, S5, sT + 1, 16 // S5)
        self.mark("b5")
        k("s_cmp_eq_u32 s%d, 2", sLay); k("s_cbranch_scc1 L_final")
        self.p1_loads(0); self.p1_loads(1)
        k("s_waitcnt vmcnt(8)")
        k("L_p1:")
        self.p1()
        L = k.label("clr"); LP = k.label("clrp")
        k("s_or_b32 s%d, s%d, s%d", sT, sLay, sWv); k("s_cmp_lg_u32 s%d, 0", sT); k("s_cbranch_scc1 " + L)
        k("v_mov_b32 v%d, 0", vT); k("s_mov_b32 s%d, 0", sT)
        k(LP + ":")
        k("global_load_dword v%d, v%d, s[76:77] sc1", vT + 1, vT)
        k("s_add_u32 s%d, s%d, 1", sT, sT); k("s_cmp_ge_u32 s%d, 0x40000", sT); k("s_cbranch_scc1 " + L)
        k("s_waitcnt vmcnt(0)")
        k("v_cmp_ne_u32 vcc, 1, v%d", vT + 1); k("s_cbranch_vccnz " + LP)
        k(L + ":")
        self.mark("p1_done")
        self.flag(sT, FL_B1); k("s_lshr_b32 s%d, s2, 4", sT + 1)
        self.arrive(sT, S1, R1, sT + 1)
        self.mark("a1")
        stopat(1)
        L = k.label("park")
        k("s_cmp_lg_u32 s%d, 0", sLay); k("s_cbranch_scc1 " + L)
        self.w_park()
        k(L + ":")
        self.p2_pre()
        self.flag(sT, FL_B1); k("s_and_b32 s%d, s2, %d", sT + 1, R1 - 1)
        self.wait(sT, S1, sT + 1, 256 // S1)
        self.mark("b1")
        self.p2()
        self.mark("p2_done")
        self.flag(sT, FL_B2); k("s_lshr_b32 s%d, s2, 4", sT + 1)
        self.arrive(sT, S1, R1, sT + 1)
        self.mark("a2")
        stopat(2)
        self.p3_pre()
        self.flag(sT, FL_B2); k("s_and_b32 s%d, s2, %d", sT + 1, R1 - 1)
        self.wait(sT, S1, sT + 1, 256 // S1)
        self.mark("b2")
        self.p3(self.g1_prefetch)
        self.mark("p3_done")
        k("s_lshr_b32 s%d, s%d, 5", sT + 1, sN2); self.flag(sT, FL_B3, sT + 1); k("s_and_b32 s%d, s%d, %d", sT + 1, sN2, S3 - 1)
        self.arrive(sT, S3, R3, sT + 1)
        self.mark("a3")
        stopat(3)
        self.g1_pre()
        k("s_mov_b32 s%d, s%d", sT + 1, sMT); self.flag(sT, FL_B3, sT + 1); k("s_and_b32 s%d, s%d, %d", sT + 1, sNT, R3 - 1)
        self.wait(sT, S3, sT + 1, 32 // S3)
        self.mark("b3")
        self.g1()
        self.mark("g1_done")
        k("s_lshr_b32 s%d, s%d, 4", sT + 1, sNT); k("s_lshl_b32 s%d, s%d, 1", sT + 2, sMT); k("s_add_u32 s%d, s%d, s%d", sT + 1, sT + 1, sT + 2)
        self.flag(sT, FL_B4, sT + 1)
        self.arrive(sT, S4, R4, None)
        self.mark("a4")
        stopat(4)
        self.g2_pre()
        k("s_and_b32 s%d, s%d, 14", sT + 1, sMT2); k("s_add_u32 s%d, s%d, s%d", sT + 1, sT + 1, sKH)
        self.flag(sT, FL_B4, sT + 1); k("s_and_b32 s%d, s%d, %d", sT + 1, sNT2, R4 - 1)
        self.wait(sT, S4, sT + 1, 16 // S4)
        self.mark("b4")
        self.g2()
        self.mark("g2_done")
        k("s_mov_b32 s%d, s%d", sT + 1, sMT2); self.flag(sT, FL_B5, sT + 1)
        self.arrive(sT, S5, R5, None)
        self.mark("a5")
        stopat(5)
        k("s_add_u32 s%d, s%d, 0x%x", sXS, sWS, PART_OFF); k("s_addc_u32 s%d, s%d, 0", sXS + 1, sWS + 1); k("s_mov_b32 s%d, 0x800000", sXS + 2)
        k("s_add_u32 s%d, s%d, 0x%x", sWS, sWS, LSTRIDE); k("s_addc_u32 s%d, s%d, 0", sWS + 1, sWS + 1)
        k("s_add_u32 s%d, s%d, 0x%x", sFo, sFo, FL_LSTRIDE)
        k("s_add_u32 s%d, s%d, 1", sLay, sLay)
        k("s_cmp_eq_u32 s%d, 2", sLay); k("s_cbranch_scc1 L_p1b")
        k("s_branch L_layer")
        k("L_final:")
        self.final()
        k("L_fin:")
        if o.get("stamp"):
            k("s_waitcnt vmcnt(0)")
            k("s_mov_b32 s%d, 1", sLay); self.nmark = 31; self.mark("end")
            srd(k, sTM, 78, 1 << 20, 240 << 20)
            k("s_lshl_b32 s%d, s2, 10", sT); k("s_lshl_b32 s%d, s%d, 8", sT + 1, sWv); k("s_add_u32 s%d, s%d, s%d", sT, sT, sT + 1)
            k("v_lshlrev_b32 v%d, 2, v0", vT)
            k("buffer_store_dword v31, v%d, s[%d:%d], s%d offen", vT, sTM, sTM + 3, sT)
        k("L_end:")
        k("s_endpgm")
        k.lines = hazard.fix(k.lines)
        return k

HEADER = open("interleave_layers__spectral_gfnet__glu_gated_bilinear__prompt.s.ref").read().split("; Override")[0]
def generate(path, opt):
    g = Gen(opt); k = g.build()
    o = [HEADER.rstrip("\n")]
    if opt.get("stamp"): o.append("; marks " + repr(g.marknames))
    o.append("; @launch grid=(256,1,1) block=(256,1,1) lds=%d" % LDS_BYTES)
    o += ['.amdgcn_target "amdgcn-amd-amdhsa--gfx950"', ".text", k.text(), '.section .rodata,"a"', k.desc()]
    open(path, "w").write("\n".join(o))
if __name__ == "__main__":
    generate(sys.argv[1], eval(sys.argv[2]) if len(sys.argv) > 2 else {})
```

```python
import sys, math
sys.path.insert(0, "tools")
from asmgen import *
import hazard
KNAME = "interleave_layers__spectral_gfnet__glu_gated_bilinear__prompt_kernel"
U_OFF, V_OFF, XL_OFF, PART_OFF, H_OFF, ST_OFF = 0x0, 0x400000, 0x800000, 0xC00000, 0x1400000, 0x2200000
LSTRIDE = 0x2400000
FL_OFF = 2 * LSTRIDE
FL_B1, FL_B2, FL_B3, FL_B4, FL_B5, FL_LSTRIDE = 0, 0x8000, 0x10000, 0x14000, 0x1C000, 0x24000
L_G1, L_G2 = 0, 0x10000
L_P1, L_P2, L_P3A, L_P3B = 0x10000, 0x14000, 0x18000, 0x1C000
L_W = 0x20400
L_W2 = L_W + 0x4000
LDS_BYTES = L_W2 + 0x800
sWS, sXS, sG, sU, sD, sOUT, sFL, sTM = 4, 8, 12, 16, 20, 24, 28, 32
sN2, sWv, sLay = 40, 41, 42
sMT, sNT, sMT2, sNT2, sKH = 43, 44, 45, 46, 47
sFo = 48
sOx, sOw, sOh, sOd, sM0, sIt = 49, 50, 51, 52, 53, 54
sT = 56
sK = 84
vL, vI, vG = 0, 1, 2
vG1r, vG1x, vG1w = 3, 4, 5
vG2r, vG2w, vG2h = 7, 11, 15
vL128 = 16
vT = 17
aF, aGm, aM1, aM1H, aC, aCH, aW = 176, 184, 192, 208, 224, 228, 232
EPS = 1e-5
import struct
def fl(x): return "0x%x" % struct.unpack("<I", struct.pack("<f", x))[0]
def vr(b, n=4): return "v[%d:%d]" % (b, b + n - 1)
def ar(b, n=4): return "a[%d:%d]" % (b, b + n - 1)
def setexec(k, n):
    if n == 64: k("s_mov_b64 exec, -1"); return
    m = (1 << n) - 1
    k("s_mov_b32 exec_lo, 0x%x" % (m & 0xffffffff)); k("s_mov_b32 exec_hi, 0x%x" % (m >> 32))

class Gen:
    def __init__(self, opt):
        self.opt = opt
        self.k = Kern(KNAME, vgprs=256, agprs=256, sgprs=102)
        self.nmark = 0
        self.SF = " sc1"
        self.LF = opt.get("lf", " sc1")
    def mark(self, name):
        if not self.opt.get("stamp"): return
        k = self.k; i = self.nmark; self.nmark += 1
        self.marknames = getattr(self, "marknames", []) + [name]
        k("s_memrealtime s[96:97]"); k("s_waitcnt lgkmcnt(0)")
        k("s_lshl_b32 s98, s%d, 5", sLay); k("s_add_u32 s98, s98, %d", i); k("s_and_b32 m0, s98, 63")
        k("s_nop 0"); k("v_writelane_b32 v31, s96, m0")
    def cs(self, dc, ds, vint, scale, add=None):
        k = self.k; t = vT + 13
        k("v_cvt_f32_u32 v%d, v%d", t, vint)
        k("v_mul_f32 v%d, %s, v%d", t, fl(scale), t)
        if add is not None: k("v_add_f32 v%d, v%d, v%d", t, add, t)
        k("v_fract_f32 v%d, v%d", t, t)
        k("v_cos_f32 v%d, v%d", dc, t); k("v_sin_f32 v%d, v%d", ds, t)
    def pack_to_a(self, a, lo, hi, neglo=False, neghi=False):
        k = self.k; t = vT + 12
        k("v_cvt_pk_bf16_f32 v%d, %sv%d, %sv%d", t, "-" if neglo else "", lo, "-" if neghi else "", hi)
        k("v_accvgpr_write_b32 a%d, v%d", a, t)
    def arrive(self, sbase, S, R, sshard):
        k = self.k
        k("s_waitcnt vmcnt(0)"); k("s_barrier")
        L = k.label("arr")
        k("s_cmp_lg_u32 s%d, 0", sWv); k("s_cbranch_scc1 " + L)
        if sshard is not None:
            k("s_lshl_b32 s%d, s%d, 7", sT + 3, sshard); k("s_add_u32 s%d, s%d, s%d", sT + 3, sT + 3, sbase)
        else: k("s_mov_b32 s%d, s%d", sT + 3, sbase)
        k("v_mul_u32_u24 v%d, %d, v%d", vT, S, vL128); k("v_mov_b32 v%d, 1", vT + 1)
        setexec(k, R)
        k("buffer_atomic_add v%d, v%d, s[%d:%d], s%d offen sc1", vT + 1, vT, sFL, sFL + 3, sT + 3)
        setexec(k, 64)
        k(L + ":")
    def wait(self, sbase, S, srep, count):
        k = self.k
        L = k.label("wdone"); LP = k.label("poll"); LX = k.label("pollx")
        k("s_cmp_lg_u32 s%d, 0", sWv); k("s_cbranch_scc1 " + L)
        if srep is not None:
            k("s_mul_i32 s%d, s%d, %d", sT + 3, srep, S * 128); k("s_add_u32 s%d, s%d, s%d", sT + 3, sT + 3, sbase)
        else: k("s_mov_b32 s%d, s%d", sT + 3, sbase)
        k("s_mov_b32 s%d, 0", sT + 2)
        setexec(k, S)
        k(LP + ":")
        k("v_mov_b32 v%d, 0", vT)
        k("buffer_atomic_add v%d, v%d, s[%d:%d], s%d offen sc0 sc1", vT, vL128, sFL, sFL + 3, sT + 3)
        k("s_add_u32 s%d, s%d, 1", sT + 2, sT + 2); k("s_cmp_ge_u32 s%d, 0x40000", sT + 2); k("s_cbranch_scc1 " + LX)
        k("s_waitcnt vmcnt(0)")
        k("v_cmp_ne_u32 vcc, %d, v%d", count, vT)
        k("s_cbranch_vccnz " + LP)
        k(LX + ":")
        setexec(k, 64)
        k(L + ":")
        k("s_barrier")
    def reduce4(self, p, q, r, s, c2):
        k = self.k
        k("v_permlane16_swap_b32 v%d, v%d", p, q); k("v_permlane16_swap_b32 v%d, v%d", r, s)
        k("v_add_f32 v%d, v%d, v%d", p, p, q); k("v_add_f32 v%d, v%d, v%d", r, r, s)
        k("v_permlane32_swap_b32 v%d, v%d", p, r)
        k("v_add_f32 v%d, v%d, v%d", r, p, r)
        for sh in (8, 4, 2, 1): k("v_add_f32_dpp v%d, v%d, v%d row_ror:%d row_mask:0xf bank_mask:0xf", r, r, r, sh)
        k("v_mov_b32 v%d, v%d", p, r)
        k("v_permlane32_swap_b32 v%d, v%d", p, r)
        k("v_mul_f32 v%d, %s, v%d", p, fl(1.0 / 1024), p)
        k("v_mul_f32 v%d, %s, v%d", r, fl(c2), r)
        k("v_fma_f32 v%d, -v%d, v%d, v%d", r, p, p, r)
        k("v_max_f32 v%d, 0, v%d", r, r)
        k("v_add_f32 v%d, %s, v%d", r, fl(EPS), r)
    def sums(self, base, t):
        k = self.k
        for j in range(8):
            for q in range(2):
                b = base + 16 * q + 2 * j
                if j == 0: k("v_pk_mul_f32 %s, %s, %s", vr(t + 4 + 2 * q, 2), vr(b, 2), vr(b, 2))
                else: k("v_pk_fma_f32 %s, %s, %s, %s", vr(t + 4 + 2 * q, 2), vr(b, 2), vr(b, 2), vr(t + 4 + 2 * q, 2))
                if j == 1: k("v_pk_add_f32 %s, %s, %s", vr(t + 2 * q, 2), vr(b - 2, 2), vr(b, 2))
                elif j > 1: k("v_pk_add_f32 %s, %s, %s", vr(t + 2 * q, 2), vr(t + 2 * q, 2), vr(b, 2))
        for j in range(4): k("v_add_f32 v%d, v%d, v%d", t + 2 * j, t + 2 * j, t + 2 * j + 1)
    def twiddle(self, re, im, tc, ts, tmp, out, conj=False, e=None):
        k = self.k
        for h in (0, 2):
            if e is None:
                k("v_pk_mul_f32 %s, %s, %s", vr(tmp + h, 2), vr(re + h, 2), vr(tc + h, 2))
                k("v_pk_mul_f32 %s, %s, %s", vr(tmp + 4 + h, 2), vr(im + h, 2), vr(tc + h, 2))
            else:
                k("v_pk_fma_f32 %s, %s, %s, %s op_sel_hi:[1,1,0]", vr(tmp + h, 2), vr(re + h, 2), vr(tc + h, 2), vr(e, 2))
                k("v_pk_fma_f32 %s, %s, %s, %s op_sel_hi:[1,1,0]", vr(tmp + 4 + h, 2), vr(im + h, 2), vr(tc + h, 2), vr(e, 2))
        neg = " neg_lo:[1,0,0] neg_hi:[1,0,0]"
        for h in (0, 2):
            k("v_pk_fma_f32 %s, %s, %s, %s%s", vr(tmp + h, 2), vr(im + h, 2), vr(ts + h, 2), vr(tmp + h, 2), neg if conj else "")
            k("v_pk_fma_f32 %s, %s, %s, %s%s", vr(tmp + 4 + h, 2), vr(re + h, 2), vr(ts + h, 2), vr(tmp + 4 + h, 2), "" if conj else neg)
        for r in range(4): k("v_cvt_pk_bf16_f32 v%d, v%d, v%d", out + r, tmp + r, tmp + 4 + r)
    def mf(self, d, a, b, c="0", kk=32):
        self.k("v_mfma_f32_16x16x%d_bf16 %s, %s, %s, %s", kk, vr(d), a, b, c if isinstance(c, str) else vr(c))

    def prologue(self):
        k = self.k; o = self.opt
        k("s_cmp_ge_u32 s2, 256"); k("s_cbranch_scc1 L_end")
        k("s_load_dwordx4 s[60:63], s[0:1], 0")
        k("s_load_dwordx2 s[64:65], s[0:1], 16")
        k("s_load_dwordx8 s[68:75], s[0:1], 32")
        k("s_load_dwordx4 s[76:79], s[0:1], 64")
        if not o.get("nocodepf"):
            k("s_getpc_b64 s[66:67]")
            k("L_pc:")
            k("v_lshlrev_b32 v%d, 7, v0", vT)
            k("v_min_u32 v%d, (L_end-L_pc), v%d", vT, vT)
            k("global_load_dword a254, v%d, s[66:67]", vT)
        k("v_lshrrev_b32 v%d, 6, v0", vT); k("v_and_b32 v0, 63, v0")
        k("v_readfirstlane_b32 s%d, v%d", sWv, vT)
        k("v_and_b32 v%d, 15, v0", vI); k("v_lshrrev_b32 v%d, 4, v0", vG)
        k("v_lshlrev_b32 v%d, 7, v0", vL128)
        k("s_and_b32 s%d, s2, 7", sT); k("s_lshr_b32 s%d, s2, 3", sT + 1)
        k("s_lshl_b32 s%d, s%d, 5", sN2, sT); k("s_add_u32 s%d, s%d, s%d", sN2, sN2, sT + 1)
        k("s_and_b32 s%d, s%d, 1", sT + 2, sT); k("s_lshl_b32 s%d, s%d, 2", sT + 2, sT + 2)
        k("s_and_b32 s%d, s%d, 3", sMT, sT + 1); k("s_add_u32 s%d, s%d, s%d", sMT, sMT, sT + 2)
        k("s_lshr_b32 s%d, s%d, 1", sT, sT); k("s_lshr_b32 s%d, s%d, 2", sT + 1, sT + 1)
        k("s_lshl_b32 s%d, s%d, 3", sNT, sT); k("s_add_u32 s%d, s%d, s%d", sNT, sNT, sT + 1)
        k("s_lshr_b32 s%d, s%d, 1", sKH, sT)
        k("s_and_b32 s%d, s%d, 1", sT + 2, sT + 1); k("s_lshl_b32 s%d, s%d, 1", sMT2, sMT); k("s_add_u32 s%d, s%d, s%d", sMT2, sMT2, sT + 2)
        k("s_and_b32 s%d, s%d, 1", sT, sT); k("s_lshl_b32 s%d, s%d, 2", sT, sT); k("s_lshr_b32 s%d, s%d, 1", sNT2, sT + 1); k("s_add_u32 s%d, s%d, s%d", sNT2, sNT2, sT)
        k("s_mov_b32 s%d, 0", sLay); k("s_mov_b32 s%d, 0", sFo)
        k("s_lshl_b32 s%d, s%d, 12", sM0, sWv)
        if o.get("stamp"): k("v_mov_b32 v31, 0")
        self.p1_addr()
        k("v_lshlrev_b32 v%d, 4, v0", vT); k("v_mov_b64 v[20:21], 0"); k("v_mov_b64 v[22:23], 0")
        k("s_waitcnt lgkmcnt(0)")
        srd(k, sXS, 60, 2048 * 2048)
        srd(k, sFL, 78, 2 * FL_LSTRIDE, FL_OFF)
        self.mark("start")
        L = k.label("nz")
        k("s_cmp_lg_u32 s2, 8"); k("s_cbranch_scc1 " + L)
        k("s_lshl_b32 s%d, s%d, 13", sT, sWv)
        for j in range(8):
            k("buffer_store_dwordx4 v[20:23], v%d, s[%d:%d], s%d offen offset:%d sc1", vT, sFL, sFL + 3, sT, (j % 4) * 1024)
            if j == 3: k("s_add_u32 s%d, s%d, 4096", sT, sT)
        k(L + ":")
        self.p1_loads(0, o.get("xfl", ""))
        srd(k, sWS, 78, LSTRIDE)
        srd(k, sG, 68, 1024 * 7168)
        k("s_sub_u32 s%d, s70, 2048", sU); k("s_subb_u32 s%d, s71, 0", sU + 1)
        k("s_mov_b32 s%d, 0x%x", sU + 2, 1024 * 7168 + 2048); k("s_mov_b32 s%d, 0x20000", sU + 3)
        k("s_sub_u32 s%d, s72, 1024", sD); k("s_subb_u32 s%d, s73, 0", sD + 1)
        k("s_mov_b32 s%d, 0x%x", sD + 2, 3584 * 2048 + 1024); k("s_mov_b32 s%d, 0x20000", sD + 3)
        srd(k, sOUT, 74, 2048 * 2048)
        k("s_lshl_b32 s%d, s2, 10", sT); k("s_lshl_b32 s%d, s%d, 8", sT + 1, sWv); k("s_add_u32 s%d, s%d, s%d", sT, sT, sT + 1); k("s_add_u32 s%d, s%d, 0x8000", sT, sT)
        setexec(k, 16)
        k("buffer_store_dwordx4 v[20:23], v%d, s[%d:%d], s%d offen sc1", vT, sFL, sFL + 3, sT)
        setexec(k, 64)
        self.w_prep()
        self.npf0 = self.pf(0)
        self.consts(False)
        L = k.label("rep")
        k("s_cmp_lg_u32 s2, 8"); k("s_cbranch_scc1 " + L)
        k("s_waitcnt vmcnt(%d)", 9 + (o.get("wtouch", 1) == 0) + self.npf0); k("s_barrier")
        k("s_cmp_lg_u32 s%d, 0", sWv); k("s_cbranch_scc1 " + L)
        k("v_mov_b32 v%d, 1", vT + 1); k("v_lshlrev_b32 v%d, 2, v0", vT)
        setexec(k, 32)
        k("global_store_dword v%d, v%d, s[76:77] sc1", vT, vT + 1)
        setexec(k, 64)
        k(L + ":")
    def w_prep(self):
        k = self.k
        k("s_lshr_b32 s%d, s%d, 5", sT, sN2); k("s_and_b32 s%d, s%d, 31", sT + 1, sN2)
        k("s_lshl_b32 s80, s%d, 4", sT + 1); k("s_sub_u32 s%d, 1010, s80", sT + 3)
        k("s_cmp_ge_u32 s%d, 2", sWv); k("s_cselect_b32 s80, s%d, s80", sT + 3); k("s_cselect_b32 s%d, -1, 0", sT + 3); k("s_cselect_b32 s%d, 508, 0", sT + 2)
        k("s_bitcmp1_b32 s%d, 0", sWv); k("s_cselect_b32 s%d, s64, s62", sTM); k("s_cselect_b32 s%d, s65, s63", sTM + 1)
        k("s_mov_b32 s%d, 0x%x", sTM + 2, 2048 * 1026); k("s_mov_b32 s%d, 0x20000", sTM + 3)
        def row(d, src):
            k("v_xor_b32 v%d, s%d, v%d", d, sT + 3, src); k("v_subrev_u32 v%d, s%d, v%d", d, sT + 3, d)
            k("v_and_b32 v%d, 2047, v%d", d, d); k("v_mul_u32_u24 v%d, 1026, v%d", d, d)
        k("s_lshl_b32 s81, s%d, 6", sT + 1); k("s_add_u32 s81, s81, s%d", sT)
        k("v_and_b32 v%d, 56, v0", vT); k("v_add_u32 v%d, s81, v%d", vT, vT); row(vT, vT)
        k("v_and_b32 v%d, 7, v0", vT + 1); k("v_lshlrev_b32 v%d, 7, v%d", vT + 1, vT + 1); k("v_min_u32 v%d, 514, v%d", vT + 1, vT + 1)
        k("v_add3_u32 v214, v%d, v%d, s%d", vT, vT + 1, sT + 2)
        if self.opt.get("wtouch", 1) == 0: self.w_touch()
        k("v_lshlrev_b32 v%d, 3, v%d", vT, vI); k("v_lshl_add_u32 v%d, v%d, 9, v%d", vT, vG, vT); k("v_add_u32 v%d, s%d, v%d", vT, sT, vT)
        for r in range(4):
            k("v_add_u32 v%d, %d, v%d", 208 + r, 128 * r, vT); row(208 + r, 208 + r)
        for j in range(2):
            k("s_and_b32 s%d, s%d, 2", sT, sWv); k("s_add_u32 s%d, s%d, %d", sT, sT, j); k("s_lshl_b32 s%d, s%d, 7", sT, sT)
            k("v_add_u32 v%d, s%d, v%d", 212 + j, sT, vT); k("v_mul_u32_u24 v%d, 1026, v%d", 212 + j, 212 + j); k("v_add_u32 v%d, 512, v%d", 212 + j, 212 + j)
    def w_touch(self):
        self.k("buffer_load_dword a255, v214, s[%d:%d], 0 offen%s", sTM, sTM + 3, self.opt.get("wfl", ""))
    def w_loads(self, special):
        k = self.k
        if self.opt.get("now"): return
        if special:
            k("s_lshl_b32 s%d, s%d, 9", sT, sWv)
            for j in range(2):
                k("s_add_u32 m0, s%d, 0x%x", sT, L_W2 + j * 256)
                k("buffer_load_ushort v%d, s[%d:%d], 0 offen lds", 212 + j, sTM, sTM + 3)
            return
        for r in range(4):
            k("s_add_u32 m0, s%d, 0x%x", sM0, L_W + r * 1024)
            k("buffer_load_dwordx4 v%d, s[%d:%d], s80 offen lds", 208 + r, sTM, sTM + 3)
    def w_park(self):
        k = self.k; W = 208
        L = k.label("nsp")
        k("s_and_b32 s%d, s%d, 31", sT, sN2); k("s_or_b32 s%d, s%d, s%d", sT, sT, sWv)
        k("s_cmp_lg_u32 s%d, 0", sT); k("s_cbranch_scc1 " + L)
        k("v_lshlrev_b32 v%d, 4, v0", vT); k("v_add_u32 v%d, 0x%x, v%d", vT, L_W, vT)
        k("v_lshlrev_b32 v%d, 2, v0", vT + 1); k("v_add_u32 v%d, 0x%x, v%d", vT + 1, L_W2, vT + 1)
        for r in range(4):
            for m in range(2): k("ds_read_b32 v%d, v%d offset:%d", W + 4 * m + r, vT + 1, ((r & 2) + m) * 512 + (r & 1) * 256)
        k("s_waitcnt lgkmcnt(0)")
        for r in range(4):
            for m in range(2): k("ds_write_b16 v%d, v%d offset:%d", vT, W + 4 * m + r, m * 4096 + r * 1024)
        k(L + ":")
    def pf(self, window):
        k = self.k; n = 0
        todo = self.opt.get("pf", {}).get(window, [])
        if not todo: return 0
        shadow = str(window).endswith("s")
        L = k.label("pf")
        if shadow:
            k("s_sub_u32 s%d, s%d, 1", sT + 1, sWv); k("s_lshl_b32 s%d, s%d, 4", sT, sLay); k("s_add_u32 s%d, s%d, s%d", sT + 1, sT + 1, sT)
            k("s_cmp_ge_u32 s%d, 2", sT + 1); k("s_cbranch_scc1 " + L)
            k("s_lshl_b32 s%d, s2, 1", sT); k("s_add_u32 s%d, s%d, s%d", sT, sT, sT + 1); k("s_mul_i32 s%d, s%d, %d", sT, sT, 28 * 128)
            setexec(k, 28)
        else:
            k("s_lshl_b32 s%d, s2, 2", sT); k("s_add_u32 s%d, s%d, s%d", sT, sT, sWv); k("s_mul_i32 s%d, s%d, %d", sT, sT, 14 * 128)
            k("s_cmp_eq_u32 s%d, 0", sLay); k("s_cselect_b64 exec, 0x3fff, 1")
        for (m, c) in todo:
            r, bias = {"g": (sG, 0), "u": (sU, 2048), "d": (sD, 1024)}[m]
            k("s_add_u32 s%d, s%d, %d", sT + 1, sT, c * (7340032 // 4) + bias)
            k("buffer_load_dword a255, v%d, s[%d:%d], s%d offen", vL128, r, r + 3, sT + 1); n += 1
        setexec(k, 64)
        k(L + ":")
        return 0 if shadow else n
    def consts(self, inv):
        k = self.k; c, s, n = vT, vT + 1, vT + 2
        for r in range(4):
            k("v_lshl_add_u32 v%d, v%d, 2, %d", n + 1, vG, r)
            k("v_mul_u32_u24 v%d, v%d, v%d", n, vI, n + 1)
            if not inv:
                self.cs(c, s, n, 1.0 / 16)
                self.pack_to_a(aF + r, c, s); self.pack_to_a(aF + 4 + r, s, c, neglo=True)
                self.pack_to_a(aGm + r, c, s, neghi=True); self.pack_to_a(aGm + 4 + r, s, c)
                k("v_lshl_add_u32 v%d, v%d, 1, v%d", n + 2, n, vI)
                self.cs(c, s, n + 2, 1.0 / 32)
                self.pack_to_a(aM1 + r, c, s); self.pack_to_a(aM1 + 4 + r, s, c, neglo=True)
                self.pack_to_a(aM1 + 8 + r, c, s, True, True); self.pack_to_a(aM1 + 12 + r, s, c, neghi=True)
            else:
                k("v_lshl_add_u32 v%d, v%d, 1, v%d", n + 2, n, n + 1)
                self.cs(c, s, n + 2, 1.0 / 32)
                self.pack_to_a(aM1H + r, c, s, neghi=True); self.pack_to_a(aM1H + 4 + r, s, c)
                self.pack_to_a(aM1H + 8 + r, c, s, neglo=True); self.pack_to_a(aM1H + 12 + r, s, c, True, True)
        k("v_and_b32 v%d, 1, v%d", n + 3, vI); k("v_cvt_f32_u32 v%d, v%d", n + 4, n + 3); k("v_mul_f32 v%d, 0x3e800000, v%d", n + 4, n + 4)
        if inv: k("v_mul_u32_u24 v%d, 0x8000, v%d", n + 3, n + 3); k("v_lshl_or_b32 v%d, v%d, 16, v%d", n + 3, n + 3, n + 3)
        k("v_lshrrev_b32 v%d, 1, v%d", n + 5, vI)
        for q in range(2):
            k("v_lshl_add_u32 v%d, v%d, 1, %d", n + 1, vG, q)
            if not inv:
                k("v_lshlrev_b32 v%d, 8, v%d", n, n + 1); k("v_add_u32 v%d, s%d, v%d", n, sN2, n); k("v_mul_u32_u24 v%d, v%d, v%d", n, n, n + 5)
                self.cs(c, s, n, 1.0 / 2048, add=n + 4)
                self.pack_to_a(aC + q, c, s); self.pack_to_a(aC + 2 + q, c, s, neghi=True)
            else:
                k("v_lshlrev_b32 v%d, 8, v%d", n, n + 5); k("v_add_u32 v%d, s%d, v%d", n, sN2, n); k("v_mul_u32_u24 v%d, v%d, v%d", n, n, n + 1)
                self.cs(c, s, n, -1.0 / 2048, add=n + 4)
                self.pack_to_a(aCH + q, c, s)
                k("v_xor_b32 v%d, v%d, v%d", vT + 12, vT + 12, n + 3); k("v_accvgpr_write_b32 a%d, v%d", aCH + 2 + q, vT + 12)
    def g_addr(self):
        k = self.k; t = vT
        k("v_lshlrev_b32 v%d, 4, v0", t); k("v_add_u32 v%d, s%d, v%d", vG1x, sM0, t)
        k("v_lshrrev_b32 v%d, 5, v0", t); k("v_lshlrev_b32 v%d, 12, v%d", t, t)
        k("v_bfe_u32 v%d, v0, 4, 1", t + 1); k("v_mul_u32_u24 v%d, 1152, v%d", t + 1, t + 1)
        k("v_bfe_u32 v%d, v0, 2, 2", t + 2); k("v_mul_u32_u24 v%d, 224, v%d", t + 2, t + 2)
        k("v_and_b32 v%d, 3, v0", t + 3); k("v_lshlrev_b32 v%d, 3, v%d", t + 3, t + 3)
        k("v_add3_u32 v%d, v%d, v%d, v%d", t + 1, t, t + 1, t + 2); k("v_add_u32 v%d, v%d, v%d", vG1r, t + 1, t + 3)
        for j in range(2):
            k("s_lshl_b32 s%d, s%d, 1", sT, sWv); k("s_add_u32 s%d, s%d, %d", sT, sT, j)
            k("s_and_b32 s%d, s%d, 3", sT + 1, sT); k("s_lshl_b32 s%d, s%d, 3", sT + 1, sT + 1)
            k("s_and_b32 s%d, s%d, 4", sT, sT); k("s_add_u32 s%d, s%d, s%d", sT, sT, sT + 1)
            k("s_mul_i32 s%d, s%d, 7168", sT, sT); k("s_mul_i32 s%d, s%d, 224", sT + 1, sNT); k("s_add_u32 s%d, s%d, s%d", sT, sT, sT + 1)
            if j: k("s_sub_u32 s%d, s%d, 1024", sT, sT)
            k("v_subrev_u32 v%d, %d, v0", t + 4, 8 * j)
            k("v_mul_u32_u24 v%d, 4682, v%d", t + 5, t + 4); k("v_lshrrev_b32 v%d, 16, v%d", t + 5, t + 5)
            k("v_mul_u32_u24 v%d, 14, v%d", t + 6, t + 5); k("v_sub_u32 v%d, v%d, v%d", t + 6, t + 4, t + 6)
            k("v_mul_u32_u24 v%d, 7168, v%d", t + 5, t + 5); k("v_lshl_add_u32 v%d, v%d, 4, v%d", t + 5, t + 6, t + 5)
            k("v_add_u32 v%d, s%d, v%d", t + 5, sT, t + 5)
            k("v_cmp_gt_u32 vcc, 56, v%d", t + 4)
            k("v_mov_b32 v%d, 0x80000000", t + 6)
            k("v_cndmask_b32 v%d, v%d, v%d, vcc", vG1w + j, t + 6, t + 5)
        k("v_lshlrev_b32 v%d, 4, v%d", t + 4, vI); k("v_lshl_add_u32 v%d, v%d, 9, v%d", vG2h, vG, t + 4)
        k("v_bfe_u32 v%d, v0, 2, 3", t + 4); k("v_lshrrev_b32 v%d, 1, v%d", t + 5, t + 4)
        k("v_lshl_add_u32 v%d, v%d, 7, v%d", t + 4, t + 4, t); k("v_add_u32 v%d, v%d, v%d", t + 4, t + 4, t + 3)
        k("v_add_u32 v%d, 0x%x, v%d", t + 4, L_G2, t + 4)
        for x in range(4):
            k("v_xor_b32 v%d, %d, v%d", t + 6, x, t + 5); k("v_lshl_add_u32 v%d, v%d, 5, v%d", vG2r + x, t + 6, t + 4)
        k("s_and_b32 s%d, s%d, 1", sT, sWv); k("s_lshl_b32 s%d, s%d, 4", sT, sT)
        k("s_lshr_b32 s%d, s%d, 1", sT + 1, sWv); k("s_lshl_b32 s%d, s%d, 2", sT + 1, sT + 1); k("s_add_u32 s%d, s%d, s%d", sT, sT, sT + 1)
        k("s_lshl_b32 s%d, s%d, 11", sT, sT); k("s_lshl_b32 s%d, s%d, 8", sT + 1, sNT2); k("s_add_u32 s%d, s%d, s%d", sT, sT, sT + 1)
        k("v_lshrrev_b32 v%d, 5, v0", t + 4); k("v_bfe_u32 v%d, v0, 3, 2", t + 5); k("v_lshl_add_u32 v%d, v%d, 3, v%d", t + 4, t + 4, t + 5)
        k("v_lshlrev_b32 v%d, 11, v%d", t + 4, t + 4)
        k("v_bfe_u32 v%d, v0, 1, 2", t + 5); k("v_xor_b32 v%d, v%d, v%d", t + 5, t + 5, vG)
        k("v_lshl_add_u32 v%d, v%d, 5, v%d", t + 4, t + 5, t + 4)
        k("v_and_b32 v%d, 1, v0", t + 5); k("v_lshl_add_u32 v%d, v%d, 4, v%d", t + 4, t + 5, t + 4)
        k("v_add_u32 v%d, s%d, v%d", t + 4, sT, t + 4)
        for b in range(4): k("v_add_u32 v%d, 0x%x, v%d", vG2w + b, 1024 + (b >> 1) * 65536 + (b & 1) * 128 - b * 1024, t + 4)

    XA, XB = 32, 48
    vP1x = 240
    def p1_addr(self):
        k = self.k
        k("v_lshlrev_b32 v%d, 3, v%d", self.vP1x, vI); k("v_lshl_add_u32 v%d, v%d, 9, v%d", self.vP1x, vG, self.vP1x)
    def p1_loads(self, src, fl_=None):
        k = self.k; X = self.XB if src else self.XA
        if fl_ is None: fl_ = self.LF
        k("s_lshl_b32 s%d, s%d, 20", sT, sWv); k("s_lshl_b32 s%d, s%d, 11", sT + 1, sN2); k("s_add_u32 s%d, s%d, s%d", sT, sT, sT + 1)
        if src: k("s_add_u32 s%d, s%d, 0x400000", sT, sT)
        for q in range(2):
            for j, r in enumerate((0, 2, 1, 3)):
                k("buffer_load_dwordx2 %s, v%d, s[%d:%d], s%d offen offset:%d%s", vr(X + 8 * q + 2 * j, 2), self.vP1x, sXS, sXS + 3, sT, r * 128, fl_)
            if q == 0: k("s_add_u32 s%d, s%d, 0x80000", sT, sT)
    def exch_addr(self, base, a):
        k = self.k
        k("s_lshl_b32 s%d, s%d, 9", sT, sWv)
        k("v_lshlrev_b32 v%d, 12, v%d", a + 2, vG); k("v_add_u32 v%d, 0x%x, v%d", a + 2, base, a + 2)
        k("v_lshl_add_u32 v%d, v%d, 4, s%d", a + 3, vI, sT)
        k("v_add_u32 v%d, v%d, v%d", a, a + 2, a + 3)
        k("v_sub_u32 v%d, v%d, v%d", a + 1, a + 2, a + 3); k("v_add_u32 v%d, %d, v%d", a + 1, (512 - 33) * 8, a + 1)
        k("v_cmp_eq_u32 vcc, 0, v%d", a + 3)
        k("v_add_u32 v%d, %d, v%d", a + 2, (256 - 33) * 8, a + 2)
        k("v_cndmask_b32 v%d, v%d, v%d, vcc", a + 2, a + 1, a + 2)
        k("v_lshlrev_b32 v%d, 3, v%d", a + 3, vI); k("v_lshl_add_u32 v%d, v%d, 9, v%d", a + 3, vG, a + 3)
        k("s_add_u32 s%d, s%d, 0x%x", sT, sM0, base); k("v_add_u32 v%d, s%d, v%d", a + 3, sT, a + 3)
    def p1_pre(self):
        k = self.k; T1 = 96
        for c in range(2):
            for r in range(4):
                k("v_lshl_add_u32 v%d, v%d, 3, %d", vT, vG, 2 * r + c); k("v_mul_u32_u24 v%d, v%d, v%d", vT, vT, vI)
                self.cs(T1 + 8 * c + r, T1 + 8 * c + 4 + r, vT, 1.0 / 512)
        self.exch_addr(L_P1, 241)
        k("v_cmp_eq_u32 vcc, 0, v%d", vI); k("v_cndmask_b32 v245, 0, 1.0, vcc")
        k("v_lshlrev_b32 v246, 12, v%d", vG); k("v_lshl_add_u32 v246, v%d, 4, v246", vI)
    def p1(self):
        k = self.k; XA, XB = self.XA, self.XB
        D, T1, T1s, O, B, E, tmp = 64, 96, 112, 144, 160, 192, 224
        def swaps(X):
            for q in range(2):
                k("v_swap_b32 v%d, v%d", X + 8 * q + 1, X + 8 * q + 4); k("v_swap_b32 v%d, v%d", X + 8 * q + 3, X + 8 * q + 6)
        self.mark("p1_loaded")
        swaps(XA)
        for l in range(4):
            for p in range(2): self.mf(D + (l * 2 + p) * 4, vr(XA + 4 * l), ar(aF + 4 * p))
        L = k.label("one")
        k("s_cmp_eq_u32 s%d, 0", sLay); k("s_cbranch_scc1 " + L)
        k("s_waitcnt vmcnt(0)")
        swaps(XB)
        for l in range(4):
            for p in range(2): self.mf(D + (l * 2 + p) * 4, vr(XB + 4 * l), ar(aF + 4 * p), D + (l * 2 + p) * 4)
        k(L + ":")
        t = O
        self.sums(D, t)
        k("v_mul_f32 v%d, v245, v%d", t, t); k("v_mul_f32 v%d, v245, v%d", t + 2, t + 2)
        self.reduce4(t, t + 2, t + 4, t + 6, 1.0 / (16 * 1024))
        k("v_rsq_f32 v%d, v%d", t + 4, t + 4)
        k("v_mov_b32 v252, v%d", t)
        k("v_mul_f32 v%d, %s, v%d", t, fl(-16.0), t); k("v_mul_f32 v%d, v%d, v%d", t, t, t + 4)
        for q in range(2):
            k("v_readlane_b32 s%d, v%d, %d", sK + 2 * q, t + 4, 16 * q); k("v_readlane_b32 s%d, v%d, %d", sK + 2 * q + 1, t, 16 * q)
        for q in range(2):
            for j in range(8): k("v_pk_mul_f32 %s, %s, s[%d:%d] op_sel_hi:[1,0]", vr(T1s + 16 * q + 2 * j, 2), vr(T1 + 2 * j, 2), sK + 2 * q, sK + 2 * q + 1)
            k("v_mul_f32 v%d, s%d, v245", 248 + 2 * q, sK + 2 * q + 1)
        for l in range(4):
            q, c = l >> 1, l & 1
            self.twiddle(D + l * 8, D + l * 8 + 4, T1s + 16 * q + 8 * c, T1s + 16 * q + 8 * c + 4, B + 8 * l, O + 4 * l, e=248 + 2 * q)
        def b(q, t_, p): return B + ((q * 2 + t_) * 2 + p) * 4
        for q in range(2):
            for p in range(2): self.mf(b(q, 0, p), ar(aF + 4 * p), vr(O + 8 * q))
        for q in range(2):
            for p in range(2): self.mf(b(q, 1, p), ar(aM1 + 8 + 4 * p), vr(O + 8 * q + 4), b(q, 0, p))
        for q in range(2):
            for p in range(2): self.mf(b(q, 0, p), ar(aM1 + 4 * p), vr(O + 8 * q + 4), b(q, 0, p))
        for t_ in (1, 0):
            for r in range(4):
                e = E + (t_ * 4 + r) * 2
                for q in range(2): k("v_cvt_pk_bf16_f32 v%d, v%d, v%d", e + q, b(q, t_, 0) + r, b(q, t_, 1) + r)
                k("ds_write_b64 v244, %s offset:%d", vr(e, 2), r * 128 + t_ * 2048)
        k("s_waitcnt lgkmcnt(0)"); k("s_barrier")
        for u in range(2): k("ds_read_b128 %s, v241 offset:%d", vr(O + 8 * u), u * 256)
        for u in range(2):
            for e in range(2): k("ds_read_b64 %s, v%d offset:%d", vr(O + 8 * u + 4 + 2 * e, 2), 243 if (u, e) == (0, 0) else 242, (33 - 32 * u - e) * 8)
        k("s_lshl_b32 s%d, s%d, 14", sT, sN2); k("s_lshl_b32 s%d, s%d, 9", sT + 1, sWv); k("s_add_u32 s%d, s%d, s%d", sT, sT, sT + 1)
        if U_OFF: k("s_add_u32 s%d, s%d, 0x%x", sT, sT, U_OFF)
        k("s_waitcnt lgkmcnt(4)")
        for u in range(2):
            for e in range(2): self.mf(D + (u * 4 + e) * 4, ar(aC, 2), vr(O + 8 * u + 2 * e, 2), kk=16)
        k("s_waitcnt lgkmcnt(0)")
        for u in range(2):
            for e in range(2): self.mf(D + (u * 4 + 2 + e) * 4, ar(aC + 2, 2), vr(O + 8 * u + 4 + 2 * e, 2), kk=16)
        for u in range(2):
            for p in range(2):
                e0 = E + (u * 2 + p) * 4
                for e in range(4): k("v_cvt_pk_bf16_f32 v%d, v%d, v%d", e0 + e, D + (u * 4 + e) * 4 + 2 * p, D + (u * 4 + e) * 4 + 2 * p + 1)
                k("buffer_store_dwordx4 %s, v246, s[%d:%d], s%d offen offset:%d%s", vr(e0), sWS, sWS + 3, sT, p * 2048 + u * 256, self.SF)
    def p2_pre(self):
        k = self.k; T2, CO = 64, 72
        for r in range(4):
            k("v_lshl_add_u32 v%d, v%d, 2, %d", vT, vG, r); k("v_mul_u32_u24 v%d, v%d, v%d", vT, vT, vI)
            self.cs(T2 + r, T2 + 4 + r, vT, 1.0 / 256)
        k("v_lshl_add_u32 v241, v%d, 6, v%d", vG, vI)
        k("v_lshlrev_b32 v240, 14, v241")
        k("v_bfe_u32 v242, v0, 1, 2"); k("v_xor_b32 v242, s%d, v242", sWv); k("v_lshlrev_b32 v242, 4, v242")
        k("v_lshl_add_u32 v241, v241, 6, v242"); k("v_add_u32 v241, 0x%x, v241", L_P2)
        k("v_bfe_u32 v242, v0, 3, 2"); k("v_xor_b32 v242, v0, v242"); k("v_lshlrev_b32 v242, 4, v242")
        k("s_add_u32 s%d, s%d, 0x%x", sT, sM0, L_P2); k("v_add_u32 v242, s%d, v242", sT)
    def p2_coef(self):
        k = self.k; T2, CO = 64, 72; WP = 152
        L = k.label("once")
        k("s_cmp_lg_u32 s%d, 0", sLay); k("s_cbranch_scc1 " + L)
        self.w_park()
        k(L + ":")
        k("s_lshl_b32 s%d, s%d, 2", sT, sWv); k("s_add_u32 s%d, s%d, 0x%x", sT + 1, sT, L_W); k("s_sub_u32 s%d, 0x%x, s%d", sT, L_W + 8192 + 12, sT)
        k("v_lshl_add_u32 v243, v0, 4, s%d", sT + 1); k("v_lshl_add_u32 v244, v0, 4, s%d", sT)
        for j in range(8):
            k("ds_read_b32 v%d, v243 offset:%d", WP + j, j * 1024); k("ds_read_b32 v%d, v244 offset:%d", WP + 8 + j, j * 1024)
        k("s_and_b32 s%d, s%d, 31", sT, sN2); k("s_lshl_b32 s%d, s%d, 3", sT, sT); k("s_lshl_b32 s%d, s%d, 1", sT + 1, sWv); k("s_add_u32 s%d, s%d, s%d", sT, sT, sT + 1)
        k("s_add_u32 s%d, s%d, 1", sT + 1, sT); k("s_cmp_eq_u32 s%d, 0", sT); k("s_cselect_b32 s%d, 256, s%d", sT, sT)
        NRM = 1.0 / (2048 * 512)
        W1, W2 = 120, 128
        for x in range(2):
            k("v_mov_b32 v%d, s%d", vT, sT + x)
            self.cs(vT + 1, vT + 3, vT, 1.0 / 1024)
            k("v_mul_f32 v%d, 0.5, v%d", vT + 1, vT + 1)
            k("v_fma_f32 v%d, v%d, -0.5, 0.5", vT + 3, vT + 3)
            if x == 0: k("s_waitcnt lgkmcnt(0)")
            for j in range(8):
                k("v_and_b32 v%d, 0xffff0000, v%d" % (W1 + j, WP + j) if x else "v_lshlrev_b32 v%d, 16, v%d" % (W1 + j, WP + j))
                k("v_lshlrev_b32 v%d, 16, v%d" % (W2 + j, WP + 8 + j) if x else "v_and_b32 v%d, 0xffff0000, v%d" % (W2 + j, WP + 8 + j))
            for j in range(8):
                k("v_mul_f32 v%d, %s, v%d", W1 + j, fl(NRM), W1 + j); k("v_mul_f32 v%d, %s, v%d", W2 + j, fl(-NRM if j >= 4 else NRM), W2 + j)
            c = CO + 24 * x
            for j in range(0, 8, 2):
                k("v_pk_add_f32 %s, %s, %s neg_lo:[0,1] neg_hi:[0,1]", vr(c + 16 + j, 2), vr(W1 + j, 2), vr(W2 + j, 2))
            for j in range(0, 8, 2):
                k("v_pk_fma_f32 %s, %s, %s, %s op_sel_hi:[1,0,1]", vr(c + j, 2), vr(c + 16 + j, 2), vr(vT + 3, 2), vr(W2 + j, 2))
                k("v_pk_fma_f32 %s, %s, %s, %s op_sel_hi:[1,0,1] neg_lo:[1,0,0] neg_hi:[1,0,0]", vr(c + 8 + j, 2), vr(c + 16 + j, 2), vr(vT + 3, 2), vr(W1 + j, 2))
                k("v_pk_mul_f32 %s, %s, %s op_sel_hi:[1,0]", vr(c + 16 + j, 2), vr(c + 16 + j, 2), vr(vT + 1, 2))
    def p2(self):
        k = self.k; T2, CO = 64, 72
        Lx, D, O, tmp = 136, 152, 184, 200
        k("s_lshl_b32 s%d, s%d, 6", sT, sN2); k("s_lshl_b32 s%d, s%d, 4", sT + 1, sWv); k("s_add_u32 s%d, s%d, s%d", sT, sT, sT + 1)
        if U_OFF: k("s_add_u32 s%d, s%d, 0x%x", sT, sT, U_OFF)
        for r in range(4):
            k("buffer_load_dwordx4 %s, v240, s[%d:%d], s%d offen%s", vr(Lx + 4 * r), sWS, sWS + 3, sT, self.LF)
            if r < 3: k("s_add_u32 s%d, s%d, 0x40000", sT, sT)
        n = self.pf(2)
        self.p2_coef()
        k("s_waitcnt vmcnt(%d)", n)
        self.mark("p2_loaded")
        for a in range(4):
            for b in range(a + 1, 4): k("v_swap_b32 v%d, v%d", Lx + 4 * a + b, Lx + 4 * b + a)
        for e in range(4):
            for p in range(2): self.mf(D + 8 * e + 4 * p, vr(Lx + 4 * e), ar(aF + 4 * p))
        for e in range(4): self.twiddle(D + 8 * e, D + 8 * e + 4, T2, T2 + 4, tmp + 8 * e, O + 4 * e)
        for e in (0, 2, 1, 3):
            for p in range(2): self.mf(D + 8 * e + 4 * p, ar(aF + 4 * p), vr(O + 4 * e))
        neg = " neg_lo:[1,0,0] neg_hi:[1,0,0]"
        for x in range(2):
            c = CO + 24 * x; Z = D + 8 * x; V = D + 8 * (2 + x); z = tmp + 8 * x; v = tmp + 8 * (2 + x)
            terms = [(z, [(c, Z, 0), (c + 4, Z + 4, 1), (c + 20, V, 1), (c + 16, V + 4, 1)]),
                     (z + 4, [(c, Z + 4, 0), (c + 4, Z, 0), (c + 16, V, 0), (c + 20, V + 4, 1)]),
                     (v, [(c + 8, V, 0), (c + 12, V + 4, 1), (c + 20, Z, 0), (c + 16, Z + 4, 0)]),
                     (v + 4, [(c + 8, V + 4, 0), (c + 12, V, 0), (c + 16, Z, 1), (c + 20, Z + 4, 0)])]
            for j in range(4):
                for h in (0, 2):
                    for d, tl in terms:
                        a, b, n = tl[j]
                        if j == 0: k("v_pk_mul_f32 %s, %s, %s", vr(d + h, 2), vr(a + h, 2), vr(b + h, 2))
                        else: k("v_pk_fma_f32 %s, %s, %s, %s%s", vr(d + h, 2), vr(a + h, 2), vr(b + h, 2), vr(d + h, 2), neg if n else "")
            for e in (x, 2 + x):
                for r in range(4): k("v_cvt_pk_bf16_f32 v%d, v%d, v%d", O + 4 * e + r, tmp + 8 * e + r, tmp + 8 * e + 4 + r)
        for e in (0, 2, 1, 3):
            for p in range(2): self.mf(D + 8 * e + 4 * p, vr(O + 4 * e), ar(aGm + 4 * p))
        for e in (0, 2, 1, 3): self.twiddle(D + 8 * e, D + 8 * e + 4, T2, T2 + 4, tmp + 8 * e, O + 4 * e, conj=True)
        for e in (0, 2, 1, 3):
            for p in range(2): self.mf(D + 8 * e + 4 * p, ar(aGm + 4 * p), vr(O + 4 * e))
        for r in range(4):
            for e in (0, 2, 1, 3): k("v_cvt_pk_bf16_f32 v%d, v%d, v%d", Lx + 4 * r + e, D + 8 * e + r, D + 8 * e + 4 + r)
            k("ds_write_b128 v241, %s offset:%d", vr(Lx + 4 * r), r * 1024)
        k("s_lshl_b32 s%d, s%d, 14", sT, sN2); k("s_add_u32 s%d, s%d, 0x%x", sT, sT, V_OFF)
        k("s_waitcnt lgkmcnt(0)"); k("s_barrier")
        for j in range(4): k("ds_read_b128 %s, v242 offset:%d", vr(O + 4 * j), j * 1024)
        for j in range(4):
            k("s_waitcnt lgkmcnt(%d)", 3 - j)
            k("buffer_store_dwordx4 %s, v%d, s[%d:%d], s%d offen offset:%d%s", vr(O + 4 * j), vG1x, sWS, sWS + 3, sT, j * 1024, self.SF)
    def p3_pre(self):
        k = self.k; T3, XI = 64, 80
        for c in range(2):
            for r in range(4):
                k("v_lshl_add_u32 v%d, v%d, 2, %d", vT, vG, r); k("v_lshl_add_u32 v%d, v%d, 1, %d", vT + 1, vI, c); k("v_mul_u32_u24 v%d, v%d, v%d", vT, vT, vT + 1)
                self.cs(T3 + 8 * c + r, T3 + 8 * c + 4 + r, vT, 1.0 / 512)
        for l in range(4):
            for r in range(4):
                k("v_lshlrev_b32 v%d, 16, v%d", XI + 8 * l + r, self.XA + 4 * l + r); k("v_and_b32 v%d, 0xffff0000, v%d", XI + 8 * l + 4 + r, self.XA + 4 * l + r)
        L = k.label("one")
        k("s_cmp_eq_u32 s%d, 0", sLay); k("s_cbranch_scc1 " + L)
        for l in range(4):
            for r in range(4):
                x = self.XB + 4 * l + r
                k("v_lshlrev_b32 v%d, 16, v%d", vT, x); k("v_and_b32 v%d, 0xffff0000, v%d", x, x)
                k("v_add_f32 v%d, v%d, v%d", XI + 8 * l + r, XI + 8 * l + r, vT); k("v_add_f32 v%d, v%d, v%d", XI + 8 * l + 4 + r, XI + 8 * l + 4 + r, x)
        k(L + ":")
        self.exch_addr(L_P3A, 241)
        k("v_add_u32 v245, 2048, v244")
        k("v_lshrrev_b32 v240, 2, v%d", vI); k("v_lshl_add_u32 v240, v%d, 6, v240", vG); k("v_lshlrev_b32 v240, 14, v240")
        k("v_and_b32 v246, 3, v0"); k("v_lshl_add_u32 v240, v246, 4, v240")
        k("s_mul_i32 s%d, s%d, 4224", sT, sWv); k("s_add_u32 s%d, s%d, 0x%x", sT, sT, L_P3B)
        k("v_lshlrev_b32 v246, 3, v%d", vI); k("v_lshl_add_u32 v246, v%d, 9, v246", vG); k("v_add_u32 v246, s%d, v246", sT)
        k("s_lshl_b32 s%d, s%d, 9", sT, sWv); k("s_add_u32 s%d, s%d, 0x%x", sT, sT, L_P3B)
        k("v_and_b32 v248, 7, v0"); k("v_mul_u32_u24 v247, 2112, v248"); k("v_lshrrev_b32 v249, 3, v0")
        k("v_lshl_add_u32 v247, v249, 4, v247"); k("v_add_u32 v247, s%d, v247", sT)
        k("v_lshlrev_b32 v248, 4, v248"); k("v_and_b32 v249, 3, v249"); k("v_lshl_add_u32 v248, v249, 8, v248")
        k("v_lshrrev_b32 v249, 5, v0"); k("v_lshl_add_u32 v248, v249, 14, v248")
        k("v_lshlrev_b32 v249, 3, v%d", vG)
    def p3(self, after_loads=None):
        k = self.k; T3, XI = 64, 80
        Lx, D, O, tmp = 112, 128, 160, 176
        k("s_lshl_b32 s%d, s%d, 6", sT, sN2); k("s_lshl_b32 s%d, s%d, 17", sT + 1, sWv); k("s_add_u32 s%d, s%d, s%d", sT, sT, sT + 1)
        k("s_add_u32 s%d, s%d, 0x%x", sT, sT, V_OFF)
        for u in range(2):
            for p in range(2):
                k("s_add_u32 s%d, s%d, 0x%x", sT + 1, sT, (32 * p + 4 * u) * 16384)
                k("buffer_load_dwordx4 %s, v240, s[%d:%d], s%d offen%s", vr(Lx + 8 * u + 4 * p), sWS, sWS + 3, sT + 1, self.LF)
        n = after_loads() if after_loads else 0
        k("s_waitcnt vmcnt(%d)", n)
        self.mark("p3_loaded")
        for u in range(2):
            b = Lx + 8 * u
            k("v_swap_b32 v%d, v%d", b + 1, b + 4); k("v_swap_b32 v%d, v%d", b + 3, b + 6)
        pos = {0: 0, 2: 2, 1: 4, 3: 6}
        for u in range(2):
            for e in range(4): self.mf(D + (u * 4 + e) * 4, ar(aCH + (2 if e >= 2 else 0), 2), vr(Lx + 8 * u + pos[e], 2), kk=16)
        for u in range(2):
            for e in range(4):
                d = D + (u * 4 + e) * 4
                for q in range(2): k("v_cvt_pk_bf16_f32 v%d, v%d, v%d", O + 8 * u + 2 * e + q, d + 2 * q, d + 2 * q + 1)
                if e == 1: k("ds_write_b128 v241, %s offset:%d", vr(O + 8 * u), u * 256)
                if e >= 2: k("ds_write_b64 v%d, %s offset:%d", 243 if (u, e) == (0, 2) else 242, vr(O + 8 * u + 2 * e, 2), (33 - 32 * u - (e - 2)) * 8)
        k("s_waitcnt lgkmcnt(0)"); k("s_barrier")
        for q in range(2):
            for t_ in range(2):
                for h in (0, 2): k("ds_read2_b32 %s, v%d offset0:%d offset1:%d", vr(Lx + (q * 2 + t_) * 4 + h, 2), 244 + t_, h * 32 + q, (h + 1) * 32 + q)
        for q in range(2):
            k("s_waitcnt lgkmcnt(%d)", 4 - 4 * q)
            for t_ in range(2):
                for c in range(2):
                    for p in range(2):
                        d = D + ((q * 2 + c) * 2 + p) * 4
                        m = aGm + 4 * p if c == 0 else aM1H + 8 * t_ + 4 * p
                        self.mf(d, vr(Lx + (q * 2 + t_) * 4), ar(m), d if t_ else "0")
        for l in range(4):
            c = l & 1
            self.twiddle(D + 8 * l, D + 8 * l + 4, T3 + 8 * c, T3 + 8 * c + 4, tmp + 8 * l, O + 4 * l, conj=True)
        for l in range(4):
            for p in range(2): self.mf(XI + 8 * l + 4 * p, ar(aGm + 4 * p), vr(O + 4 * l), XI + 8 * l + 4 * p)
        t = tmp
        self.sums(XI, t)
        self.reduce4(t, t + 2, t + 4, t + 6, 1.0 / 1024)
        k("v_rsq_f32 v%d, v%d", t + 2, t + 4)
        k("s_lshl_b32 s%d, s%d, 6", sT, sN2); k("s_lshl_b32 s%d, s%d, 4", sT + 1, sWv); k("s_add_u32 s%d, s%d, s%d", sT, sT, sT + 1)
        k("s_add_u32 s%d, s%d, 0x%x", sT, sT, ST_OFF)
        k("v_mul_f32 v253, v%d, v%d", t + 2, t + 4)
        k("v_mul_f32 v%d, -v%d, v%d", t + 3, t, t + 2)
        for q in range(2):
            k("v_readlane_b32 s%d, v%d, %d", sK + 2 * q, t + 2, 16 * q); k("v_readlane_b32 s%d, v%d, %d", sK + 2 * q + 1, t + 3, 16 * q)
        k("s_mov_b64 exec, 0x10001")
        k("buffer_store_dwordx2 v[252:253], v249, s[%d:%d], s%d offen%s", sWS, sWS + 3, sT, self.SF)
        setexec(k, 64)
        for q in range(2):
            for j in range(8):
                x = XI + 16 * q + 2 * j
                k("v_pk_fma_f32 %s, %s, s[%d:%d], s[%d:%d] op_sel:[0,0,1] op_sel_hi:[1,0,1]", vr(x, 2), vr(x, 2), sK + 2 * q, sK + 2 * q + 1, sK + 2 * q, sK + 2 * q + 1)
            for r in range(4):
                for c in range(2):
                    x = XI + 16 * q + 8 * c
                    k("v_cvt_pk_bf16_f32 v%d, v%d, v%d", O + 8 * q + 2 * r + c, x + r, x + 4 + r)
                k("ds_write_b64 v246, %s offset:%d", vr(O + 8 * q + 2 * r, 2), q * 2112 + r * 128)
        k("s_lshr_b32 s%d, s%d, 5", sT, sN2); k("s_lshl_b32 s%d, s%d, 19", sT, sT); k("s_lshl_b32 s%d, s%d, 17", sT + 1, sWv); k("s_add_u32 s%d, s%d, s%d", sT, sT, sT + 1)
        k("s_bfe_u32 s%d, s%d, 0x40001", sT + 1, sN2); k("s_lshl_b32 s%d, s%d, 10", sT + 1, sT + 1); k("s_add_u32 s%d, s%d, s%d", sT, sT, sT + 1)
        k("s_and_b32 s%d, s%d, 1", sT + 1, sN2); k("s_lshl_b32 s%d, s%d, 7", sT + 1, sT + 1); k("s_add_u32 s%d, s%d, s%d", sT, sT, sT + 1)
        k("s_add_u32 s%d, s%d, 0x%x", sT, sT, XL_OFF)
        k("s_waitcnt lgkmcnt(0)"); k("s_barrier")
        for j in range(4): k("ds_read_b128 %s, v247 offset:%d", vr(D + 4 * j), j * 128)
        for j in range(4):
            k("s_waitcnt lgkmcnt(%d)", 3 - j)
            k("buffer_store_dwordx4 %s, v248, s[%d:%d], s%d offen%s", vr(D + 4 * j), sWS, sWS + 3, sT, self.SF)
            if j < 3: k("s_add_u32 s%d, s%d, 0x8000", sT, sT)
    def g1_wdma(self, slot):
        o = ["s_add_u32 m0, s%d, 0x%x" % (sM0, L_G1 + slot * 16384)]
        for m in range(2):
            for j in range(2):
                s = sU if m else sG
                o.append("buffer_load_dwordx4 v%d, s[%d:%d], s%d offen offset:%d lds" % (vG1w + j, s, s + 3, sOw, m * 2048 + j * 1024))
        o.append("s_add_u32 s%d, s%d, %d" % (sOw, sOw, 32 * 7168))
        return o
    def g2_wdma(self, slot):
        o = ["s_add_u32 m0, s%d, 0x%x" % (sM0, L_G2 + slot * 16384)]
        for b in range(4):
            o.append("buffer_load_dwordx4 v%d, s[%d:%d], s%d offen offset:%d lds" % (vG2w + b, sD, sD + 3, sOd, b * 1024))
        o.append("s_add_u32 s%d, s%d, %d" % (sOd, sOd, 2 * 65536))
        return o
    def g1_prefetch(self):
        k = self.k
        k("s_mov_b32 s%d, 0", sOw)
        for s in range(4):
            for x in self.g1_wdma(s): k(x)
        return 16 + self.pf(3)
    def gemm_loop(self, NT, R, XD, wdma, xld, reads, mfmas, place, tail_extra=None):
        k = self.k; log = []
        for s in range(XD - 1):
            for x in xld(s): k(x)
            log += [("X", s)] * 4
        def need(tags):
            last = max([i for i, t in enumerate(log) if t in tags] + [-1])
            return min(63, len(log) - 1 - last)
        def step(t, emit=True):
            p = t & 1
            vm = need([("W", t + 1), ("X", t)])
            do_read = t < NT - 1
            rd = reads((t + 1) % R, 1 - p) if do_read else []
            dm = []
            if t + R < NT: dm += wdma(t % R); log.extend([("W", t + R)] * 4)
            elif tail_extra: dm += tail_extra(t + R - NT); log.extend([("E", t)] * 4)
            if t + XD - 1 < NT: dm += xld((t + XD - 1) % XD); log.extend([("X", t + XD - 1)] * 4)
            if not emit: return vm
            k("s_waitcnt vmcnt(%d) lgkmcnt(0)" % vm)
            if do_read: k("s_barrier")
            mf = mfmas(p, t % XD)
            slots = place(len(mf), rd, dm)
            for m, f in zip(mf, slots):
                k(m)
                for x in f: k(x)
            return vm
        U = R * XD // math.gcd(R, XD)
        if U % 2: U *= 2
        nloop = (NT - max(R, XD - 1)) // U
        save = list(log); vms = [step(tt, emit=False) for tt in range(nloop * U)]
        endlog = list(log); log[:] = save
        k("s_mov_b32 s%d, %d", sIt, nloop)
        L = k.label("loop")
        k(".p2align 6"); k(L + ":")
        for u in range(U):
            i = len(k.lines); step(u)
            k.lines[i] = "    s_waitcnt vmcnt(%d) lgkmcnt(0)" % min(vms[u::U])
        log[:] = endlog
        k("s_sub_u32 s%d, s%d, 1", sIt, sIt); k("s_cmp_lg_u32 s%d, 0", sIt); k("s_cbranch_scc1 " + L)
        for t in range(nloop * U, NT): step(t)
    ACC = 32
    def g1_acc(self, ft, m, st): return self.ACC + ((ft * 2 + m) * 4 + st) * 4
    def g1_reads(self, slot, p):
        o = []
        for ft in range(7):
            for m in range(2):
                for h in range(2):
                    r = p * 56 + (ft * 2 + m) * 4 + 2 * h
                    o.append("ds_read_b64_tr_b16 %s, v%d offset:%d" % (ar(r, 2), vG1r, slot * 16384 + h * 8192 + m * 2048 + ft * 32))
        return o
    def g1_pre(self):
        k = self.k
        for x in self.g1_reads(0, 0): k(x)
        for i in range(0, 224, 2): k("v_mov_b64 %s, 0", vr(self.ACC + i, 2))
        k("s_lshl_b32 s%d, s%d, 19", sOx, sMT); k("s_add_u32 s%d, s%d, 0x%x", sOx, sOx, XL_OFF)
        k("s_mul_i32 s%d, s%d, %d", sOd, sKH, 1792 * 2048)
    def g1(self):
        k = self.k; o = self.opt
        def xf(p, st): return 112 + p * 16 + st * 4
        def xld(p):
            return ["buffer_load_dwordx4 %s, v%d, s[%d:%d], s%d offen offset:%d%s" % (ar(xf(p, j)), vG1x, sWS, sWS + 3, sOx, j * 1024, self.LF) for j in range(4)] + \
                   ["s_add_u32 s%d, s%d, 0x4000" % (sOx, sOx)]
        def mfmas(p, px):
            r = []
            for a_ in range(14):
                for b in range(4):
                    st = b if a_ % 2 == 0 else 3 - b
                    a = self.g1_acc(a_ // 2, a_ % 2, st)
                    r.append("v_mfma_f32_16x16x32_bf16 %s, %s, %s, %s" % (vr(a), ar(p * 56 + a_ * 4), ar(xf(px, st)), vr(a)))
            return r
        def place(n, rd, dm):
            slots = [[] for _ in range(n)]; used = set(); pos = 1
            for x in dm:
                if x.startswith("buffer"): slots[pos].append(x); used.add(pos); pos += 6
                else: slots[pos - 1].append(x)
            pos = 0
            for x in rd:
                while pos in used: pos += 1
                slots[pos].append(x); pos += 1
            return slots
        self.gemm_loop(32, 4, 4, self.g1_wdma, xld, self.g1_reads, mfmas, place, tail_extra=self.g2_wdma)
        self.mark("g1_loop")
        self.resid_loads()
        k("v_lshlrev_b32 v%d, 4, v0", vT)
        k("s_lshl_b32 s%d, s%d, 2", sT, sMT); k("s_add_u32 s%d, s%d, s%d", sT, sT, sWv); k("s_mul_i32 s%d, s%d, 448", sT, sT)
        k("s_mul_i32 s%d, s%d, 7", sT + 1, sNT); k("s_add_u32 s%d, s%d, s%d", sT, sT, sT + 1)
        k("s_lshl_b32 s%d, s%d, 10", sT, sT); k("s_add_u32 s%d, s%d, 0x%x", sT, sT, H_OFF)
        k("s_add_u32 s%d, s%d, %d", sT + 1, sT, 224 * 1024)
        for ft in range(7):
            for pr in range(2):
                for q in range(2):
                    g = self.g1_acc(ft, 0, 2 * pr + q); u = self.g1_acc(ft, 1, 2 * pr + q)
                    for h in (0, 2): k("v_pk_mul_f32 %s, %s, %s", vr(g + h, 2), vr(g + h, 2), vr(u + h, 2))
            for pr in range(2):
                t4 = self.g1_acc(ft, 1, 2 * pr)
                for q in range(2):
                    g = self.g1_acc(ft, 0, 2 * pr + q)
                    for h in (0, 1): k("v_cvt_pk_bf16_f32 v%d, v%d, v%d", t4 + 2 * q + h, g + 2 * h, g + 2 * h + 1)
            for pr in range(2):
                t4 = self.g1_acc(ft, 1, 2 * pr)
                k("v_permlane16_swap_b32 v%d, v%d", t4, t4 + 2); k("v_permlane16_swap_b32 v%d, v%d", t4 + 1, t4 + 3)
                k("buffer_store_dwordx4 %s, v%d, s[%d:%d], s%d offen offset:%d%s", vr(t4), vT, sWS, sWS + 3, sT + pr, (ft % 4) * 1024, self.SF)
            if ft == 3: k("s_add_u32 s%d, s%d, 4096", sT, sT); k("s_add_u32 s%d, s%d, 4096", sT + 1, sT + 1)
    def g2_acc(self, t, st): return self.ACC + (t * 2 + st) * 4
    def g2_wf(self, p, kk, t): return 96 + ((p * 2 + kk) * 8 + t) * 4
    def g2_reads(self, slot, p):
        o = []
        for kk in range(2):
            for t in range(8):
                for h in range(2):
                    o.append("ds_read_b64_tr_b16 %s, v%d offset:%d" % (vr(self.g2_wf(p, kk, t) + 2 * h, 2), vG2r + (t & 3), slot * 16384 + h * 8192 + kk * 2048 + (t >> 2) * 1024))
        return o
    def g2_pre(self):
        k = self.k
        for x in self.g2_reads(0, 0): k(x)
        k("s_lshl_b32 s%d, s%d, 2", sT, sMT2); k("s_add_u32 s%d, s%d, s%d", sT, sT, sWv)
        k("s_lshl_b32 s%d, s%d, 1", sT, sT); k("s_add_u32 s%d, s%d, s%d", sT, sT, sKH)
        k("s_mul_i32 s%d, s%d, %d", sOh, sT, 112 * 1024); k("s_add_u32 s%d, s%d, 0x%x", sOh, sOh, H_OFF)
        for t in range(8):
            for st in range(2):
                a = self.g2_acc(t, st); r = 64 + (t * 2 + st) * 2; mu = vT + 5 + 2 * st
                k("v_accvgpr_read_b32 v%d, a%d", a + 1, r); k("v_accvgpr_read_b32 v%d, a%d", a + 3, r + 1)
                k("v_lshlrev_b32 v%d, 16, v%d", a, a + 1); k("v_and_b32 v%d, 0xffff0000, v%d", a + 1, a + 1)
                k("v_lshlrev_b32 v%d, 16, v%d", a + 2, a + 3); k("v_and_b32 v%d, 0xffff0000, v%d", a + 3, a + 3)
                for h in (0, 2): k("v_pk_fma_f32 %s, %s, %s, %s op_sel:[0,1,0] op_sel_hi:[1,1,0]", vr(a + h, 2), vr(a + h, 2), vr(mu, 2), vr(mu, 2))
    def resid_loads(self):
        k = self.k
        k("v_lshrrev_b32 v%d, 1, v%d", vT + 2, vG); k("v_lshlrev_b32 v%d, 8, v%d", vT + 2, vT + 2); k("v_lshl_add_u32 v%d, v%d, 4, v%d", vT + 2, vI, vT + 2)
        k("v_and_b32 v%d, 1, v%d", vT + 3, vG); k("v_lshl_add_u32 v%d, v%d, 3, v%d", vT + 2, vT + 3, vT + 2)
        k("s_cmp_eq_u32 s%d, 0", sKH); k("s_cselect_b32 s%d, 0, 0x80000000", sT)
        k("v_or_b32 v%d, s%d, v%d", vT + 2, sT, vT + 2)
        k("v_lshlrev_b32 v%d, 3, v%d", vT + 3, vI); k("v_or_b32 v%d, s%d, v%d", vT + 3, sT, vT + 3)
        k("s_lshl_b32 s%d, s%d, 2", sT, sMT2); k("s_add_u32 s%d, s%d, s%d", sT, sT, sWv); k("s_lshl_b32 s%d, s%d, 8", sT, sT); k("s_add_u32 s%d, s%d, 0x%x", sT, sT, ST_OFF)
        for st in range(2): k("buffer_load_dwordx2 %s, v%d, s[%d:%d], s%d offen offset:%d%s", vr(vT + 5 + 2 * st, 2), vT + 3, sWS, sWS + 3, sT, st * 128, self.LF)
        k("s_lshl_b32 s%d, s%d, 5", sT, sMT); k("s_lshl_b32 s%d, s%d, 2", sT + 1, sNT2); k("s_add_u32 s%d, s%d, s%d", sT, sT, sT + 1)
        k("s_lshl_b32 s%d, s%d, 4", sT, sT); k("s_and_b32 s%d, s%d, 1", sT + 1, sMT2); k("s_lshl_b32 s%d, s%d, 3", sT + 1, sT + 1); k("s_add_u32 s%d, s%d, s%d", sT, sT, sT + 1)
        k("s_lshl_b32 s%d, s%d, 1", sT + 1, sWv); k("s_add_u32 s%d, s%d, s%d", sT, sT, sT + 1); k("s_lshl_b32 s%d, s%d, 10", sT, sT)
        k("s_add_u32 s%d, s%d, 0x%x", sT, sT, XL_OFF)
        for t in range(8):
            for st in range(2):
                k("buffer_load_dwordx2 %s, v%d, s[%d:%d], s%d offen offset:%d%s", ar(64 + (t * 2 + st) * 2, 2), vT + 2, sWS, sWS + 3, sT, (t & 1) * 512 + st * 1024, self.LF)
            if t % 2 == 1 and t < 7: k("s_add_u32 s%d, s%d, 16384", sT, sT)
    def g2(self):
        k = self.k; RT = 224
        def hf(p, kk, st): return ((p * 2 + kk) * 2 + st) * 4
        def hld(p):
            return ["buffer_load_dwordx4 %s, v%d, s[%d:%d], s%d offen offset:%d%s" % (ar(hf(p, kk, st)), vG2h, sWS, sWS + 3, sOh, kk * 2048 + st * 256, self.LF)
                    for kk in range(2) for st in range(2)] + ["s_add_u32 s%d, s%d, 4096" % (sOh, sOh)]
        def mfmas(p, ph):
            r = []
            for kk in range(2):
                for t in range(8):
                    for st in ((0, 1) if t % 2 == 0 else (1, 0)):
                        a = self.g2_acc(t, st)
                        r.append("v_mfma_f32_16x16x32_bf16 %s, %s, %s, %s" % (vr(a), vr(self.g2_wf(p, kk, t)), ar(hf(ph, kk, st)), vr(a)))
            return r
        def place(n, rd, dm):
            slots = [[] for _ in range(n)]
            for i, x in enumerate(rd): slots[i * 26 // len(rd)].append(x)
            nb = max(1, len([x for x in dm if x.startswith("buffer")])); j = 0
            for x in dm:
                pos = min(n - 1, 1 + j * (n - 1) // nb)
                if x.startswith("buffer"): slots[pos].append(x); j += 1
                elif x.startswith("s_add_u32 m0"): slots[pos - 1].insert(0, x)
                else: slots[min(n - 1, 1 + (j - 1) * (n - 1) // nb)].append(x)
            return slots
        self.gemm_loop(28, 4, 4, self.g2_wdma, hld, self.g2_reads, mfmas, place)
        self.mark("g2_loop")
        P = 272
        k("v_mul_u32_u24 v%d, %d, v%d", vT, P, vI); k("v_lshl_add_u32 v%d, v%d, 3, v%d", vT, vG, vT)
        k("s_mul_i32 s%d, s%d, %d", sT, sWv, 32 * P)
        k("v_add_u32 v%d, s%d, v%d", vT, sT, vT)
        k("v_mul_u32_u24 v%d, %d, v%d", vT + 1, P, vG); k("v_lshl_add_u32 v%d, v%d, 4, v%d", vT + 1, vI, vT + 1); k("v_add_u32 v%d, s%d, v%d", vT + 1, sT, vT + 1)
        k("v_lshlrev_b32 v%d, 19, v%d", vT + 2, vG); k("v_lshl_add_u32 v%d, v%d, 4, v%d", vT + 2, vI, vT + 2)
        k("v_add_u32 v%d, 0x200000, v%d", vT + 3, vT + 2)
        k("s_lshl_b32 s%d, s%d, 2", sT, sMT2); k("s_add_u32 s%d, s%d, s%d", sT, sT, sWv); k("s_lshl_b32 s%d, s%d, 13", sT, sT)
        k("s_lshl_b32 s%d, s%d, 8", sT + 1, sNT2); k("s_add_u32 s%d, s%d, s%d", sT, sT, sT + 1)
        k("s_lshl_b32 s%d, s%d, 22", sT + 1, sKH); k("s_add_u32 s%d, s%d, s%d", sT, sT, sT + 1)
        k("s_add_u32 s%d, s%d, 0x%x", sT, sT, PART_OFF)
        for st in range(2):
            for t in range(8):
                a = self.g2_acc(t, st)
                k("v_cvt_pk_bf16_f32 v%d, v%d, v%d", a, a, a + 1); k("v_cvt_pk_bf16_f32 v%d, v%d, v%d", a + 1, a + 2, a + 3)
                k("ds_write_b64 v%d, %s offset:%d", vT, vr(a, 2), st * 16 * P + t * 32)
            for j in range(4 * st, 4 * st + 4): k("ds_read_b128 %s, v%d offset:%d", vr(96 + 4 * j), vT + 1, j * 4 * P)
            for j in range(4 * st, 4 * st + 4):
                k("s_waitcnt lgkmcnt(%d)", 3 - j % 4)
                k("buffer_store_dwordx4 %s, v%d, s[%d:%d], s%d offen offset:%d%s", vr(96 + 4 * j), vT + 2 + (j & 1), sWS, sWS + 3, sT, ((j >> 1) % 2) * 2048, self.SF)
            if st == 0: k("s_add_u32 s%d, s%d, 4096", sT, sT)
    def final(self):
        k = self.k
        k("v_lshlrev_b32 v%d, 4, v0", vT)
        k("s_lshl_b32 s%d, s%d, 20", sT, sWv); k("s_lshl_b32 s%d, s%d, 11", sT + 1, sN2); k("s_add_u32 s%d, s%d, s%d", sT, sT, sT + 1)
        k("s_add_u32 s%d, s%d, 0x80000", sT + 1, sT)
        k("s_add_u32 s%d, s%d, 0x400000", sT + 2, sT); k("s_add_u32 s%d, s%d, 0x480000", sT + 3, sT)
        for q in range(2):
            for h in range(2):
                for s in range(2):
                    k("buffer_load_dwordx4 %s, v%d, s[%d:%d], s%d offen offset:%d%s", vr(32 + ((q * 2 + h) * 2 + s) * 4), vT, sXS, sXS + 3, sT + 2 * s + q, h * 1024, self.LF)
        for q in range(2):
            for h in range(2):
                a = 32 + (q * 2 + h) * 8; b = a + 4
                k("s_waitcnt vmcnt(%d)", 6 - (q * 2 + h))
                for j in range(4):
                    k("v_lshlrev_b32 v64, 16, v%d", a + j); k("v_and_b32 v65, 0xffff0000, v%d", a + j)
                    k("v_lshlrev_b32 v66, 16, v%d", b + j); k("v_and_b32 v67, 0xffff0000, v%d", b + j)
                    k("v_pk_add_f32 v[64:65], v[64:65], v[66:67]")
                    k("v_cvt_pk_bf16_f32 v%d, v64, v65", a + j)
                k("buffer_store_dwordx4 %s, v%d, s[%d:%d], s%d offen offset:%d", vr(a), vT, sOUT, sOUT + 3, sT + q, h * 1024)
    def flag(self, s, off, sgrp=None):
        k = self.k
        k("s_add_u32 s%d, s%d, 0x%x", s, sFo, off)
        if sgrp is not None: k("s_lshl_b32 s%d, s%d, 11", sgrp, sgrp); k("s_add_u32 s%d, s%d, s%d", s, s, sgrp)
    def build(self):
        k = self.k; o = self.opt
        stop = o.get("stop")
        def stopat(n):
            if stop == n: k("s_branch L_fin")
        S1, R1 = 16, 16; S3, R3 = 2, 4; S4, R4 = 1, 2; S5, R5 = 1, 2
        self.prologue()
        k("L_layer:")
        self.p1_addr(); self.p1_pre()
        k("s_cmp_lg_u32 s%d, 0", sLay); k("s_cbranch_scc1 L_p1b")
        k("s_waitcnt vmcnt(%d)", 1 + (o.get("wtouch", 1) == 0) + self.npf0)
        if o.get("wtouch", 1) == 1: self.w_touch()
        self.pf(1)
        k("s_branch L_p1")
        k("L_p1b:")
        k("s_lshr_b32 s%d, s%d, 4", sT + 1, sN2); self.flag(sT, FL_B5 - FL_LSTRIDE & 0xffffffff, sT + 1)
        k("s_and_b32 s%d, s%d, %d", sT + 1, sN2, R5 - 1)
        self.wait(sT, S5, sT + 1, 16 // S5)
        self.mark("b5")
        k("s_cmp_eq_u32 s%d, 2", sLay); k("s_cbranch_scc1 L_final")
        self.p1_loads(0); self.p1_loads(1)
        k("s_waitcnt vmcnt(8)")
        k("L_p1:")
        self.p1()
        self.mark("p1_st")
        L = k.label("clr"); LP = k.label("clrp")
        k("s_or_b32 s%d, s%d, s%d", sT, sLay, sWv); k("s_cmp_lg_u32 s%d, 0", sT); k("s_cbranch_scc1 " + L)
        k("v_mov_b32 v%d, 0", vT); k("s_mov_b32 s%d, 0", sT)
        k(LP + ":")
        k("global_load_dword v%d, v%d, s[76:77] sc1", vT + 1, vT)
        k("s_add_u32 s%d, s%d, 1", sT, sT); k("s_cmp_ge_u32 s%d, 0x40000", sT); k("s_cbranch_scc1 " + L)
        k("s_waitcnt vmcnt(0)")
        k("v_cmp_ne_u32 vcc, 1, v%d", vT + 1); k("s_cbranch_vccnz " + LP)
        k(L + ":")
        self.mark("p1_done")
        self.flag(sT, FL_B1); k("s_lshr_b32 s%d, s2, 4", sT + 1)
        self.arrive(sT, S1, R1, sT + 1)
        self.mark("a1")
        stopat(1)
        L = k.label("once"); L2 = k.label("nsp")
        k("s_cmp_lg_u32 s%d, 0", sLay); k("s_cbranch_scc1 " + L)
        self.w_loads(False)
        k("s_cmp_ge_u32 s2, 8"); k("s_cbranch_scc1 " + L2)
        self.w_loads(True)
        k(L2 + ":")
        self.g_addr()
        k(L + ":")
        self.p2_pre()
        L = k.label("w0")
        k("s_cmp_eq_u32 s%d, 0", sWv); k("s_cbranch_scc1 " + L)
        k("s_waitcnt vmcnt(0)")
        k(L + ":")
        self.pf("1s")
        self.flag(sT, FL_B1); k("s_and_b32 s%d, s2, %d", sT + 1, R1 - 1)
        self.wait(sT, S1, sT + 1, 256 // S1)
        self.mark("b1")
        self.p2()
        self.mark("p2_done")
        self.flag(sT, FL_B2); k("s_lshr_b32 s%d, s2, 4", sT + 1)
        self.arrive(sT, S1, R1, sT + 1)
        self.mark("a2")
        stopat(2)
        self.pf("2s")
        L = k.label("once")
        k("s_cmp_lg_u32 s%d, 0", sLay); k("s_cbranch_scc1 " + L)
        self.consts(True)
        k(L + ":")
        self.p3_pre()
        self.flag(sT, FL_B2); k("s_and_b32 s%d, s2, %d", sT + 1, R1 - 1)
        self.wait(sT, S1, sT + 1, 256 // S1)
        self.mark("b2")
        self.p3(self.g1_prefetch)
        self.mark("p3_done")
        k("s_lshr_b32 s%d, s%d, 5", sT + 1, sN2); self.flag(sT, FL_B3, sT + 1); k("s_and_b32 s%d, s%d, %d", sT + 1, sN2, S3 - 1)
        self.arrive(sT, S3, R3, sT + 1)
        self.mark("a3")
        stopat(3)
        self.pf("3s")
        self.g1_pre()
        k("s_mov_b32 s%d, s%d", sT + 1, sMT); self.flag(sT, FL_B3, sT + 1); k("s_and_b32 s%d, s%d, %d", sT + 1, sNT, R3 - 1)
        self.wait(sT, S3, sT + 1, 32 // S3)
        self.mark("b3")
        self.g1()
        self.mark("g1_done")
        k("s_lshr_b32 s%d, s%d, 4", sT + 1, sNT); k("s_lshl_b32 s%d, s%d, 1", sT + 2, sMT); k("s_add_u32 s%d, s%d, s%d", sT + 1, sT + 1, sT + 2)
        self.flag(sT, FL_B4, sT + 1)
        self.arrive(sT, S4, R4, None)
        self.mark("a4")
        stopat(4)
        self.g2_pre()
        k("s_and_b32 s%d, s%d, 14", sT + 1, sMT2); k("s_add_u32 s%d, s%d, s%d", sT + 1, sT + 1, sKH)
        self.flag(sT, FL_B4, sT + 1); k("s_and_b32 s%d, s%d, %d", sT + 1, sNT2, R4 - 1)
        self.wait(sT, S4, sT + 1, 16 // S4)
        self.mark("b4")
        self.g2()
        self.mark("g2_done")
        k("s_mov_b32 s%d, s%d", sT + 1, sMT2); self.flag(sT, FL_B5, sT + 1)
        self.arrive(sT, S5, R5, None)
        self.mark("a5")
        stopat(5)
        k("s_add_u32 s%d, s%d, 0x%x", sXS, sWS, PART_OFF); k("s_addc_u32 s%d, s%d, 0", sXS + 1, sWS + 1); k("s_mov_b32 s%d, 0x800000", sXS + 2)
        k("s_add_u32 s%d, s%d, 0x%x", sWS, sWS, LSTRIDE); k("s_addc_u32 s%d, s%d, 0", sWS + 1, sWS + 1)
        k("s_add_u32 s%d, s%d, 0x%x", sFo, sFo, FL_LSTRIDE)
        k("s_cmp_eq_u32 s%d, 0", sLay); k("s_cselect_b32 s%d, 1, 2", sLay)
        k("s_cbranch_scc0 L_p1b")
        k("s_branch L_layer")
        k("L_final:")
        self.final()
        k("L_fin:")
        if o.get("stamp"):
            k("s_waitcnt vmcnt(0)")
            k("s_mov_b32 s%d, 1", sLay); self.nmark = 31; self.mark("end")
            srd(k, sTM, 78, 1 << 20, 240 << 20)
            k("s_lshl_b32 s%d, s2, 10", sT); k("s_lshl_b32 s%d, s%d, 8", sT + 1, sWv); k("s_add_u32 s%d, s%d, s%d", sT, sT, sT + 1)
            k("v_lshlrev_b32 v%d, 2, v0", vT)
            k("buffer_store_dword v31, v%d, s[%d:%d], s%d offen", vT, sTM, sTM + 3, sT)
        k("L_end:")
        k("s_endpgm")
        k.lines = hazard.fix(k.lines)
        return k

HEADER = open("interleave_layers__spectral_gfnet__glu_gated_bilinear__prompt.s.ref").read().split("; Override")[0]
def generate(path, opt):
    g = Gen(opt); k = g.build()
    o = [HEADER.rstrip("\n")]
    if opt.get("stamp"): o.append("; marks " + repr(g.marknames))
    o.append("; @launch grid=(256,1,1) block=(256,1,1) lds=%d" % LDS_BYTES)
    o += ['.amdgcn_target "amdgcn-amd-amdhsa--gfx950"', ".text", k.text(), '.section .rodata,"a"', k.desc()]
    open(path, "w").write("\n".join(o))
if __name__ == "__main__":
    generate(sys.argv[1], eval(sys.argv[2]) if len(sys.argv) > 2 else {})
```

```python
import sys, math
sys.path.insert(0, "tools")
from asmgen import *
import hazard
KNAME = "interleave_layers__spectral_gfnet__glu_gated_bilinear__prompt_kernel"
U_OFF, V_OFF, XL_OFF, PART_OFF, H_OFF, ST_OFF = 0x0, 0x400000, 0x800000, 0xC00000, 0x1400000, 0x2200000
LSTRIDE = 0x2400000
FL_OFF = 2 * LSTRIDE
FL_B1, FL_B2, FL_B3, FL_B4, FL_B5, FL_LSTRIDE = 0, 0x8000, 0x10000, 0x14000, 0x1C000, 0x24000
L_G1, L_G2 = 0, 0x10000
L_P1, L_P2, L_P3A, L_P3B = 0x10000, 0x14000, 0x18000, 0x1C000
L_W = 0x20400
L_W2 = L_W + 0x4000
LDS_BYTES = L_W2 + 0x800
sWS, sXS, sG, sU, sD, sOUT, sFL, sTM = 4, 8, 12, 16, 20, 24, 28, 32
sN2, sWv, sLay = 40, 41, 42
sMT, sNT, sMT2, sNT2, sKH = 43, 44, 45, 46, 47
sFo = 48
sOx, sOw, sOh, sOd, sM0, sIt = 49, 50, 51, 52, 53, 54
sT = 56
sK = 84
vL, vI, vG = 0, 1, 2
vG1r, vG1x, vG1w = 3, 4, 5
vG2r, vG2w, vG2h = 7, 11, 15
vL128 = 16
vT = 17
aF, aGm, aM1, aM1H, aC, aCH, aW = 176, 184, 192, 208, 224, 228, 232
EPS = 1e-5
import struct
def fl(x): return "0x%x" % struct.unpack("<I", struct.pack("<f", x))[0]
def vr(b, n=4): return "v[%d:%d]" % (b, b + n - 1)
def ar(b, n=4): return "a[%d:%d]" % (b, b + n - 1)
def setexec(k, n):
    if n == 64: k("s_mov_b64 exec, -1"); return
    m = (1 << n) - 1
    k("s_mov_b32 exec_lo, 0x%x" % (m & 0xffffffff)); k("s_mov_b32 exec_hi, 0x%x" % (m >> 32))

class Gen:
    def __init__(self, opt):
        self.opt = opt
        self.k = Kern(KNAME, vgprs=256, agprs=256, sgprs=102)
        self.nmark = 0
        self.SF = " sc1"
        self.LF = opt.get("lf", " sc1")
    def mark(self, name):
        pad = self.opt.get("padat")
        if pad:
            k = self.k
            if name == "start": k("s_memrealtime s[100:101]"); k("s_waitcnt lgkmcnt(0)")
            if name == pad[0]:
                L = k.label("pad"); LX = k.label("padx")
                k("s_cmp_lg_u32 s%d, %d", sLay, pad[1]); k("s_cbranch_scc1 " + LX)
                k(L + ":"); k("s_memrealtime s[96:97]"); k("s_waitcnt lgkmcnt(0)")
                k("s_sub_u32 s96, s96, s100"); k("s_cmp_lt_u32 s96, %d", int(pad[2] * 100)); k("s_cbranch_scc1 " + L)
                k(LX + ":")
        if not self.opt.get("stamp"): return
        k = self.k; i = self.nmark; self.nmark += 1
        self.marknames = getattr(self, "marknames", []) + [name]
        k("s_memrealtime s[96:97]"); k("s_waitcnt lgkmcnt(0)")
        k("s_lshl_b32 s98, s%d, 5", sLay); k("s_add_u32 s98, s98, %d", i); k("s_and_b32 m0, s98, 63")
        k("s_nop 0"); k("v_writelane_b32 v31, s96, m0")
    def cs(self, dc, ds, vint, scale, add=None):
        k = self.k; t = vT + 13
        k("v_cvt_f32_u32 v%d, v%d", t, vint)
        k("v_mul_f32 v%d, %s, v%d", t, fl(scale), t)
        if add is not None: k("v_add_f32 v%d, v%d, v%d", t, add, t)
        k("v_fract_f32 v%d, v%d", t, t)
        k("v_cos_f32 v%d, v%d", dc, t); k("v_sin_f32 v%d, v%d", ds, t)
    def pack_to_a(self, a, lo, hi, neglo=False, neghi=False):
        k = self.k; t = vT + 12
        k("v_cvt_pk_bf16_f32 v%d, %sv%d, %sv%d", t, "-" if neglo else "", lo, "-" if neghi else "", hi)
        k("v_accvgpr_write_b32 a%d, v%d", a, t)
    def arrive(self, sbase, S, R, sshard):
        k = self.k
        k("s_waitcnt vmcnt(0)"); k("s_barrier")
        L = k.label("arr")
        k("s_cmp_lg_u32 s%d, 0", sWv); k("s_cbranch_scc1 " + L)
        if sshard is not None:
            k("s_lshl_b32 s%d, s%d, 7", sT + 3, sshard); k("s_add_u32 s%d, s%d, s%d", sT + 3, sT + 3, sbase)
        else: k("s_mov_b32 s%d, s%d", sT + 3, sbase)
        k("v_mul_u32_u24 v%d, %d, v%d", vT, S, vL128); k("v_mov_b32 v%d, 1", vT + 1)
        setexec(k, R)
        k("buffer_atomic_add v%d, v%d, s[%d:%d], s%d offen sc1", vT + 1, vT, sFL, sFL + 3, sT + 3)
        setexec(k, 64)
        k(L + ":")
    def wait(self, sbase, S, srep, count):
        k = self.k
        L = k.label("wdone"); LP = k.label("poll"); LX = k.label("pollx")
        k("s_cmp_lg_u32 s%d, 0", sWv); k("s_cbranch_scc1 " + L)
        if srep is not None:
            k("s_mul_i32 s%d, s%d, %d", sT + 3, srep, S * 128); k("s_add_u32 s%d, s%d, s%d", sT + 3, sT + 3, sbase)
        else: k("s_mov_b32 s%d, s%d", sT + 3, sbase)
        k("s_mov_b32 s%d, 0", sT + 2)
        setexec(k, S)
        k(LP + ":")
        k("v_mov_b32 v%d, 0", vT)
        k("buffer_atomic_add v%d, v%d, s[%d:%d], s%d offen sc0 sc1", vT, vL128, sFL, sFL + 3, sT + 3)
        k("s_add_u32 s%d, s%d, 1", sT + 2, sT + 2); k("s_cmp_ge_u32 s%d, 0x40000", sT + 2); k("s_cbranch_scc1 " + LX)
        k("s_waitcnt vmcnt(0)")
        k("v_cmp_ne_u32 vcc, %d, v%d", count, vT)
        k("s_cbranch_vccnz " + LP)
        k(LX + ":")
        setexec(k, 64)
        k(L + ":")
        k("s_barrier")
    def reduce4(self, p, q, r, s, c2):
        k = self.k
        k("v_permlane16_swap_b32 v%d, v%d", p, q); k("v_permlane16_swap_b32 v%d, v%d", r, s)
        k("v_add_f32 v%d, v%d, v%d", p, p, q); k("v_add_f32 v%d, v%d, v%d", r, r, s)
        k("v_permlane32_swap_b32 v%d, v%d", p, r)
        k("v_add_f32 v%d, v%d, v%d", r, p, r)
        for sh in (8, 4, 2, 1): k("v_add_f32_dpp v%d, v%d, v%d row_ror:%d row_mask:0xf bank_mask:0xf", r, r, r, sh)
        k("v_mov_b32 v%d, v%d", p, r)
        k("v_permlane32_swap_b32 v%d, v%d", p, r)
        k("v_mul_f32 v%d, %s, v%d", p, fl(1.0 / 1024), p)
        k("v_mul_f32 v%d, %s, v%d", r, fl(c2), r)
        k("v_fma_f32 v%d, -v%d, v%d, v%d", r, p, p, r)
        k("v_max_f32 v%d, 0, v%d", r, r)
        k("v_add_f32 v%d, %s, v%d", r, fl(EPS), r)
    def sums(self, base, t):
        k = self.k
        for j in range(8):
            for q in range(2):
                b = base + 16 * q + 2 * j
                if j == 0: k("v_pk_mul_f32 %s, %s, %s", vr(t + 4 + 2 * q, 2), vr(b, 2), vr(b, 2))
                else: k("v_pk_fma_f32 %s, %s, %s, %s", vr(t + 4 + 2 * q, 2), vr(b, 2), vr(b, 2), vr(t + 4 + 2 * q, 2))
                if j == 1: k("v_pk_add_f32 %s, %s, %s", vr(t + 2 * q, 2), vr(b - 2, 2), vr(b, 2))
                elif j > 1: k("v_pk_add_f32 %s, %s, %s", vr(t + 2 * q, 2), vr(t + 2 * q, 2), vr(b, 2))
        for j in range(4): k("v_add_f32 v%d, v%d, v%d", t + 2 * j, t + 2 * j, t + 2 * j + 1)
    def twiddle(self, re, im, tc, ts, tmp, out, conj=False, e=None):
        k = self.k
        for h in (0, 2):
            if e is None:
                k("v_pk_mul_f32 %s, %s, %s", vr(tmp + h, 2), vr(re + h, 2), vr(tc + h, 2))
                k("v_pk_mul_f32 %s, %s, %s", vr(tmp + 4 + h, 2), vr(im + h, 2), vr(tc + h, 2))
            else:
                k("v_pk_fma_f32 %s, %s, %s, %s op_sel_hi:[1,1,0]", vr(tmp + h, 2), vr(re + h, 2), vr(tc + h, 2), vr(e, 2))
                k("v_pk_fma_f32 %s, %s, %s, %s op_sel_hi:[1,1,0]", vr(tmp + 4 + h, 2), vr(im + h, 2), vr(tc + h, 2), vr(e, 2))
        neg = " neg_lo:[1,0,0] neg_hi:[1,0,0]"
        for h in (0, 2):
            k("v_pk_fma_f32 %s, %s, %s, %s%s", vr(tmp + h, 2), vr(im + h, 2), vr(ts + h, 2), vr(tmp + h, 2), neg if conj else "")
            k("v_pk_fma_f32 %s, %s, %s, %s%s", vr(tmp + 4 + h, 2), vr(re + h, 2), vr(ts + h, 2), vr(tmp + 4 + h, 2), "" if conj else neg)
        for r in range(4): k("v_cvt_pk_bf16_f32 v%d, v%d, v%d", out + r, tmp + r, tmp + 4 + r)
    def mf(self, d, a, b, c="0", kk=32):
        self.k("v_mfma_f32_16x16x%d_bf16 %s, %s, %s, %s", kk, vr(d), a, b, c if isinstance(c, str) else vr(c))

    def prologue(self):
        k = self.k; o = self.opt
        k("s_cmp_ge_u32 s2, 256"); k("s_cbranch_scc1 L_end")
        k("s_load_dwordx4 s[60:63], s[0:1], 0")
        k("s_load_dwordx2 s[64:65], s[0:1], 16")
        k("s_load_dwordx8 s[68:75], s[0:1], 32")
        k("s_load_dwordx4 s[76:79], s[0:1], 64")
        if not o.get("nocodepf"):
            k("s_getpc_b64 s[66:67]")
            k("L_pc:")
            k("v_lshlrev_b32 v%d, 7, v0", vT)
            k("v_min_u32 v%d, (L_end-L_pc), v%d", vT, vT)
            k("global_load_dword a254, v%d, s[66:67]", vT)
        k("v_lshrrev_b32 v%d, 6, v0", vT); k("v_and_b32 v0, 63, v0")
        k("v_readfirstlane_b32 s%d, v%d", sWv, vT)
        k("v_and_b32 v%d, 15, v0", vI); k("v_lshrrev_b32 v%d, 4, v0", vG)
        k("v_lshlrev_b32 v%d, 7, v0", vL128)
        k("s_and_b32 s%d, s2, 7", sT); k("s_lshr_b32 s%d, s2, 3", sT + 1)
        k("s_lshl_b32 s%d, s%d, 5", sN2, sT); k("s_add_u32 s%d, s%d, s%d", sN2, sN2, sT + 1)
        k("s_and_b32 s%d, s%d, 1", sT + 2, sT); k("s_lshl_b32 s%d, s%d, 2", sT + 2, sT + 2)
        k("s_and_b32 s%d, s%d, 3", sMT, sT + 1); k("s_add_u32 s%d, s%d, s%d", sMT, sMT, sT + 2)
        k("s_lshr_b32 s%d, s%d, 1", sT, sT); k("s_lshr_b32 s%d, s%d, 2", sT + 1, sT + 1)
        k("s_lshl_b32 s%d, s%d, 3", sNT, sT); k("s_add_u32 s%d, s%d, s%d", sNT, sNT, sT + 1)
        k("s_lshr_b32 s%d, s%d, 1", sKH, sT)
        k("s_and_b32 s%d, s%d, 1", sT + 2, sT + 1); k("s_lshl_b32 s%d, s%d, 1", sMT2, sMT); k("s_add_u32 s%d, s%d, s%d", sMT2, sMT2, sT + 2)
        k("s_and_b32 s%d, s%d, 1", sT, sT); k("s_lshl_b32 s%d, s%d, 2", sT, sT); k("s_lshr_b32 s%d, s%d, 1", sNT2, sT + 1); k("s_add_u32 s%d, s%d, s%d", sNT2, sNT2, sT)
        k("s_mov_b32 s%d, 0", sLay); k("s_mov_b32 s%d, 0", sFo)
        k("s_lshl_b32 s%d, s%d, 12", sM0, sWv)
        if o.get("stamp"): k("v_mov_b32 v31, 0")
        self.p1_addr()
        k("v_lshlrev_b32 v%d, 4, v0", vT); k("v_mov_b64 v[20:21], 0"); k("v_mov_b64 v[22:23], 0")
        k("s_waitcnt lgkmcnt(0)")
        srd(k, sXS, 60, 2048 * 2048)
        srd(k, sFL, 78, 2 * FL_LSTRIDE, FL_OFF)
        self.mark("start")
        L = k.label("nz")
        k("s_cmp_lg_u32 s2, 8"); k("s_cbranch_scc1 " + L)
        k("s_lshl_b32 s%d, s%d, 13", sT, sWv)
        for j in range(8):
            k("buffer_store_dwordx4 v[20:23], v%d, s[%d:%d], s%d offen offset:%d sc1", vT, sFL, sFL + 3, sT, (j % 4) * 1024)
            if j == 3: k("s_add_u32 s%d, s%d, 4096", sT, sT)
        k(L + ":")
        self.p1_loads(0, o.get("xfl", ""))
        srd(k, sWS, 78, LSTRIDE)
        srd(k, sG, 68, 1024 * 7168)
        k("s_sub_u32 s%d, s70, 2048", sU); k("s_subb_u32 s%d, s71, 0", sU + 1)
        k("s_mov_b32 s%d, 0x%x", sU + 2, 1024 * 7168 + 2048); k("s_mov_b32 s%d, 0x20000", sU + 3)
        k("s_sub_u32 s%d, s72, 1024", sD); k("s_subb_u32 s%d, s73, 0", sD + 1)
        k("s_mov_b32 s%d, 0x%x", sD + 2, 3584 * 2048 + 1024); k("s_mov_b32 s%d, 0x20000", sD + 3)
        srd(k, sOUT, 74, 2048 * 2048)
        k("s_lshl_b32 s%d, s2, 10", sT); k("s_lshl_b32 s%d, s%d, 8", sT + 1, sWv); k("s_add_u32 s%d, s%d, s%d", sT, sT, sT + 1); k("s_add_u32 s%d, s%d, 0x8000", sT, sT)
        setexec(k, 16)
        k("buffer_store_dwordx4 v[20:23], v%d, s[%d:%d], s%d offen sc1", vT, sFL, sFL + 3, sT)
        setexec(k, 64)
        self.w_prep()
        self.npf0 = self.pf(0)
        self.consts(False)
        L = k.label("rep")
        k("s_cmp_lg_u32 s2, 8"); k("s_cbranch_scc1 " + L)
        k("s_waitcnt vmcnt(%d)", 9 + (o.get("wtouch", 1) == 0) + self.npf0); k("s_barrier")
        k("s_cmp_lg_u32 s%d, 0", sWv); k("s_cbranch_scc1 " + L)
        k("v_mov_b32 v%d, 1", vT + 1); k("v_lshlrev_b32 v%d, 2, v0", vT)
        setexec(k, 32)
        k("global_store_dword v%d, v%d, s[76:77] sc1", vT, vT + 1)
        setexec(k, 64)
        k(L + ":")
    def w_prep(self):
        k = self.k
        k("s_lshr_b32 s%d, s%d, 5", sT, sN2); k("s_and_b32 s%d, s%d, 31", sT + 1, sN2)
        k("s_lshl_b32 s80, s%d, 4", sT + 1); k("s_sub_u32 s%d, 1010, s80", sT + 3)
        k("s_cmp_ge_u32 s%d, 2", sWv); k("s_cselect_b32 s80, s%d, s80", sT + 3); k("s_cselect_b32 s%d, -1, 0", sT + 3); k("s_cselect_b32 s%d, 508, 0", sT + 2)
        k("s_bitcmp1_b32 s%d, 0", sWv); k("s_cselect_b32 s%d, s64, s62", sTM); k("s_cselect_b32 s%d, s65, s63", sTM + 1)
        k("s_mov_b32 s%d, 0x%x", sTM + 2, 2048 * 1026); k("s_mov_b32 s%d, 0x20000", sTM + 3)
        def row(d, src):
            k("v_xor_b32 v%d, s%d, v%d", d, sT + 3, src); k("v_subrev_u32 v%d, s%d, v%d", d, sT + 3, d)
            k("v_and_b32 v%d, 2047, v%d", d, d); k("v_mul_u32_u24 v%d, 1026, v%d", d, d)
        k("s_lshl_b32 s81, s%d, 6", sT + 1); k("s_add_u32 s81, s81, s%d", sT)
        k("v_and_b32 v%d, 56, v0", vT); k("v_add_u32 v%d, s81, v%d", vT, vT); row(vT, vT)
        k("v_and_b32 v%d, 7, v0", vT + 1); k("v_lshlrev_b32 v%d, 7, v%d", vT + 1, vT + 1); k("v_min_u32 v%d, 514, v%d", vT + 1, vT + 1)
        k("v_add3_u32 v214, v%d, v%d, s%d", vT, vT + 1, sT + 2)
        if self.opt.get("wtouch", 1) == 0: self.w_touch()
        k("v_lshlrev_b32 v%d, 3, v%d", vT, vI); k("v_lshl_add_u32 v%d, v%d, 9, v%d", vT, vG, vT); k("v_add_u32 v%d, s%d, v%d", vT, sT, vT)
        for r in range(4):
            k("v_add_u32 v%d, %d, v%d", 208 + r, 128 * r, vT); row(208 + r, 208 + r)
        for j in range(2):
            k("s_and_b32 s%d, s%d, 2", sT, sWv); k("s_add_u32 s%d, s%d, %d", sT, sT, j); k("s_lshl_b32 s%d, s%d, 7", sT, sT)
            k("v_add_u32 v%d, s%d, v%d", 212 + j, sT, vT); k("v_mul_u32_u24 v%d, 1026, v%d", 212 + j, 212 + j); k("v_add_u32 v%d, 512, v%d", 212 + j, 212 + j)
    def w_touch(self):
        self.k("buffer_load_dword a255, v214, s[%d:%d], 0 offen%s", sTM, sTM + 3, self.opt.get("wfl", ""))
    def w_loads(self, special):
        k = self.k
        if self.opt.get("now"): return
        if special:
            k("s_lshl_b32 s%d, s%d, 9", sT, sWv)
            for j in range(2):
                k("s_add_u32 m0, s%d, 0x%x", sT, L_W2 + j * 256)
                k("buffer_load_ushort v%d, s[%d:%d], 0 offen lds", 212 + j, sTM, sTM + 3)
            return
        for r in range(4):
            k("s_add_u32 m0, s%d, 0x%x", sM0, L_W + r * 1024)
            k("buffer_load_dwordx4 v%d, s[%d:%d], s80 offen lds", 208 + r, sTM, sTM + 3)
    def w_park(self):
        k = self.k; W = 208
        L = k.label("nsp")
        k("s_and_b32 s%d, s%d, 31", sT, sN2); k("s_or_b32 s%d, s%d, s%d", sT, sT, sWv)
        k("s_cmp_lg_u32 s%d, 0", sT); k("s_cbranch_scc1 " + L)
        k("v_lshlrev_b32 v%d, 4, v0", vT); k("v_add_u32 v%d, 0x%x, v%d", vT, L_W, vT)
        k("v_lshlrev_b32 v%d, 2, v0", vT + 1); k("v_add_u32 v%d, 0x%x, v%d", vT + 1, L_W2, vT + 1)
        for r in range(4):
            for m in range(2): k("ds_read_b32 v%d, v%d offset:%d", W + 4 * m + r, vT + 1, ((r & 2) + m) * 512 + (r & 1) * 256)
        k("s_waitcnt lgkmcnt(0)")
        for r in range(4):
            for m in range(2): k("ds_write_b16 v%d, v%d offset:%d", vT, W + 4 * m + r, m * 4096 + r * 1024)
        k(L + ":")
    def pf(self, window):
        k = self.k; n = 0
        todo = self.opt.get("pf", {}).get(window, [])
        if not todo: return 0
        shadow = str(window).endswith("s")
        L = k.label("pf")
        if shadow:
            k("s_sub_u32 s%d, s%d, 1", sT + 1, sWv); k("s_lshl_b32 s%d, s%d, 4", sT, sLay); k("s_add_u32 s%d, s%d, s%d", sT + 1, sT + 1, sT)
            k("s_cmp_ge_u32 s%d, 2", sT + 1); k("s_cbranch_scc1 " + L)
            k("s_lshl_b32 s%d, s2, 1", sT); k("s_add_u32 s%d, s%d, s%d", sT, sT, sT + 1); k("s_mul_i32 s%d, s%d, %d", sT, sT, 28 * 128)
            setexec(k, 28)
        else:
            k("s_lshl_b32 s%d, s2, 2", sT); k("s_add_u32 s%d, s%d, s%d", sT, sT, sWv); k("s_mul_i32 s%d, s%d, %d", sT, sT, 14 * 128)
            k("s_cmp_eq_u32 s%d, 0", sLay); k("s_cselect_b64 exec, 0x3fff, 1")
        for (m, c) in todo:
            r, bias = {"g": (sG, 0), "u": (sU, 2048), "d": (sD, 1024)}[m]
            k("s_add_u32 s%d, s%d, %d", sT + 1, sT, c * (7340032 // 4) + bias)
            k("buffer_load_dword a255, v%d, s[%d:%d], s%d offen", vL128, r, r + 3, sT + 1); n += 1
        setexec(k, 64)
        k(L + ":")
        return 0 if shadow else n
    def consts(self, inv):
        k = self.k; c, s, n = vT, vT + 1, vT + 2
        for r in range(4):
            k("v_lshl_add_u32 v%d, v%d, 2, %d", n + 1, vG, r)
            k("v_mul_u32_u24 v%d, v%d, v%d", n, vI, n + 1)
            if not inv:
                self.cs(c, s, n, 1.0 / 16)
                self.pack_to_a(aF + r, c, s); self.pack_to_a(aF + 4 + r, s, c, neglo=True)
                self.pack_to_a(aGm + r, c, s, neghi=True); self.pack_to_a(aGm + 4 + r, s, c)
                k("v_lshl_add_u32 v%d, v%d, 1, v%d", n + 2, n, vI)
                self.cs(c, s, n + 2, 1.0 / 32)
                self.pack_to_a(aM1 + r, c, s); self.pack_to_a(aM1 + 4 + r, s, c, neglo=True)
                self.pack_to_a(aM1 + 8 + r, c, s, True, True); self.pack_to_a(aM1 + 12 + r, s, c, neghi=True)
            else:
                k("v_lshl_add_u32 v%d, v%d, 1, v%d", n + 2, n, n + 1)
                self.cs(c, s, n + 2, 1.0 / 32)
                self.pack_to_a(aM1H + r, c, s, neghi=True); self.pack_to_a(aM1H + 4 + r, s, c)
                self.pack_to_a(aM1H + 8 + r, c, s, neglo=True); self.pack_to_a(aM1H + 12 + r, s, c, True, True)
        k("v_and_b32 v%d, 1, v%d", n + 3, vI); k("v_cvt_f32_u32 v%d, v%d", n + 4, n + 3); k("v_mul_f32 v%d, 0x3e800000, v%d", n + 4, n + 4)
        if inv: k("v_mul_u32_u24 v%d, 0x8000, v%d", n + 3, n + 3); k("v_lshl_or_b32 v%d, v%d, 16, v%d", n + 3, n + 3, n + 3)
        k("v_lshrrev_b32 v%d, 1, v%d", n + 5, vI)
        for q in range(2):
            k("v_lshl_add_u32 v%d, v%d, 1, %d", n + 1, vG, q)
            if not inv:
                k("v_lshlrev_b32 v%d, 8, v%d", n, n + 1); k("v_add_u32 v%d, s%d, v%d", n, sN2, n); k("v_mul_u32_u24 v%d, v%d, v%d", n, n, n + 5)
                self.cs(c, s, n, 1.0 / 2048, add=n + 4)
                self.pack_to_a(aC + q, c, s); self.pack_to_a(aC + 2 + q, c, s, neghi=True)
            else:
                k("v_lshlrev_b32 v%d, 8, v%d", n, n + 5); k("v_add_u32 v%d, s%d, v%d", n, sN2, n); k("v_mul_u32_u24 v%d, v%d, v%d", n, n, n + 1)
                self.cs(c, s, n, -1.0 / 2048, add=n + 4)
                self.pack_to_a(aCH + q, c, s)
                k("v_xor_b32 v%d, v%d, v%d", vT + 12, vT + 12, n + 3); k("v_accvgpr_write_b32 a%d, v%d", aCH + 2 + q, vT + 12)
    def g_addr(self):
        k = self.k; t = vT
        k("v_lshlrev_b32 v%d, 4, v0", t); k("v_add_u32 v%d, s%d, v%d", vG1x, sM0, t)
        k("v_lshrrev_b32 v%d, 5, v0", t); k("v_lshlrev_b32 v%d, 12, v%d", t, t)
        k("v_bfe_u32 v%d, v0, 4, 1", t + 1); k("v_mul_u32_u24 v%d, 1152, v%d", t + 1, t + 1)
        k("v_bfe_u32 v%d, v0, 2, 2", t + 2); k("v_mul_u32_u24 v%d, 224, v%d", t + 2, t + 2)
        k("v_and_b32 v%d, 3, v0", t + 3); k("v_lshlrev_b32 v%d, 3, v%d", t + 3, t + 3)
        k("v_add3_u32 v%d, v%d, v%d, v%d", t + 1, t, t + 1, t + 2); k("v_add_u32 v%d, v%d, v%d", vG1r, t + 1, t + 3)
        for j in range(2):
            k("s_lshl_b32 s%d, s%d, 1", sT, sWv); k("s_add_u32 s%d, s%d, %d", sT, sT, j)
            k("s_and_b32 s%d, s%d, 3", sT + 1, sT); k("s_lshl_b32 s%d, s%d, 3", sT + 1, sT + 1)
            k("s_and_b32 s%d, s%d, 4", sT, sT); k("s_add_u32 s%d, s%d, s%d", sT, sT, sT + 1)
            k("s_mul_i32 s%d, s%d, 7168", sT, sT); k("s_mul_i32 s%d, s%d, 224", sT + 1, sNT); k("s_add_u32 s%d, s%d, s%d", sT, sT, sT + 1)
            if j: k("s_sub_u32 s%d, s%d, 1024", sT, sT)
            k("v_subrev_u32 v%d, %d, v0", t + 4, 8 * j)
            k("v_mul_u32_u24 v%d, 4682, v%d", t + 5, t + 4); k("v_lshrrev_b32 v%d, 16, v%d", t + 5, t + 5)
            k("v_mul_u32_u24 v%d, 14, v%d", t + 6, t + 5); k("v_sub_u32 v%d, v%d, v%d", t + 6, t + 4, t + 6)
            k("v_mul_u32_u24 v%d, 7168, v%d", t + 5, t + 5); k("v_lshl_add_u32 v%d, v%d, 4, v%d", t + 5, t + 6, t + 5)
            k("v_add_u32 v%d, s%d, v%d", t + 5, sT, t + 5)
            k("v_cmp_gt_u32 vcc, 56, v%d", t + 4)
            k("v_mov_b32 v%d, 0x80000000", t + 6)
            k("v_cndmask_b32 v%d, v%d, v%d, vcc", vG1w + j, t + 6, t + 5)
        k("v_lshlrev_b32 v%d, 4, v%d", t + 4, vI); k("v_lshl_add_u32 v%d, v%d, 9, v%d", vG2h, vG, t + 4)
        k("v_bfe_u32 v%d, v0, 2, 3", t + 4); k("v_lshrrev_b32 v%d, 1, v%d", t + 5, t + 4)
        k("v_lshl_add_u32 v%d, v%d, 7, v%d", t + 4, t + 4, t); k("v_add_u32 v%d, v%d, v%d", t + 4, t + 4, t + 3)
        k("v_add_u32 v%d, 0x%x, v%d", t + 4, L_G2, t + 4)
        for x in range(4):
            k("v_xor_b32 v%d, %d, v%d", t + 6, x, t + 5); k("v_lshl_add_u32 v%d, v%d, 5, v%d", vG2r + x, t + 6, t + 4)
        k("s_and_b32 s%d, s%d, 1", sT, sWv); k("s_lshl_b32 s%d, s%d, 4", sT, sT)
        k("s_lshr_b32 s%d, s%d, 1", sT + 1, sWv); k("s_lshl_b32 s%d, s%d, 2", sT + 1, sT + 1); k("s_add_u32 s%d, s%d, s%d", sT, sT, sT + 1)
        k("s_lshl_b32 s%d, s%d, 11", sT, sT); k("s_lshl_b32 s%d, s%d, 8", sT + 1, sNT2); k("s_add_u32 s%d, s%d, s%d", sT, sT, sT + 1)
        k("v_lshrrev_b32 v%d, 5, v0", t + 4); k("v_bfe_u32 v%d, v0, 3, 2", t + 5); k("v_lshl_add_u32 v%d, v%d, 3, v%d", t + 4, t + 4, t + 5)
        k("v_lshlrev_b32 v%d, 11, v%d", t + 4, t + 4)
        k("v_bfe_u32 v%d, v0, 1, 2", t + 5); k("v_xor_b32 v%d, v%d, v%d", t + 5, t + 5, vG)
        k("v_lshl_add_u32 v%d, v%d, 5, v%d", t + 4, t + 5, t + 4)
        k("v_and_b32 v%d, 1, v0", t + 5); k("v_lshl_add_u32 v%d, v%d, 4, v%d", t + 4, t + 5, t + 4)
        k("v_add_u32 v%d, s%d, v%d", t + 4, sT, t + 4)
        for b in range(4): k("v_add_u32 v%d, 0x%x, v%d", vG2w + b, 1024 + (b >> 1) * 65536 + (b & 1) * 128 - b * 1024, t + 4)

    XA, XB = 32, 48
    vP1x = 240
    def p1_addr(self):
        k = self.k
        k("v_lshlrev_b32 v%d, 3, v%d", self.vP1x, vI); k("v_lshl_add_u32 v%d, v%d, 9, v%d", self.vP1x, vG, self.vP1x)
    def p1_loads(self, src, fl_=None):
        k = self.k; X = self.XB if src else self.XA
        if fl_ is None: fl_ = self.LF
        k("s_lshl_b32 s%d, s%d, 20", sT, sWv); k("s_lshl_b32 s%d, s%d, 11", sT + 1, sN2); k("s_add_u32 s%d, s%d, s%d", sT, sT, sT + 1)
        if src: k("s_add_u32 s%d, s%d, 0x400000", sT, sT)
        for q in range(2):
            for j, r in enumerate((0, 2, 1, 3)):
                k("buffer_load_dwordx2 %s, v%d, s[%d:%d], s%d offen offset:%d%s", vr(X + 8 * q + 2 * j, 2), self.vP1x, sXS, sXS + 3, sT, r * 128, fl_)
            if q == 0: k("s_add_u32 s%d, s%d, 0x80000", sT, sT)
    def exch_addr(self, base, a):
        k = self.k
        k("s_lshl_b32 s%d, s%d, 9", sT, sWv)
        k("v_lshlrev_b32 v%d, 12, v%d", a + 2, vG); k("v_add_u32 v%d, 0x%x, v%d", a + 2, base, a + 2)
        k("v_lshl_add_u32 v%d, v%d, 4, s%d", a + 3, vI, sT)
        k("v_add_u32 v%d, v%d, v%d", a, a + 2, a + 3)
        k("v_sub_u32 v%d, v%d, v%d", a + 1, a + 2, a + 3); k("v_add_u32 v%d, %d, v%d", a + 1, (512 - 33) * 8, a + 1)
        k("v_cmp_eq_u32 vcc, 0, v%d", a + 3)
        k("v_add_u32 v%d, %d, v%d", a + 2, (256 - 33) * 8, a + 2)
        k("v_cndmask_b32 v%d, v%d, v%d, vcc", a + 2, a + 1, a + 2)
        k("v_lshlrev_b32 v%d, 3, v%d", a + 3, vI); k("v_lshl_add_u32 v%d, v%d, 9, v%d", a + 3, vG, a + 3)
        k("s_add_u32 s%d, s%d, 0x%x", sT, sM0, base); k("v_add_u32 v%d, s%d, v%d", a + 3, sT, a + 3)
    def p1_pre(self):
        k = self.k; T1 = 96
        for c in range(2):
            for r in range(4):
                k("v_lshl_add_u32 v%d, v%d, 3, %d", vT, vG, 2 * r + c); k("v_mul_u32_u24 v%d, v%d, v%d", vT, vT, vI)
                self.cs(T1 + 8 * c + r, T1 + 8 * c + 4 + r, vT, 1.0 / 512)
        self.exch_addr(L_P1, 241)
        k("v_cmp_eq_u32 vcc, 0, v%d", vI); k("v_cndmask_b32 v245, 0, 1.0, vcc")
        k("v_lshlrev_b32 v246, 12, v%d", vG); k("v_lshl_add_u32 v246, v%d, 4, v246", vI)
    def p1(self):
        k = self.k; XA, XB = self.XA, self.XB
        D, T1, T1s, O, B, E, tmp = 64, 96, 112, 144, 160, 192, 224
        def swaps(X):
            for q in range(2):
                k("v_swap_b32 v%d, v%d", X + 8 * q + 1, X + 8 * q + 4); k("v_swap_b32 v%d, v%d", X + 8 * q + 3, X + 8 * q + 6)
        self.mark("p1_loaded")
        swaps(XA)
        for l in range(4):
            for p in range(2): self.mf(D + (l * 2 + p) * 4, vr(XA + 4 * l), ar(aF + 4 * p))
        L = k.label("one")
        k("s_cmp_eq_u32 s%d, 0", sLay); k("s_cbranch_scc1 " + L)
        k("s_waitcnt vmcnt(0)")
        swaps(XB)
        for l in range(4):
            for p in range(2): self.mf(D + (l * 2 + p) * 4, vr(XB + 4 * l), ar(aF + 4 * p), D + (l * 2 + p) * 4)
        k(L + ":")
        t = O
        self.sums(D, t)
        k("v_mul_f32 v%d, v245, v%d", t, t); k("v_mul_f32 v%d, v245, v%d", t + 2, t + 2)
        self.reduce4(t, t + 2, t + 4, t + 6, 1.0 / (16 * 1024))
        k("v_rsq_f32 v%d, v%d", t + 4, t + 4)
        k("v_mov_b32 v252, v%d", t)
        k("v_mul_f32 v%d, %s, v%d", t, fl(-16.0), t); k("v_mul_f32 v%d, v%d, v%d", t, t, t + 4)
        for q in range(2):
            k("v_readlane_b32 s%d, v%d, %d", sK + 2 * q, t + 4, 16 * q); k("v_readlane_b32 s%d, v%d, %d", sK + 2 * q + 1, t, 16 * q)
        for q in range(2):
            for j in range(8): k("v_pk_mul_f32 %s, %s, s[%d:%d] op_sel_hi:[1,0]", vr(T1s + 16 * q + 2 * j, 2), vr(T1 + 2 * j, 2), sK + 2 * q, sK + 2 * q + 1)
            k("v_mul_f32 v%d, s%d, v245", 248 + 2 * q, sK + 2 * q + 1)
        for l in range(4):
            q, c = l >> 1, l & 1
            self.twiddle(D + l * 8, D + l * 8 + 4, T1s + 16 * q + 8 * c, T1s + 16 * q + 8 * c + 4, B + 8 * l, O + 4 * l, e=248 + 2 * q)
        def b(q, t_, p): return B + ((q * 2 + t_) * 2 + p) * 4
        for q in range(2):
            for p in range(2): self.mf(b(q, 0, p), ar(aF + 4 * p), vr(O + 8 * q))
        for q in range(2):
            for p in range(2): self.mf(b(q, 1, p), ar(aM1 + 8 + 4 * p), vr(O + 8 * q + 4), b(q, 0, p))
        for q in range(2):
            for p in range(2): self.mf(b(q, 0, p), ar(aM1 + 4 * p), vr(O + 8 * q + 4), b(q, 0, p))
        for t_ in (1, 0):
            for r in range(4):
                e = E + (t_ * 4 + r) * 2
                for q in range(2): k("v_cvt_pk_bf16_f32 v%d, v%d, v%d", e + q, b(q, t_, 0) + r, b(q, t_, 1) + r)
                k("ds_write_b64 v244, %s offset:%d", vr(e, 2), r * 128 + t_ * 2048)
        k("s_waitcnt lgkmcnt(0)"); k("s_barrier")
        for u in range(2): k("ds_read_b128 %s, v241 offset:%d", vr(O + 8 * u), u * 256)
        for u in range(2):
            for e in range(2): k("ds_read_b64 %s, v%d offset:%d", vr(O + 8 * u + 4 + 2 * e, 2), 243 if (u, e) == (0, 0) else 242, (33 - 32 * u - e) * 8)
        k("s_lshl_b32 s%d, s%d, 14", sT, sN2); k("s_lshl_b32 s%d, s%d, 9", sT + 1, sWv); k("s_add_u32 s%d, s%d, s%d", sT, sT, sT + 1)
        if U_OFF: k("s_add_u32 s%d, s%d, 0x%x", sT, sT, U_OFF)
        k("s_waitcnt lgkmcnt(4)")
        for u in range(2):
            for e in range(2): self.mf(D + (u * 4 + e) * 4, ar(aC, 2), vr(O + 8 * u + 2 * e, 2), kk=16)
        k("s_waitcnt lgkmcnt(0)")
        for u in range(2):
            for e in range(2): self.mf(D + (u * 4 + 2 + e) * 4, ar(aC + 2, 2), vr(O + 8 * u + 4 + 2 * e, 2), kk=16)
        for u in range(2):
            for p in range(2):
                e0 = E + (u * 2 + p) * 4
                for e in range(4): k("v_cvt_pk_bf16_f32 v%d, v%d, v%d", e0 + e, D + (u * 4 + e) * 4 + 2 * p, D + (u * 4 + e) * 4 + 2 * p + 1)
                k("buffer_store_dwordx4 %s, v246, s[%d:%d], s%d offen offset:%d%s", vr(e0), sWS, sWS + 3, sT, p * 2048 + u * 256, self.SF)
    def p2_pre(self):
        k = self.k; T2, CO = 64, 72
        for r in range(4):
            k("v_lshl_add_u32 v%d, v%d, 2, %d", vT, vG, r); k("v_mul_u32_u24 v%d, v%d, v%d", vT, vT, vI)
            self.cs(T2 + r, T2 + 4 + r, vT, 1.0 / 256)
        k("v_lshl_add_u32 v241, v%d, 6, v%d", vG, vI)
        k("v_lshlrev_b32 v240, 14, v241")
        k("v_bfe_u32 v242, v0, 1, 2"); k("v_xor_b32 v242, s%d, v242", sWv); k("v_lshlrev_b32 v242, 4, v242")
        k("v_lshl_add_u32 v241, v241, 6, v242"); k("v_add_u32 v241, 0x%x, v241", L_P2)
        k("v_bfe_u32 v242, v0, 3, 2"); k("v_xor_b32 v242, v0, v242"); k("v_lshlrev_b32 v242, 4, v242")
        k("s_add_u32 s%d, s%d, 0x%x", sT, sM0, L_P2); k("v_add_u32 v242, s%d, v242", sT)
    def p2_coef(self):
        k = self.k; T2, CO = 64, 72; WP = 152
        L = k.label("once")
        k("s_cmp_lg_u32 s%d, 0", sLay); k("s_cbranch_scc1 " + L)
        self.w_park()
        k(L + ":")
        k("s_lshl_b32 s%d, s%d, 2", sT, sWv); k("s_add_u32 s%d, s%d, 0x%x", sT + 1, sT, L_W); k("s_sub_u32 s%d, 0x%x, s%d", sT, L_W + 8192 + 12, sT)
        k("v_lshl_add_u32 v243, v0, 4, s%d", sT + 1); k("v_lshl_add_u32 v244, v0, 4, s%d", sT)
        for j in range(8):
            k("ds_read_b32 v%d, v243 offset:%d", WP + j, j * 1024); k("ds_read_b32 v%d, v244 offset:%d", WP + 8 + j, j * 1024)
        k("s_and_b32 s%d, s%d, 31", sT, sN2); k("s_lshl_b32 s%d, s%d, 3", sT, sT); k("s_lshl_b32 s%d, s%d, 1", sT + 1, sWv); k("s_add_u32 s%d, s%d, s%d", sT, sT, sT + 1)
        k("s_add_u32 s%d, s%d, 1", sT + 1, sT); k("s_cmp_eq_u32 s%d, 0", sT); k("s_cselect_b32 s%d, 256, s%d", sT, sT)
        NRM = 1.0 / (2048 * 512)
        W1, W2 = 120, 128
        for x in range(2):
            k("v_mov_b32 v%d, s%d", vT, sT + x)
            self.cs(vT + 1, vT + 3, vT, 1.0 / 1024)
            k("v_mul_f32 v%d, 0.5, v%d", vT + 1, vT + 1)
            k("v_fma_f32 v%d, v%d, -0.5, 0.5", vT + 3, vT + 3)
            if x == 0: k("s_waitcnt lgkmcnt(0)")
            for j in range(8):
                k("v_and_b32 v%d, 0xffff0000, v%d" % (W1 + j, WP + j) if x else "v_lshlrev_b32 v%d, 16, v%d" % (W1 + j, WP + j))
                k("v_lshlrev_b32 v%d, 16, v%d" % (W2 + j, WP + 8 + j) if x else "v_and_b32 v%d, 0xffff0000, v%d" % (W2 + j, WP + 8 + j))
            for j in range(8):
                k("v_mul_f32 v%d, %s, v%d", W1 + j, fl(NRM), W1 + j); k("v_mul_f32 v%d, %s, v%d", W2 + j, fl(-NRM if j >= 4 else NRM), W2 + j)
            c = CO + 24 * x
            for j in range(0, 8, 2):
                k("v_pk_add_f32 %s, %s, %s neg_lo:[0,1] neg_hi:[0,1]", vr(c + 16 + j, 2), vr(W1 + j, 2), vr(W2 + j, 2))
            for j in range(0, 8, 2):
                k("v_pk_fma_f32 %s, %s, %s, %s op_sel_hi:[1,0,1]", vr(c + j, 2), vr(c + 16 + j, 2), vr(vT + 3, 2), vr(W2 + j, 2))
                k("v_pk_fma_f32 %s, %s, %s, %s op_sel_hi:[1,0,1] neg_lo:[1,0,0] neg_hi:[1,0,0]", vr(c + 8 + j, 2), vr(c + 16 + j, 2), vr(vT + 3, 2), vr(W1 + j, 2))
                k("v_pk_mul_f32 %s, %s, %s op_sel_hi:[1,0]", vr(c + 16 + j, 2), vr(c + 16 + j, 2), vr(vT + 1, 2))
    def p2(self):
        k = self.k; T2, CO = 64, 72
        Lx, D, O, tmp = 136, 152, 184, 200
        k("s_lshl_b32 s%d, s%d, 6", sT, sN2); k("s_lshl_b32 s%d, s%d, 4", sT + 1, sWv); k("s_add_u32 s%d, s%d, s%d", sT, sT, sT + 1)
        if U_OFF: k("s_add_u32 s%d, s%d, 0x%x", sT, sT, U_OFF)
        for r in range(4):
            k("buffer_load_dwordx4 %s, v240, s[%d:%d], s%d offen%s", vr(Lx + 4 * r), sWS, sWS + 3, sT, self.LF)
            if r < 3: k("s_add_u32 s%d, s%d, 0x40000", sT, sT)
        n = self.pf(2)
        self.p2_coef()
        k("s_waitcnt vmcnt(%d)", n)
        self.mark("p2_loaded")
        for a in range(4):
            for b in range(a + 1, 4): k("v_swap_b32 v%d, v%d", Lx + 4 * a + b, Lx + 4 * b + a)
        for e in range(4):
            for p in range(2): self.mf(D + 8 * e + 4 * p, vr(Lx + 4 * e), ar(aF + 4 * p))
        for e in range(4): self.twiddle(D + 8 * e, D + 8 * e + 4, T2, T2 + 4, tmp + 8 * e, O + 4 * e)
        for e in (0, 2, 1, 3):
            for p in range(2): self.mf(D + 8 * e + 4 * p, ar(aF + 4 * p), vr(O + 4 * e))
        neg = " neg_lo:[1,0,0] neg_hi:[1,0,0]"
        for x in range(2):
            c = CO + 24 * x; Z = D + 8 * x; V = D + 8 * (2 + x); z = tmp + 8 * x; v = tmp + 8 * (2 + x)
            terms = [(z, [(c, Z, 0), (c + 4, Z + 4, 1), (c + 20, V, 1), (c + 16, V + 4, 1)]),
                     (z + 4, [(c, Z + 4, 0), (c + 4, Z, 0), (c + 16, V, 0), (c + 20, V + 4, 1)]),
                     (v, [(c + 8, V, 0), (c + 12, V + 4, 1), (c + 20, Z, 0), (c + 16, Z + 4, 0)]),
                     (v + 4, [(c + 8, V + 4, 0), (c + 12, V, 0), (c + 16, Z, 1), (c + 20, Z + 4, 0)])]
            for j in range(4):
                for h in (0, 2):
                    for d, tl in terms:
                        a, b, n = tl[j]
                        if j == 0: k("v_pk_mul_f32 %s, %s, %s", vr(d + h, 2), vr(a + h, 2), vr(b + h, 2))
                        else: k("v_pk_fma_f32 %s, %s, %s, %s%s", vr(d + h, 2), vr(a + h, 2), vr(b + h, 2), vr(d + h, 2), neg if n else "")
            for e in (x, 2 + x):
                for r in range(4): k("v_cvt_pk_bf16_f32 v%d, v%d, v%d", O + 4 * e + r, tmp + 8 * e + r, tmp + 8 * e + 4 + r)
        for e in (0, 2, 1, 3):
            for p in range(2): self.mf(D + 8 * e + 4 * p, vr(O + 4 * e), ar(aGm + 4 * p))
        for e in (0, 2, 1, 3): self.twiddle(D + 8 * e, D + 8 * e + 4, T2, T2 + 4, tmp + 8 * e, O + 4 * e, conj=True)
        for e in (0, 2, 1, 3):
            for p in range(2): self.mf(D + 8 * e + 4 * p, ar(aGm + 4 * p), vr(O + 4 * e))
        for r in range(4):
            for e in (0, 2, 1, 3): k("v_cvt_pk_bf16_f32 v%d, v%d, v%d", Lx + 4 * r + e, D + 8 * e + r, D + 8 * e + 4 + r)
            k("ds_write_b128 v241, %s offset:%d", vr(Lx + 4 * r), r * 1024)
        k("s_lshl_b32 s%d, s%d, 14", sT, sN2); k("s_add_u32 s%d, s%d, 0x%x", sT, sT, V_OFF)
        k("s_waitcnt lgkmcnt(0)"); k("s_barrier")
        for j in range(4): k("ds_read_b128 %s, v242 offset:%d", vr(O + 4 * j), j * 1024)
        for j in range(4):
            k("s_waitcnt lgkmcnt(%d)", 3 - j)
            k("buffer_store_dwordx4 %s, v%d, s[%d:%d], s%d offen offset:%d%s", vr(O + 4 * j), vG1x, sWS, sWS + 3, sT, j * 1024, self.SF)
    def p3_pre(self):
        k = self.k; T3, XI = 64, 80
        for c in range(2):
            for r in range(4):
                k("v_lshl_add_u32 v%d, v%d, 2, %d", vT, vG, r); k("v_lshl_add_u32 v%d, v%d, 1, %d", vT + 1, vI, c); k("v_mul_u32_u24 v%d, v%d, v%d", vT, vT, vT + 1)
                self.cs(T3 + 8 * c + r, T3 + 8 * c + 4 + r, vT, 1.0 / 512)
        for l in range(4):
            for r in range(4):
                k("v_lshlrev_b32 v%d, 16, v%d", XI + 8 * l + r, self.XA + 4 * l + r); k("v_and_b32 v%d, 0xffff0000, v%d", XI + 8 * l + 4 + r, self.XA + 4 * l + r)
        L = k.label("one")
        k("s_cmp_eq_u32 s%d, 0", sLay); k("s_cbranch_scc1 " + L)
        for l in range(4):
            for r in range(4):
                x = self.XB + 4 * l + r
                k("v_lshlrev_b32 v%d, 16, v%d", vT, x); k("v_and_b32 v%d, 0xffff0000, v%d", x, x)
                k("v_add_f32 v%d, v%d, v%d", XI + 8 * l + r, XI + 8 * l + r, vT); k("v_add_f32 v%d, v%d, v%d", XI + 8 * l + 4 + r, XI + 8 * l + 4 + r, x)
        k(L + ":")
        self.exch_addr(L_P3A, 241)
        k("v_add_u32 v245, 2048, v244")
        k("v_lshrrev_b32 v240, 2, v%d", vI); k("v_lshl_add_u32 v240, v%d, 6, v240", vG); k("v_lshlrev_b32 v240, 14, v240")
        k("v_and_b32 v246, 3, v0"); k("v_lshl_add_u32 v240, v246, 4, v240")
        k("s_mul_i32 s%d, s%d, 4224", sT, sWv); k("s_add_u32 s%d, s%d, 0x%x", sT, sT, L_P3B)
        k("v_lshlrev_b32 v246, 3, v%d", vI); k("v_lshl_add_u32 v246, v%d, 9, v246", vG); k("v_add_u32 v246, s%d, v246", sT)
        k("s_lshl_b32 s%d, s%d, 9", sT, sWv); k("s_add_u32 s%d, s%d, 0x%x", sT, sT, L_P3B)
        k("v_and_b32 v248, 7, v0"); k("v_mul_u32_u24 v247, 2112, v248"); k("v_lshrrev_b32 v249, 3, v0")
        k("v_lshl_add_u32 v247, v249, 4, v247"); k("v_add_u32 v247, s%d, v247", sT)
        k("v_lshlrev_b32 v248, 4, v248"); k("v_and_b32 v249, 3, v249"); k("v_lshl_add_u32 v248, v249, 8, v248")
        k("v_lshrrev_b32 v249, 5, v0"); k("v_lshl_add_u32 v248, v249, 14, v248")
        k("v_lshlrev_b32 v249, 3, v%d", vG)
    def p3(self, after_loads=None):
        k = self.k; T3, XI = 64, 80
        Lx, D, O, tmp = 112, 128, 160, 176
        k("s_lshl_b32 s%d, s%d, 6", sT, sN2); k("s_lshl_b32 s%d, s%d, 17", sT + 1, sWv); k("s_add_u32 s%d, s%d, s%d", sT, sT, sT + 1)
        k("s_add_u32 s%d, s%d, 0x%x", sT, sT, V_OFF)
        for u in range(2):
            for p in range(2):
                k("s_add_u32 s%d, s%d, 0x%x", sT + 1, sT, (32 * p + 4 * u) * 16384)
                k("buffer_load_dwordx4 %s, v240, s[%d:%d], s%d offen%s", vr(Lx + 8 * u + 4 * p), sWS, sWS + 3, sT + 1, self.LF)
        n = after_loads() if after_loads else 0
        k("s_waitcnt vmcnt(%d)", n)
        self.mark("p3_loaded")
        for u in range(2):
            b = Lx + 8 * u
            k("v_swap_b32 v%d, v%d", b + 1, b + 4); k("v_swap_b32 v%d, v%d", b + 3, b + 6)
        pos = {0: 0, 2: 2, 1: 4, 3: 6}
        for u in range(2):
            for e in range(4): self.mf(D + (u * 4 + e) * 4, ar(aCH + (2 if e >= 2 else 0), 2), vr(Lx + 8 * u + pos[e], 2), kk=16)
        for u in range(2):
            for e in range(4):
                d = D + (u * 4 + e) * 4
                for q in range(2): k("v_cvt_pk_bf16_f32 v%d, v%d, v%d", O + 8 * u + 2 * e + q, d + 2 * q, d + 2 * q + 1)
                if e == 1: k("ds_write_b128 v241, %s offset:%d", vr(O + 8 * u), u * 256)
                if e >= 2: k("ds_write_b64 v%d, %s offset:%d", 243 if (u, e) == (0, 2) else 242, vr(O + 8 * u + 2 * e, 2), (33 - 32 * u - (e - 2)) * 8)
        k("s_waitcnt lgkmcnt(0)"); k("s_barrier")
        for q in range(2):
            for t_ in range(2):
                for h in (0, 2): k("ds_read2_b32 %s, v%d offset0:%d offset1:%d", vr(Lx + (q * 2 + t_) * 4 + h, 2), 244 + t_, h * 32 + q, (h + 1) * 32 + q)
        for q in range(2):
            k("s_waitcnt lgkmcnt(%d)", 4 - 4 * q)
            for t_ in range(2):
                for c in range(2):
                    for p in range(2):
                        d = D + ((q * 2 + c) * 2 + p) * 4
                        m = aGm + 4 * p if c == 0 else aM1H + 8 * t_ + 4 * p
                        self.mf(d, vr(Lx + (q * 2 + t_) * 4), ar(m), d if t_ else "0")
        for l in range(4):
            c = l & 1
            self.twiddle(D + 8 * l, D + 8 * l + 4, T3 + 8 * c, T3 + 8 * c + 4, tmp + 8 * l, O + 4 * l, conj=True)
        for l in range(4):
            for p in range(2): self.mf(XI + 8 * l + 4 * p, ar(aGm + 4 * p), vr(O + 4 * l), XI + 8 * l + 4 * p)
        t = tmp
        self.sums(XI, t)
        self.reduce4(t, t + 2, t + 4, t + 6, 1.0 / 1024)
        k("v_rsq_f32 v%d, v%d", t + 2, t + 4)
        k("s_lshl_b32 s%d, s%d, 6", sT, sN2); k("s_lshl_b32 s%d, s%d, 4", sT + 1, sWv); k("s_add_u32 s%d, s%d, s%d", sT, sT, sT + 1)
        k("s_add_u32 s%d, s%d, 0x%x", sT, sT, ST_OFF)
        k("v_mul_f32 v253, v%d, v%d", t + 2, t + 4)
        k("v_mul_f32 v%d, -v%d, v%d", t + 3, t, t + 2)
        for q in range(2):
            k("v_readlane_b32 s%d, v%d, %d", sK + 2 * q, t + 2, 16 * q); k("v_readlane_b32 s%d, v%d, %d", sK + 2 * q + 1, t + 3, 16 * q)
        k("s_mov_b64 exec, 0x10001")
        k("buffer_store_dwordx2 v[252:253], v249, s[%d:%d], s%d offen%s", sWS, sWS + 3, sT, self.SF)
        setexec(k, 64)
        for q in range(2):
            for j in range(8):
                x = XI + 16 * q + 2 * j
                k("v_pk_fma_f32 %s, %s, s[%d:%d], s[%d:%d] op_sel:[0,0,1] op_sel_hi:[1,0,1]", vr(x, 2), vr(x, 2), sK + 2 * q, sK + 2 * q + 1, sK + 2 * q, sK + 2 * q + 1)
            for r in range(4):
                for c in range(2):
                    x = XI + 16 * q + 8 * c
                    k("v_cvt_pk_bf16_f32 v%d, v%d, v%d", O + 8 * q + 2 * r + c, x + r, x + 4 + r)
                k("ds_write_b64 v246, %s offset:%d", vr(O + 8 * q + 2 * r, 2), q * 2112 + r * 128)
        k("s_lshr_b32 s%d, s%d, 5", sT, sN2); k("s_lshl_b32 s%d, s%d, 19", sT, sT); k("s_lshl_b32 s%d, s%d, 17", sT + 1, sWv); k("s_add_u32 s%d, s%d, s%d", sT, sT, sT + 1)
        k("s_bfe_u32 s%d, s%d, 0x40001", sT + 1, sN2); k("s_lshl_b32 s%d, s%d, 10", sT + 1, sT + 1); k("s_add_u32 s%d, s%d, s%d", sT, sT, sT + 1)
        k("s_and_b32 s%d, s%d, 1", sT + 1, sN2); k("s_lshl_b32 s%d, s%d, 7", sT + 1, sT + 1); k("s_add_u32 s%d, s%d, s%d", sT, sT, sT + 1)
        k("s_add_u32 s%d, s%d, 0x%x", sT, sT, XL_OFF)
        k("s_waitcnt lgkmcnt(0)"); k("s_barrier")
        for j in range(4): k("ds_read_b128 %s, v247 offset:%d", vr(D + 4 * j), j * 128)
        for j in range(4):
            k("s_waitcnt lgkmcnt(%d)", 3 - j)
            k("buffer_store_dwordx4 %s, v248, s[%d:%d], s%d offen%s", vr(D + 4 * j), sWS, sWS + 3, sT, self.SF)
            if j < 3: k("s_add_u32 s%d, s%d, 0x8000", sT, sT)
    def g1_wdma(self, slot):
        o = ["s_add_u32 m0, s%d, 0x%x" % (sM0, L_G1 + slot * 16384)]
        for m in range(2):
            for j in range(2):
                s = sU if m else sG
                o.append("buffer_load_dwordx4 v%d, s[%d:%d], s%d offen offset:%d lds" % (vG1w + j, s, s + 3, sOw, m * 2048 + j * 1024))
        o.append("s_add_u32 s%d, s%d, %d" % (sOw, sOw, 32 * 7168))
        return o
    def g2_wdma(self, slot):
        o = ["s_add_u32 m0, s%d, 0x%x" % (sM0, L_G2 + slot * 16384)]
        for b in range(4):
            o.append("buffer_load_dwordx4 v%d, s[%d:%d], s%d offen offset:%d lds" % (vG2w + b, sD, sD + 3, sOd, b * 1024))
        o.append("s_add_u32 s%d, s%d, %d" % (sOd, sOd, 2 * 65536))
        return o
    def g1_prefetch(self):
        k = self.k
        k("s_mov_b32 s%d, 0", sOw)
        for s in range(4):
            for x in self.g1_wdma(s): k(x)
        return 16 + self.pf(3)
    def gemm_loop(self, NT, R, XD, wdma, xld, reads, mfmas, place, tail_extra=None):
        k = self.k; log = []
        for s in range(XD - 1):
            for x in xld(s): k(x)
            log += [("X", s)] * 4
        def need(tags):
            last = max([i for i, t in enumerate(log) if t in tags] + [-1])
            return min(63, len(log) - 1 - last)
        def step(t, emit=True):
            p = t & 1
            vm = need([("W", t + 1), ("X", t)])
            do_read = t < NT - 1
            rd = reads((t + 1) % R, 1 - p) if do_read else []
            dm = []
            if t + R < NT: dm += wdma(t % R); log.extend([("W", t + R)] * 4)
            elif tail_extra: dm += tail_extra(t + R - NT); log.extend([("E", t)] * 4)
            if t + XD - 1 < NT: dm += xld((t + XD - 1) % XD); log.extend([("X", t + XD - 1)] * 4)
            if not emit: return vm
            k("s_waitcnt vmcnt(%d) lgkmcnt(0)" % vm)
            if do_read: k("s_barrier")
            mf = mfmas(p, t % XD)
            slots = place(len(mf), rd, dm)
            for m, f in zip(mf, slots):
                k(m)
                for x in f: k(x)
            return vm
        U = R * XD // math.gcd(R, XD)
        if U % 2: U *= 2
        nloop = (NT - max(R, XD - 1)) // U
        save = list(log); vms = [step(tt, emit=False) for tt in range(nloop * U)]
        endlog = list(log); log[:] = save
        k("s_mov_b32 s%d, %d", sIt, nloop)
        L = k.label("loop")
        k(".p2align 6"); k(L + ":")
        for u in range(U):
            i = len(k.lines); step(u)
            k.lines[i] = "    s_waitcnt vmcnt(%d) lgkmcnt(0)" % min(vms[u::U])
        log[:] = endlog
        k("s_sub_u32 s%d, s%d, 1", sIt, sIt); k("s_cmp_lg_u32 s%d, 0", sIt); k("s_cbranch_scc1 " + L)
        for t in range(nloop * U, NT): step(t)
    ACC = 32
    def g1_acc(self, ft, m, st): return self.ACC + ((ft * 2 + m) * 4 + st) * 4
    def g1_reads(self, slot, p):
        o = []
        for ft in range(7):
            for m in range(2):
                for h in range(2):
                    r = p * 56 + (ft * 2 + m) * 4 + 2 * h
                    o.append("ds_read_b64_tr_b16 %s, v%d offset:%d" % (ar(r, 2), vG1r, slot * 16384 + h * 8192 + m * 2048 + ft * 32))
        return o
    def g1_pre(self):
        k = self.k
        for x in self.g1_reads(0, 0): k(x)
        for i in range(0, 224, 2): k("v_mov_b64 %s, 0", vr(self.ACC + i, 2))
        k("s_lshl_b32 s%d, s%d, 19", sOx, sMT); k("s_add_u32 s%d, s%d, 0x%x", sOx, sOx, XL_OFF)
        k("s_mul_i32 s%d, s%d, %d", sOd, sKH, 1792 * 2048)
    def g1(self):
        k = self.k; o = self.opt
        def xf(p, st): return 112 + p * 16 + st * 4
        def xld(p):
            return ["buffer_load_dwordx4 %s, v%d, s[%d:%d], s%d offen offset:%d%s" % (ar(xf(p, j)), vG1x, sWS, sWS + 3, sOx, j * 1024, self.LF) for j in range(4)] + \
                   ["s_add_u32 s%d, s%d, 0x4000" % (sOx, sOx)]
        def mfmas(p, px):
            r = []
            for a_ in range(14):
                for b in range(4):
                    st = b if a_ % 2 == 0 else 3 - b
                    a = self.g1_acc(a_ // 2, a_ % 2, st)
                    r.append("v_mfma_f32_16x16x32_bf16 %s, %s, %s, %s" % (vr(a), ar(p * 56 + a_ * 4), ar(xf(px, st)), vr(a)))
            return r
        def place(n, rd, dm):
            slots = [[] for _ in range(n)]; used = set(); pos = 1
            for x in dm:
                if x.startswith("buffer"): slots[pos].append(x); used.add(pos); pos += 6
                else: slots[pos - 1].append(x)
            pos = 0
            for x in rd:
                while pos in used: pos += 1
                slots[pos].append(x); pos += 1
            return slots
        self.gemm_loop(32, 4, 4, self.g1_wdma, xld, self.g1_reads, mfmas, place, tail_extra=self.g2_wdma)
        self.mark("g1_loop")
        self.resid_loads()
        k("v_lshlrev_b32 v%d, 4, v0", vT)
        k("s_lshl_b32 s%d, s%d, 2", sT, sMT); k("s_add_u32 s%d, s%d, s%d", sT, sT, sWv); k("s_mul_i32 s%d, s%d, 448", sT, sT)
        k("s_mul_i32 s%d, s%d, 7", sT + 1, sNT); k("s_add_u32 s%d, s%d, s%d", sT, sT, sT + 1)
        k("s_lshl_b32 s%d, s%d, 10", sT, sT); k("s_add_u32 s%d, s%d, 0x%x", sT, sT, H_OFF)
        k("s_add_u32 s%d, s%d, %d", sT + 1, sT, 224 * 1024)
        for ft in range(7):
            for pr in range(2):
                for q in range(2):
                    g = self.g1_acc(ft, 0, 2 * pr + q); u = self.g1_acc(ft, 1, 2 * pr + q)
                    for h in (0, 2): k("v_pk_mul_f32 %s, %s, %s", vr(g + h, 2), vr(g + h, 2), vr(u + h, 2))
            for pr in range(2):
                t4 = self.g1_acc(ft, 1, 2 * pr)
                for q in range(2):
                    g = self.g1_acc(ft, 0, 2 * pr + q)
                    for h in (0, 1): k("v_cvt_pk_bf16_f32 v%d, v%d, v%d", t4 + 2 * q + h, g + 2 * h, g + 2 * h + 1)
            for pr in range(2):
                t4 = self.g1_acc(ft, 1, 2 * pr)
                k("v_permlane16_swap_b32 v%d, v%d", t4, t4 + 2); k("v_permlane16_swap_b32 v%d, v%d", t4 + 1, t4 + 3)
                k("buffer_store_dwordx4 %s, v%d, s[%d:%d], s%d offen offset:%d%s", vr(t4), vT, sWS, sWS + 3, sT + pr, (ft % 4) * 1024, self.SF)
            if ft == 3: k("s_add_u32 s%d, s%d, 4096", sT, sT); k("s_add_u32 s%d, s%d, 4096", sT + 1, sT + 1)
    def g2_acc(self, t, st): return self.ACC + (t * 2 + st) * 4
    def g2_wf(self, p, kk, t): return 96 + ((p * 2 + kk) * 8 + t) * 4
    def g2_reads(self, slot, p):
        o = []
        for kk in range(2):
            for t in range(8):
                for h in range(2):
                    o.append("ds_read_b64_tr_b16 %s, v%d offset:%d" % (vr(self.g2_wf(p, kk, t) + 2 * h, 2), vG2r + (t & 3), slot * 16384 + h * 8192 + kk * 2048 + (t >> 2) * 1024))
        return o
    def g2_pre(self):
        k = self.k
        for x in self.g2_reads(0, 0): k(x)
        k("s_lshl_b32 s%d, s%d, 2", sT, sMT2); k("s_add_u32 s%d, s%d, s%d", sT, sT, sWv)
        k("s_lshl_b32 s%d, s%d, 1", sT, sT); k("s_add_u32 s%d, s%d, s%d", sT, sT, sKH)
        k("s_mul_i32 s%d, s%d, %d", sOh, sT, 112 * 1024); k("s_add_u32 s%d, s%d, 0x%x", sOh, sOh, H_OFF)
        for t in range(8):
            for st in range(2):
                a = self.g2_acc(t, st); r = 64 + (t * 2 + st) * 2; mu = vT + 5 + 2 * st
                k("v_accvgpr_read_b32 v%d, a%d", a + 1, r); k("v_accvgpr_read_b32 v%d, a%d", a + 3, r + 1)
                k("v_lshlrev_b32 v%d, 16, v%d", a, a + 1); k("v_and_b32 v%d, 0xffff0000, v%d", a + 1, a + 1)
                k("v_lshlrev_b32 v%d, 16, v%d", a + 2, a + 3); k("v_and_b32 v%d, 0xffff0000, v%d", a + 3, a + 3)
                for h in (0, 2): k("v_pk_fma_f32 %s, %s, %s, %s op_sel:[0,1,0] op_sel_hi:[1,1,0]", vr(a + h, 2), vr(a + h, 2), vr(mu, 2), vr(mu, 2))
    def resid_loads(self):
        k = self.k
        k("v_lshrrev_b32 v%d, 1, v%d", vT + 2, vG); k("v_lshlrev_b32 v%d, 8, v%d", vT + 2, vT + 2); k("v_lshl_add_u32 v%d, v%d, 4, v%d", vT + 2, vI, vT + 2)
        k("v_and_b32 v%d, 1, v%d", vT + 3, vG); k("v_lshl_add_u32 v%d, v%d, 3, v%d", vT + 2, vT + 3, vT + 2)
        k("s_cmp_eq_u32 s%d, 0", sKH); k("s_cselect_b32 s%d, 0, 0x80000000", sT)
        k("v_or_b32 v%d, s%d, v%d", vT + 2, sT, vT + 2)
        k("v_lshlrev_b32 v%d, 3, v%d", vT + 3, vI); k("v_or_b32 v%d, s%d, v%d", vT + 3, sT, vT + 3)
        k("s_lshl_b32 s%d, s%d, 2", sT, sMT2); k("s_add_u32 s%d, s%d, s%d", sT, sT, sWv); k("s_lshl_b32 s%d, s%d, 8", sT, sT); k("s_add_u32 s%d, s%d, 0x%x", sT, sT, ST_OFF)
        for st in range(2): k("buffer_load_dwordx2 %s, v%d, s[%d:%d], s%d offen offset:%d%s", vr(vT + 5 + 2 * st, 2), vT + 3, sWS, sWS + 3, sT, st * 128, self.LF)
        k("s_lshl_b32 s%d, s%d, 5", sT, sMT); k("s_lshl_b32 s%d, s%d, 2", sT + 1, sNT2); k("s_add_u32 s%d, s%d, s%d", sT, sT, sT + 1)
        k("s_lshl_b32 s%d, s%d, 4", sT, sT); k("s_and_b32 s%d, s%d, 1", sT + 1, sMT2); k("s_lshl_b32 s%d, s%d, 3", sT + 1, sT + 1); k("s_add_u32 s%d, s%d, s%d", sT, sT, sT + 1)
        k("s_lshl_b32 s%d, s%d, 1", sT + 1, sWv); k("s_add_u32 s%d, s%d, s%d", sT, sT, sT + 1); k("s_lshl_b32 s%d, s%d, 10", sT, sT)
        k("s_add_u32 s%d, s%d, 0x%x", sT, sT, XL_OFF)
        for t in range(8):
            for st in range(2):
                k("buffer_load_dwordx2 %s, v%d, s[%d:%d], s%d offen offset:%d%s", ar(64 + (t * 2 + st) * 2, 2), vT + 2, sWS, sWS + 3, sT, (t & 1) * 512 + st * 1024, self.LF)
            if t % 2 == 1 and t < 7: k("s_add_u32 s%d, s%d, 16384", sT, sT)
    def g2(self):
        k = self.k; RT = 224
        def hf(p, kk, st): return ((p * 2 + kk) * 2 + st) * 4
        def hld(p):
            return ["buffer_load_dwordx4 %s, v%d, s[%d:%d], s%d offen offset:%d%s" % (ar(hf(p, kk, st)), vG2h, sWS, sWS + 3, sOh, kk * 2048 + st * 256, self.LF)
                    for kk in range(2) for st in range(2)] + ["s_add_u32 s%d, s%d, 4096" % (sOh, sOh)]
        def mfmas(p, ph):
            r = []
            for kk in range(2):
                for t in range(8):
                    for st in ((0, 1) if t % 2 == 0 else (1, 0)):
                        a = self.g2_acc(t, st)
                        r.append("v_mfma_f32_16x16x32_bf16 %s, %s, %s, %s" % (vr(a), vr(self.g2_wf(p, kk, t)), ar(hf(ph, kk, st)), vr(a)))
            return r
        def place(n, rd, dm):
            slots = [[] for _ in range(n)]
            for i, x in enumerate(rd): slots[i * 26 // len(rd)].append(x)
            nb = max(1, len([x for x in dm if x.startswith("buffer")])); j = 0
            for x in dm:
                pos = min(n - 1, 1 + j * (n - 1) // nb)
                if x.startswith("buffer"): slots[pos].append(x); j += 1
                elif x.startswith("s_add_u32 m0"): slots[pos - 1].insert(0, x)
                else: slots[min(n - 1, 1 + (j - 1) * (n - 1) // nb)].append(x)
            return slots
        self.gemm_loop(28, 4, 4, self.g2_wdma, hld, self.g2_reads, mfmas, place)
        self.mark("g2_loop")
        P = 272
        k("v_mul_u32_u24 v%d, %d, v%d", vT, P, vI); k("v_lshl_add_u32 v%d, v%d, 3, v%d", vT, vG, vT)
        k("s_mul_i32 s%d, s%d, %d", sT, sWv, 32 * P)
        k("v_add_u32 v%d, s%d, v%d", vT, sT, vT)
        k("v_mul_u32_u24 v%d, %d, v%d", vT + 1, P, vG); k("v_lshl_add_u32 v%d, v%d, 4, v%d", vT + 1, vI, vT + 1); k("v_add_u32 v%d, s%d, v%d", vT + 1, sT, vT + 1)
        k("v_lshlrev_b32 v%d, 19, v%d", vT + 2, vG); k("v_lshl_add_u32 v%d, v%d, 4, v%d", vT + 2, vI, vT + 2)
        k("v_add_u32 v%d, 0x200000, v%d", vT + 3, vT + 2)
        k("s_lshl_b32 s%d, s%d, 2", sT, sMT2); k("s_add_u32 s%d, s%d, s%d", sT, sT, sWv); k("s_lshl_b32 s%d, s%d, 13", sT, sT)
        k("s_lshl_b32 s%d, s%d, 8", sT + 1, sNT2); k("s_add_u32 s%d, s%d, s%d", sT, sT, sT + 1)
        k("s_lshl_b32 s%d, s%d, 22", sT + 1, sKH); k("s_add_u32 s%d, s%d, s%d", sT, sT, sT + 1)
        k("s_add_u32 s%d, s%d, 0x%x", sT, sT, PART_OFF)
        for st in range(2):
            for t in range(8):
                a = self.g2_acc(t, st)
                k("v_cvt_pk_bf16_f32 v%d, v%d, v%d", a, a, a + 1); k("v_cvt_pk_bf16_f32 v%d, v%d, v%d", a + 1, a + 2, a + 3)
                k("ds_write_b64 v%d, %s offset:%d", vT, vr(a, 2), st * 16 * P + t * 32)
            for j in range(4 * st, 4 * st + 4): k("ds_read_b128 %s, v%d offset:%d", vr(96 + 4 * j), vT + 1, j * 4 * P)
            for j in range(4 * st, 4 * st + 4):
                k("s_waitcnt lgkmcnt(%d)", 3 - j % 4)
                k("buffer_store_dwordx4 %s, v%d, s[%d:%d], s%d offen offset:%d%s", vr(96 + 4 * j), vT + 2 + (j & 1), sWS, sWS + 3, sT, ((j >> 1) % 2) * 2048, self.SF)
            if st == 0: k("s_add_u32 s%d, s%d, 4096", sT, sT)
    def final(self):
        k = self.k
        k("v_lshlrev_b32 v%d, 4, v0", vT)
        k("s_lshl_b32 s%d, s%d, 20", sT, sWv); k("s_lshl_b32 s%d, s%d, 11", sT + 1, sN2); k("s_add_u32 s%d, s%d, s%d", sT, sT, sT + 1)
        k("s_add_u32 s%d, s%d, 0x80000", sT + 1, sT)
        k("s_add_u32 s%d, s%d, 0x400000", sT + 2, sT); k("s_add_u32 s%d, s%d, 0x480000", sT + 3, sT)
        for q in range(2):
            for h in range(2):
                for s in range(2):
                    k("buffer_load_dwordx4 %s, v%d, s[%d:%d], s%d offen offset:%d%s", vr(32 + ((q * 2 + h) * 2 + s) * 4), vT, sXS, sXS + 3, sT + 2 * s + q, h * 1024, self.LF)
        for q in range(2):
            for h in range(2):
                a = 32 + (q * 2 + h) * 8; b = a + 4
                k("s_waitcnt vmcnt(%d)", 6 - (q * 2 + h))
                for j in range(4):
                    k("v_lshlrev_b32 v64, 16, v%d", a + j); k("v_and_b32 v65, 0xffff0000, v%d", a + j)
                    k("v_lshlrev_b32 v66, 16, v%d", b + j); k("v_and_b32 v67, 0xffff0000, v%d", b + j)
                    k("v_pk_add_f32 v[64:65], v[64:65], v[66:67]")
                    k("v_cvt_pk_bf16_f32 v%d, v64, v65", a + j)
                k("buffer_store_dwordx4 %s, v%d, s[%d:%d], s%d offen offset:%d", vr(a), vT, sOUT, sOUT + 3, sT + q, h * 1024)
    def flag(self, s, off, sgrp=None):
        k = self.k
        k("s_add_u32 s%d, s%d, 0x%x", s, sFo, off)
        if sgrp is not None: k("s_lshl_b32 s%d, s%d, 11", sgrp, sgrp); k("s_add_u32 s%d, s%d, s%d", s, s, sgrp)
    def build(self):
        k = self.k; o = self.opt
        stop = o.get("stop")
        def stopat(n):
            if stop == n: k("s_branch L_fin")
        S1, R1 = 16, 16; S3, R3 = 2, 4; S4, R4 = 1, 2; S5, R5 = 1, 2
        self.prologue()
        k("L_layer:")
        self.p1_addr(); self.p1_pre()
        k("s_cmp_lg_u32 s%d, 0", sLay); k("s_cbranch_scc1 L_p1b")
        k("s_waitcnt vmcnt(%d)", 1 + (o.get("wtouch", 1) == 0) + self.npf0)
        if o.get("wtouch", 1) == 1: self.w_touch()
        self.pf(1)
        k("s_branch L_p1")
        k("L_p1b:")
        k("s_lshr_b32 s%d, s%d, 4", sT + 1, sN2); self.flag(sT, FL_B5 - FL_LSTRIDE & 0xffffffff, sT + 1)
        k("s_and_b32 s%d, s%d, %d", sT + 1, sN2, R5 - 1)
        self.wait(sT, S5, sT + 1, 16 // S5)
        self.mark("b5")
        k("s_cmp_eq_u32 s%d, 2", sLay); k("s_cbranch_scc1 L_final")
        self.p1_loads(0); self.p1_loads(1)
        k("s_waitcnt vmcnt(8)")
        k("L_p1:")
        self.p1()
        self.mark("p1_st")
        L = k.label("clr"); LP = k.label("clrp")
        k("s_or_b32 s%d, s%d, s%d", sT, sLay, sWv); k("s_cmp_lg_u32 s%d, 0", sT); k("s_cbranch_scc1 " + L)
        k("v_mov_b32 v%d, 0", vT); k("s_mov_b32 s%d, 0", sT)
        k(LP + ":")
        k("global_load_dword v%d, v%d, s[76:77] sc1", vT + 1, vT)
        k("s_add_u32 s%d, s%d, 1", sT, sT); k("s_cmp_ge_u32 s%d, 0x40000", sT); k("s_cbranch_scc1 " + L)
        k("s_waitcnt vmcnt(0)")
        k("v_cmp_ne_u32 vcc, 1, v%d", vT + 1); k("s_cbranch_vccnz " + LP)
        k(L + ":")
        self.mark("p1_done")
        self.flag(sT, FL_B1); k("s_lshr_b32 s%d, s2, 4", sT + 1)
        self.arrive(sT, S1, R1, sT + 1)
        self.mark("a1")
        stopat(1)
        L = k.label("once"); L2 = k.label("nsp")
        k("s_cmp_lg_u32 s%d, 0", sLay); k("s_cbranch_scc1 " + L)
        self.w_loads(False)
        k("s_cmp_ge_u32 s2, 8"); k("s_cbranch_scc1 " + L2)
        self.w_loads(True)
        k(L2 + ":")
        self.g_addr()
        k(L + ":")
        self.p2_pre()
        L = k.label("w0")
        k("s_cmp_eq_u32 s%d, 0", sWv); k("s_cbranch_scc1 " + L)
        k("s_waitcnt vmcnt(0)")
        k(L + ":")
        self.pf("1s")
        self.flag(sT, FL_B1); k("s_and_b32 s%d, s2, %d", sT + 1, R1 - 1)
        self.wait(sT, S1, sT + 1, 256 // S1)
        self.mark("b1")
        self.p2()
        self.mark("p2_done")
        self.flag(sT, FL_B2); k("s_lshr_b32 s%d, s2, 4", sT + 1)
        self.arrive(sT, S1, R1, sT + 1)
        self.mark("a2")
        stopat(2)
        self.pf("2s")
        L = k.label("once")
        k("s_cmp_lg_u32 s%d, 0", sLay); k("s_cbranch_scc1 " + L)
        self.consts(True)
        k(L + ":")
        self.p3_pre()
        self.flag(sT, FL_B2); k("s_and_b32 s%d, s2, %d", sT + 1, R1 - 1)
        self.wait(sT, S1, sT + 1, 256 // S1)
        self.mark("b2")
        self.p3(self.g1_prefetch)
        self.mark("p3_done")
        k("s_lshr_b32 s%d, s%d, 5", sT + 1, sN2); self.flag(sT, FL_B3, sT + 1); k("s_and_b32 s%d, s%d, %d", sT + 1, sN2, S3 - 1)
        self.arrive(sT, S3, R3, sT + 1)
        self.mark("a3")
        stopat(3)
        self.pf("3s")
        self.g1_pre()
        k("s_mov_b32 s%d, s%d", sT + 1, sMT); self.flag(sT, FL_B3, sT + 1); k("s_and_b32 s%d, s%d, %d", sT + 1, sNT, R3 - 1)
        self.wait(sT, S3, sT + 1, 32 // S3)
        self.mark("b3")
        self.g1()
        self.mark("g1_done")
        k("s_lshr_b32 s%d, s%d, 4", sT + 1, sNT); k("s_lshl_b32 s%d, s%d, 1", sT + 2, sMT); k("s_add_u32 s%d, s%d, s%d", sT + 1, sT + 1, sT + 2)
        self.flag(sT, FL_B4, sT + 1)
        self.arrive(sT, S4, R4, None)
        self.mark("a4")
        stopat(4)
        self.g2_pre()
        k("s_and_b32 s%d, s%d, 14", sT + 1, sMT2); k("s_add_u32 s%d, s%d, s%d", sT + 1, sT + 1, sKH)
        self.flag(sT, FL_B4, sT + 1); k("s_and_b32 s%d, s%d, %d", sT + 1, sNT2, R4 - 1)
        self.wait(sT, S4, sT + 1, 16 // S4)
        self.mark("b4")
        self.g2()
        self.mark("g2_done")
        k("s_mov_b32 s%d, s%d", sT + 1, sMT2); self.flag(sT, FL_B5, sT + 1)
        self.arrive(sT, S5, R5, None)
        self.mark("a5")
        stopat(5)
        k("s_add_u32 s%d, s%d, 0x%x", sXS, sWS, PART_OFF); k("s_addc_u32 s%d, s%d, 0", sXS + 1, sWS + 1); k("s_mov_b32 s%d, 0x800000", sXS + 2)
        k("s_add_u32 s%d, s%d, 0x%x", sWS, sWS, LSTRIDE); k("s_addc_u32 s%d, s%d, 0", sWS + 1, sWS + 1)
        k("s_add_u32 s%d, s%d, 0x%x", sFo, sFo, FL_LSTRIDE)
        k("s_cmp_eq_u32 s%d, 0", sLay); k("s_cselect_b32 s%d, 1, 2", sLay)
        k("s_cbranch_scc0 L_p1b")
        k("s_branch L_layer")
        k("L_final:")
        self.final()
        k("L_fin:")
        if o.get("padat"): k("s_waitcnt vmcnt(0)"); self.mark("fin")
        if o.get("stamp"):
            k("s_waitcnt vmcnt(0)")
            k("s_mov_b32 s%d, 1", sLay); self.nmark = 31; self.mark("end")
            srd(k, sTM, 78, 1 << 20, 240 << 20)
            k("s_lshl_b32 s%d, s2, 10", sT); k("s_lshl_b32 s%d, s%d, 8", sT + 1, sWv); k("s_add_u32 s%d, s%d, s%d", sT, sT, sT + 1)
            k("v_lshlrev_b32 v%d, 2, v0", vT)
            k("buffer_store_dword v31, v%d, s[%d:%d], s%d offen", vT, sTM, sTM + 3, sT)
        k("L_end:")
        k("s_endpgm")
        k.lines = hazard.fix(k.lines)
        return k

HEADER = open("interleave_layers__spectral_gfnet__glu_gated_bilinear__prompt.s.ref").read().split("; Override")[0]
def generate(path, opt):
    g = Gen(opt); k = g.build()
    o = [HEADER.rstrip("\n")]
    if opt.get("stamp"): o.append("; marks " + repr(g.marknames))
    o.append("; @launch grid=(256,1,1) block=(256,1,1) lds=%d" % LDS_BYTES)
    o += ['.amdgcn_target "amdgcn-amd-amdhsa--gfx950"', ".text", k.text(), '.section .rodata,"a"', k.desc()]
    open(path, "w").write("\n".join(o))
if __name__ == "__main__":
    generate(sys.argv[1], eval(sys.argv[2]) if len(sys.argv) > 2 else {})
```

```python
import sys, math
sys.path.insert(0, "tools")
from asmgen import *
import hazard
KNAME = "interleave_layers__spectral_gfnet__glu_gated_bilinear__prompt_kernel"
U_OFF, V_OFF, XL_OFF, PART_OFF, H_OFF, ST_OFF = 0x0, 0x400000, 0x800000, 0xC00000, 0x1400000, 0x2200000
LSTRIDE = 0x2400000
FL_OFF = 2 * LSTRIDE
FL_B1, FL_B2, FL_B3, FL_B4, FL_B5, FL_LSTRIDE = 0, 0x8000, 0x10000, 0x14000, 0x1C000, 0x24000
L_G1, L_G2 = 0, 0x10000
L_P1, L_P2, L_P3A, L_P3B = 0x10000, 0x1C000, 0x18000, 0x10000
L_W2 = L_P3A
L_W = 0x20000
L_X = 0x24000
LDS_BYTES = 0x28000
sWS, sXS, sG, sU, sD, sOUT, sFL, sTM = 4, 8, 12, 16, 20, 24, 28, 32
sN2, sWv, sLay = 40, 41, 42
sMT, sNT, sMT2, sNT2, sKH = 43, 44, 45, 46, 47
sFo = 48
sOx, sOw, sOh, sOd, sM0, sIt = 49, 50, 51, 52, 53, 54
sPo = 39
sDa, sDb, sOe = 36, 37, 38
sT = 56
sK = 84
vL, vI, vG = 0, 1, 2
vG1r, vG1x, vG1w = 3, 4, 5
vG2r, vG2w, vG2h = 7, 11, 15
vL128 = 16
vT = 17
aF, aGm, aM1, aM1H, aC, aCH, aW = 176, 184, 192, 208, 224, 228, 232
EPS = 1e-5
import struct
def fl(x): return "0x%x" % struct.unpack("<I", struct.pack("<f", x))[0]
def vr(b, n=4): return "v[%d:%d]" % (b, b + n - 1)
def ar(b, n=4): return "a[%d:%d]" % (b, b + n - 1)
def setexec(k, n):
    if n == 64: k("s_mov_b64 exec, -1"); return
    m = (1 << n) - 1
    k("s_mov_b32 exec_lo, 0x%x" % (m & 0xffffffff)); k("s_mov_b32 exec_hi, 0x%x" % (m >> 32))

class Gen:
    def __init__(self, opt):
        self.opt = opt
        self.k = Kern(KNAME, vgprs=256, agprs=256, sgprs=102)
        self.nmark = 0
        self.SF = " sc1"
        self.LF = opt.get("lf", " sc1")
    def mark(self, name):
        pad = self.opt.get("padat")
        if pad:
            k = self.k
            if name == "start": k("s_memrealtime s[100:101]"); k("s_waitcnt lgkmcnt(0)")
            if name == pad[0]:
                L = k.label("pad"); LX = k.label("padx")
                k("s_cmp_lg_u32 s%d, %d", sLay, pad[1]); k("s_cbranch_scc1 " + LX)
                k(L + ":"); k("s_memrealtime s[96:97]"); k("s_waitcnt lgkmcnt(0)")
                k("s_sub_u32 s96, s96, s100"); k("s_cmp_lt_u32 s96, %d", int(pad[2] * 100)); k("s_cbranch_scc1 " + L)
                k(LX + ":")
        if not self.opt.get("stamp"): return
        k = self.k; i = self.nmark; self.nmark += 1
        self.marknames = getattr(self, "marknames", []) + [name]
        k("s_memrealtime s[96:97]"); k("s_waitcnt lgkmcnt(0)")
        k("s_lshl_b32 s98, s%d, 5", sLay); k("s_add_u32 s98, s98, %d", i); k("s_and_b32 m0, s98, 63")
        k("s_nop 0"); k("v_writelane_b32 v31, s96, m0")
    def cs(self, dc, ds, vint, scale, add=None):
        k = self.k; t = vT + 13
        k("v_cvt_f32_u32 v%d, v%d", t, vint)
        k("v_mul_f32 v%d, %s, v%d", t, fl(scale), t)
        if add is not None: k("v_add_f32 v%d, v%d, v%d", t, add, t)
        k("v_fract_f32 v%d, v%d", t, t)
        k("v_cos_f32 v%d, v%d", dc, t); k("v_sin_f32 v%d, v%d", ds, t)
    def pack_to_a(self, a, lo, hi, neglo=False, neghi=False):
        k = self.k; t = vT + 12
        k("v_cvt_pk_bf16_f32 v%d, %sv%d, %sv%d", t, "-" if neglo else "", lo, "-" if neghi else "", hi)
        k("v_accvgpr_write_b32 a%d, v%d", a, t)
    vP, vQ = 13, 28
    def arrive(self, sbase, S, R, sshard):
        k = self.k
        if sshard is not None:
            k("s_lshl_b32 s%d, s%d, 7", sT + 3, sshard); k("s_add_u32 s%d, s%d, s%d", sT + 3, sT + 3, sbase)
        else: k("s_mov_b32 s%d, s%d", sT + 3, sbase)
        k("v_mul_u32_u24 v%d, %d, v%d", vT, S, vL128); k("v_mov_b32 v%d, 1", vT + 1)
        k("s_waitcnt vmcnt(0)"); k("s_barrier")
        L = k.label("arr")
        k("s_cmp_lg_u32 s%d, 0", sWv); k("s_cbranch_scc1 " + L)
        setexec(k, R)
        k("buffer_atomic_add v%d, v%d, s[%d:%d], s%d offen sc1", vT + 1, vT, sFL, sFL + 3, sT + 3)
        setexec(k, 64)
        k(L + ":")
    def watch(self, sbase, S, srep, count):
        k = self.k
        if srep is not None:
            k("s_mul_i32 s%d, s%d, %d", sPo, srep, S * 128); k("s_add_u32 s%d, s%d, s%d", sPo, sPo, sbase)
        else: k("s_mov_b32 s%d, s%d", sPo, sbase)
        self.wS, self.wcount, self.npoll = S, count, 0
    def poll(self, level=1):
        if level > self.opt.get("polls", 2): return
        k = self.k; L = k.label("pl"); v = self.vP + self.npoll; self.npoll += 1
        k("s_cmp_lg_u32 s%d, 0", sWv); k("s_cbranch_scc1 " + L)
        k("v_mov_b32 v%d, 0", v); setexec(k, self.wS)
        k("buffer_atomic_add v%d, v%d, s[%d:%d], s%d offen sc0 sc1", v, vL128, sFL, sFL + 3, sPo)
        setexec(k, 64)
        k(L + ":")
    def wait(self):
        k = self.k; S, count, n = self.wS, self.wcount, self.npoll
        L = k.label("wdone"); LP = k.label("poll"); LX = k.label("pollx")
        k("s_cmp_lg_u32 s%d, 0", sWv); k("s_cbranch_scc1 " + L)
        k("s_mov_b32 s%d, 0", sT + 2)
        setexec(k, S)
        k(LP + ":")
        k("v_mov_b32 v%d, 0", self.vQ)
        k("buffer_atomic_add v%d, v%d, s[%d:%d], s%d offen sc0 sc1", self.vQ, vL128, sFL, sFL + 3, sPo)
        for i in range(n):
            k("s_waitcnt vmcnt(%d)", n - i)
            k("v_cmp_ne_u32 vcc, %d, v%d", count, self.vP + i)
            k("s_cbranch_vccz " + LX)
        k("s_add_u32 s%d, s%d, 1", sT + 2, sT + 2); k("s_cmp_ge_u32 s%d, 0x40000", sT + 2); k("s_cbranch_scc1 " + LX)
        k("s_waitcnt vmcnt(0)")
        k("v_cmp_ne_u32 vcc, %d, v%d", count, self.vQ)
        k("s_cbranch_vccnz " + LP)
        k(LX + ":")
        setexec(k, 64)
        k(L + ":")
        k("s_barrier")
    def reduce4(self, p, q, r, s, c2):
        k = self.k
        k("v_permlane16_swap_b32 v%d, v%d", p, q); k("v_permlane16_swap_b32 v%d, v%d", r, s)
        k("v_add_f32 v%d, v%d, v%d", p, p, q); k("v_add_f32 v%d, v%d, v%d", r, r, s)
        k("v_permlane32_swap_b32 v%d, v%d", p, r)
        k("v_add_f32 v%d, v%d, v%d", r, p, r)
        for sh in (8, 4, 2, 1): k("v_add_f32_dpp v%d, v%d, v%d row_ror:%d row_mask:0xf bank_mask:0xf", r, r, r, sh)
        k("v_mov_b32 v%d, v%d", p, r)
        k("v_permlane32_swap_b32 v%d, v%d", p, r)
        k("v_mul_f32 v%d, %s, v%d", p, fl(1.0 / 1024), p)
        k("v_mul_f32 v%d, %s, v%d", r, fl(c2), r)
        k("v_fma_f32 v%d, -v%d, v%d, v%d", r, p, p, r)
        k("v_max_f32 v%d, 0, v%d", r, r)
        k("v_add_f32 v%d, %s, v%d", r, fl(EPS), r)
    def sums(self, base, t):
        k = self.k
        for j in range(8):
            for q in range(2):
                b = base + 16 * q + 2 * j
                if j == 0: k("v_pk_mul_f32 %s, %s, %s", vr(t + 4 + 2 * q, 2), vr(b, 2), vr(b, 2))
                else: k("v_pk_fma_f32 %s, %s, %s, %s", vr(t + 4 + 2 * q, 2), vr(b, 2), vr(b, 2), vr(t + 4 + 2 * q, 2))
                if j == 1: k("v_pk_add_f32 %s, %s, %s", vr(t + 2 * q, 2), vr(b - 2, 2), vr(b, 2))
                elif j > 1: k("v_pk_add_f32 %s, %s, %s", vr(t + 2 * q, 2), vr(t + 2 * q, 2), vr(b, 2))
        for j in range(4): k("v_add_f32 v%d, v%d, v%d", t + 2 * j, t + 2 * j, t + 2 * j + 1)
    def twiddle(self, re, im, tc, ts, tmp, out, conj=False, e=None):
        k = self.k
        for h in (0, 2):
            if e is None:
                k("v_pk_mul_f32 %s, %s, %s", vr(tmp + h, 2), vr(re + h, 2), vr(tc + h, 2))
                k("v_pk_mul_f32 %s, %s, %s", vr(tmp + 4 + h, 2), vr(im + h, 2), vr(tc + h, 2))
            else:
                k("v_pk_fma_f32 %s, %s, %s, %s op_sel_hi:[1,1,0]", vr(tmp + h, 2), vr(re + h, 2), vr(tc + h, 2), vr(e, 2))
                k("v_pk_fma_f32 %s, %s, %s, %s op_sel_hi:[1,1,0]", vr(tmp + 4 + h, 2), vr(im + h, 2), vr(tc + h, 2), vr(e, 2))
        neg = " neg_lo:[1,0,0] neg_hi:[1,0,0]"
        for h in (0, 2):
            k("v_pk_fma_f32 %s, %s, %s, %s%s", vr(tmp + h, 2), vr(im + h, 2), vr(ts + h, 2), vr(tmp + h, 2), neg if conj else "")
            k("v_pk_fma_f32 %s, %s, %s, %s%s", vr(tmp + 4 + h, 2), vr(re + h, 2), vr(ts + h, 2), vr(tmp + 4 + h, 2), "" if conj else neg)
        for r in range(4): k("v_cvt_pk_bf16_f32 v%d, v%d, v%d", out + r, tmp + r, tmp + 4 + r)
    def mf(self, d, a, b, c="0", kk=32):
        self.k("v_mfma_f32_16x16x%d_bf16 %s, %s, %s, %s", kk, vr(d), a, b, c if isinstance(c, str) else vr(c))

    def prologue(self):
        k = self.k; o = self.opt
        k("s_cmp_ge_u32 s2, 256"); k("s_cbranch_scc1 L_end")
        k("s_load_dwordx4 s[60:63], s[0:1], 0")
        k("s_load_dwordx2 s[64:65], s[0:1], 16")
        k("s_load_dwordx8 s[68:75], s[0:1], 32")
        k("s_load_dwordx4 s[76:79], s[0:1], 64")
        if not o.get("nocodepf"):
            k("s_getpc_b64 s[66:67]")
            k("L_pc:")
            k("v_lshlrev_b32 v%d, 7, v0", vT)
            k("v_min_u32 v%d, (L_end-L_pc), v%d", vT, vT)
            k("global_load_dword a254, v%d, s[66:67]", vT)
            k("v_add_u32 v%d, 0x8000, v%d", vT, vT); k("v_min_u32 v%d, (L_end-L_pc), v%d", vT, vT)
            k("global_load_dword a254, v%d, s[66:67]", vT)
        k("v_lshrrev_b32 v%d, 6, v0", vT); k("v_and_b32 v0, 63, v0")
        k("v_readfirstlane_b32 s%d, v%d", sWv, vT)
        k("v_and_b32 v%d, 15, v0", vI); k("v_lshrrev_b32 v%d, 4, v0", vG)
        k("v_lshlrev_b32 v%d, 7, v0", vL128)
        k("s_and_b32 s%d, s2, 7", sT); k("s_lshr_b32 s%d, s2, 3", sT + 1)
        k("s_lshl_b32 s%d, s%d, 5", sN2, sT); k("s_add_u32 s%d, s%d, s%d", sN2, sN2, sT + 1)
        k("s_and_b32 s%d, s%d, 1", sT + 2, sT); k("s_lshl_b32 s%d, s%d, 2", sT + 2, sT + 2)
        k("s_and_b32 s%d, s%d, 3", sMT, sT + 1); k("s_add_u32 s%d, s%d, s%d", sMT, sMT, sT + 2)
        k("s_lshr_b32 s%d, s%d, 1", sT, sT); k("s_lshr_b32 s%d, s%d, 2", sT + 1, sT + 1)
        k("s_lshl_b32 s%d, s%d, 3", sNT, sT); k("s_add_u32 s%d, s%d, s%d", sNT, sNT, sT + 1)
        k("s_lshr_b32 s%d, s%d, 1", sKH, sT)
        k("s_and_b32 s%d, s%d, 1", sT + 2, sT + 1); k("s_lshl_b32 s%d, s%d, 1", sMT2, sMT); k("s_add_u32 s%d, s%d, s%d", sMT2, sMT2, sT + 2)
        k("s_and_b32 s%d, s%d, 1", sT, sT); k("s_lshl_b32 s%d, s%d, 2", sT, sT); k("s_lshr_b32 s%d, s%d, 1", sNT2, sT + 1); k("s_add_u32 s%d, s%d, s%d", sNT2, sNT2, sT)
        k("s_mov_b32 s%d, 0", sLay); k("s_mov_b32 s%d, 0", sFo)
        k("s_lshl_b32 s%d, s%d, 12", sM0, sWv)
        if o.get("stamp"): k("v_mov_b32 v31, 0")
        self.p1_addr()
        k("v_lshlrev_b32 v%d, 4, v0", vT); k("v_mov_b64 v[20:21], 0"); k("v_mov_b64 v[22:23], 0")
        k("s_waitcnt lgkmcnt(0)")
        srd(k, sXS, 60, 2048 * 2048)
        srd(k, sFL, 78, 2 * FL_LSTRIDE, FL_OFF)
        self.mark("start")
        L = k.label("nz")
        k("s_cmp_lg_u32 s2, 8"); k("s_cbranch_scc1 " + L)
        k("s_lshl_b32 s%d, s%d, 13", sT, sWv)
        for j in range(8):
            k("buffer_store_dwordx4 v[20:23], v%d, s[%d:%d], s%d offen offset:%d sc1", vT, sFL, sFL + 3, sT, (j % 4) * 1024)
            if j == 3: k("s_add_u32 s%d, s%d, 4096", sT, sT)
        k(L + ":")
        self.p1_loads(0, o.get("xfl", ""))
        srd(k, sWS, 78, LSTRIDE)
        srd(k, sG, 68, 1024 * 7168)
        k("s_sub_u32 s%d, s70, 2048", sU); k("s_subb_u32 s%d, s71, 0", sU + 1)
        k("s_mov_b32 s%d, 0x%x", sU + 2, 1024 * 7168 + 2048); k("s_mov_b32 s%d, 0x20000", sU + 3)
        k("s_sub_u32 s%d, s72, 3072", sD); k("s_subb_u32 s%d, s73, 0", sD + 1)
        k("s_mov_b32 s%d, 0x%x", sD + 2, 3584 * 2048 + 3072); k("s_mov_b32 s%d, 0x20000", sD + 3)
        srd(k, sOUT, 74, 2048 * 2048)
        k("s_lshl_b32 s%d, s2, 10", sT); k("s_lshl_b32 s%d, s%d, 8", sT + 1, sWv); k("s_add_u32 s%d, s%d, s%d", sT, sT, sT + 1); k("s_add_u32 s%d, s%d, 0x8000", sT, sT)
        setexec(k, 16)
        k("buffer_store_dwordx4 v[20:23], v%d, s[%d:%d], s%d offen sc1", vT, sFL, sFL + 3, sT)
        setexec(k, 64)
        self.w_prep()
        self.npf0 = self.pf(0)
        self.consts(False)
        L = k.label("rep")
        k("s_cmp_lg_u32 s2, 8"); k("s_cbranch_scc1 " + L)
        k("s_waitcnt vmcnt(%d)", 9 + (o.get("wtouch", 1) == 0) + self.npf0); k("s_barrier")
        k("s_cmp_lg_u32 s%d, 0", sWv); k("s_cbranch_scc1 " + L)
        k("v_mov_b32 v%d, 1", vT + 1); k("v_lshlrev_b32 v%d, 2, v0", vT)
        setexec(k, 32)
        k("global_store_dword v%d, v%d, s[76:77] sc1", vT, vT + 1)
        setexec(k, 64)
        k(L + ":")
    def w_prep(self):
        k = self.k
        k("s_lshr_b32 s%d, s%d, 5", sT, sN2); k("s_and_b32 s%d, s%d, 31", sT + 1, sN2)
        k("s_lshl_b32 s80, s%d, 4", sT + 1); k("s_sub_u32 s%d, 1010, s80", sT + 3)
        k("s_cmp_ge_u32 s%d, 2", sWv); k("s_cselect_b32 s80, s%d, s80", sT + 3); k("s_cselect_b32 s%d, -1, 0", sT + 3); k("s_cselect_b32 s%d, 508, 0", sT + 2)
        k("s_bitcmp1_b32 s%d, 0", sWv); k("s_cselect_b32 s%d, s64, s62", sTM); k("s_cselect_b32 s%d, s65, s63", sTM + 1)
        k("s_mov_b32 s%d, 0x%x", sTM + 2, 2048 * 1026); k("s_mov_b32 s%d, 0x20000", sTM + 3)
        def row(d, src):
            k("v_xor_b32 v%d, s%d, v%d", d, sT + 3, src); k("v_subrev_u32 v%d, s%d, v%d", d, sT + 3, d)
            k("v_and_b32 v%d, 2047, v%d", d, d); k("v_mul_u32_u24 v%d, 1026, v%d", d, d)
        k("s_lshl_b32 s81, s%d, 6", sT + 1); k("s_add_u32 s81, s81, s%d", sT)
        k("v_and_b32 v%d, 56, v0", vT); k("v_add_u32 v%d, s81, v%d", vT, vT); row(vT, vT)
        k("v_and_b32 v%d, 7, v0", vT + 1); k("v_lshlrev_b32 v%d, 7, v%d", vT + 1, vT + 1); k("v_min_u32 v%d, 514, v%d", vT + 1, vT + 1)
        k("v_add3_u32 v214, v%d, v%d, s%d", vT, vT + 1, sT + 2)
        if self.opt.get("wtouch", 1) == 0: self.w_touch()
        k("v_lshlrev_b32 v%d, 3, v%d", vT, vI); k("v_lshl_add_u32 v%d, v%d, 9, v%d", vT, vG, vT); k("v_add_u32 v%d, s%d, v%d", vT, sT, vT)
        for r in range(4):
            k("v_add_u32 v%d, %d, v%d", 208 + r, 128 * r, vT); row(208 + r, 208 + r)
        for j in range(2):
            k("s_and_b32 s%d, s%d, 2", sT, sWv); k("s_add_u32 s%d, s%d, %d", sT, sT, j); k("s_lshl_b32 s%d, s%d, 7", sT, sT)
            k("v_add_u32 v%d, s%d, v%d", 212 + j, sT, vT); k("v_mul_u32_u24 v%d, 1026, v%d", 212 + j, 212 + j); k("v_add_u32 v%d, 512, v%d", 212 + j, 212 + j)
    def w_touch(self):
        self.k("buffer_load_dword a255, v214, s[%d:%d], 0 offen%s", sTM, sTM + 3, self.opt.get("wfl", ""))
    def w_loads(self, special):
        k = self.k
        if self.opt.get("now"): return
        if special:
            k("s_lshl_b32 s%d, s%d, 9", sT, sWv)
            for j in range(2):
                k("s_add_u32 m0, s%d, 0x%x", sT, L_W2 + j * 256)
                k("buffer_load_ushort v%d, s[%d:%d], 0 offen lds", 212 + j, sTM, sTM + 3)
            return
        for r in range(4):
            k("s_add_u32 m0, s%d, 0x%x", sM0, L_W + r * 1024)
            k("buffer_load_dwordx4 v%d, s[%d:%d], s80 offen lds", 208 + r, sTM, sTM + 3)
    def w_park(self):
        k = self.k; W = 152
        L = k.label("nsp")
        k("s_and_b32 s%d, s%d, 31", sT, sN2); k("s_or_b32 s%d, s%d, s%d", sT, sT, sWv)
        k("s_cmp_lg_u32 s%d, 0", sT); k("s_cbranch_scc1 " + L)
        k("v_lshlrev_b32 v%d, 4, v0", vT); k("v_add_u32 v%d, 0x%x, v%d", vT, L_W, vT)
        k("v_lshlrev_b32 v%d, 2, v0", vT + 1); k("v_add_u32 v%d, 0x%x, v%d", vT + 1, L_W2, vT + 1)
        for r in range(4):
            for m in range(2): k("ds_read_b32 v%d, v%d offset:%d", W + 4 * m + r, vT + 1, ((r & 2) + m) * 512 + (r & 1) * 256)
        k("s_waitcnt lgkmcnt(0)")
        for r in range(4):
            for m in range(2): k("ds_write_b16 v%d, v%d offset:%d", vT, W + 4 * m + r, m * 4096 + r * 1024)
        k(L + ":")
    def pf(self, window):
        k = self.k; n = 0
        todo = self.opt.get("pf", {}).get(window, [])
        if not todo: return 0
        shadow = str(window).endswith("s")
        L = k.label("pf")
        if shadow:
            k("s_sub_u32 s%d, s%d, 1", sT + 1, sWv); k("s_lshl_b32 s%d, s%d, 4", sT, sLay); k("s_add_u32 s%d, s%d, s%d", sT + 1, sT + 1, sT)
            k("s_cmp_ge_u32 s%d, 2", sT + 1); k("s_cbranch_scc1 " + L)
            k("s_lshl_b32 s%d, s2, 1", sT); k("s_add_u32 s%d, s%d, s%d", sT, sT, sT + 1); k("s_mul_i32 s%d, s%d, %d", sT, sT, 28 * 128)
            setexec(k, 28)
        else:
            k("s_lshl_b32 s%d, s2, 2", sT); k("s_add_u32 s%d, s%d, s%d", sT, sT, sWv); k("s_mul_i32 s%d, s%d, %d", sT, sT, 14 * 128)
            k("s_cmp_eq_u32 s%d, 0", sLay); k("s_cselect_b64 exec, 0x3fff, 1")
        for (m, c) in todo:
            r, bias = {"g": (sG, 0), "u": (sU, 2048), "d": (sD, 3072)}[m]
            k("s_add_u32 s%d, s%d, %d", sT + 1, sT, c * (7340032 // 4) + bias)
            k("buffer_load_dword a255, v%d, s[%d:%d], s%d offen", vL128, r, r + 3, sT + 1); n += 1
        setexec(k, 64)
        k(L + ":")
        return 0 if shadow else n
    def consts(self, inv):
        k = self.k; c, s, n = vT, vT + 1, vT + 2
        for r in range(4):
            k("v_lshl_add_u32 v%d, v%d, 2, %d", n + 1, vG, r)
            k("v_mul_u32_u24 v%d, v%d, v%d", n, vI, n + 1)
            if not inv:
                self.cs(c, s, n, 1.0 / 16)
                self.pack_to_a(aF + r, c, s); self.pack_to_a(aF + 4 + r, s, c, neglo=True)
                self.pack_to_a(aGm + r, c, s, neghi=True); self.pack_to_a(aGm + 4 + r, s, c)
                k("v_lshl_add_u32 v%d, v%d, 1, v%d", n + 2, n, vI)
                self.cs(c, s, n + 2, 1.0 / 32)
                self.pack_to_a(aM1 + r, c, s); self.pack_to_a(aM1 + 4 + r, s, c, neglo=True)
                self.pack_to_a(aM1 + 8 + r, c, s, True, True); self.pack_to_a(aM1 + 12 + r, s, c, neghi=True)
            else:
                k("v_lshl_add_u32 v%d, v%d, 1, v%d", n + 2, n, n + 1)
                self.cs(c, s, n + 2, 1.0 / 32)
                self.pack_to_a(aM1H + r, c, s, neghi=True); self.pack_to_a(aM1H + 4 + r, s, c)
                self.pack_to_a(aM1H + 8 + r, c, s, neglo=True); self.pack_to_a(aM1H + 12 + r, s, c, True, True)
        k("v_and_b32 v%d, 1, v%d", n + 3, vI); k("v_cvt_f32_u32 v%d, v%d", n + 4, n + 3); k("v_mul_f32 v%d, 0x3e800000, v%d", n + 4, n + 4)
        if inv: k("v_mul_u32_u24 v%d, 0x8000, v%d", n + 3, n + 3); k("v_lshl_or_b32 v%d, v%d, 16, v%d", n + 3, n + 3, n + 3)
        k("v_lshrrev_b32 v%d, 1, v%d", n + 5, vI)
        for q in range(2):
            k("v_lshl_add_u32 v%d, v%d, 1, %d", n + 1, vG, q)
            if not inv:
                k("v_lshlrev_b32 v%d, 8, v%d", n, n + 1); k("v_add_u32 v%d, s%d, v%d", n, sN2, n); k("v_mul_u32_u24 v%d, v%d, v%d", n, n, n + 5)
                self.cs(c, s, n, 1.0 / 2048, add=n + 4)
                self.pack_to_a(aC + q, c, s); self.pack_to_a(aC + 2 + q, c, s, neghi=True)
            else:
                k("v_lshlrev_b32 v%d, 8, v%d", n, n + 5); k("v_add_u32 v%d, s%d, v%d", n, sN2, n); k("v_mul_u32_u24 v%d, v%d, v%d", n, n, n + 1)
                self.cs(c, s, n, -1.0 / 2048, add=n + 4)
                self.pack_to_a(aCH + q, c, s)
                k("v_xor_b32 v%d, v%d, v%d", vT + 12, vT + 12, n + 3); k("v_accvgpr_write_b32 a%d, v%d", aCH + 2 + q, vT + 12)
    def g_addr(self):
        k = self.k; t = vT
        k("v_lshlrev_b32 v%d, 4, v0", t); k("v_add_u32 v%d, s%d, v%d", vG1x, sM0, t)
        k("v_lshrrev_b32 v%d, 5, v0", t); k("v_lshlrev_b32 v%d, 12, v%d", t, t)
        k("v_bfe_u32 v%d, v0, 4, 1", t + 1); k("v_mul_u32_u24 v%d, 1152, v%d", t + 1, t + 1)
        k("v_bfe_u32 v%d, v0, 2, 2", t + 2); k("v_mul_u32_u24 v%d, 224, v%d", t + 2, t + 2)
        k("v_and_b32 v%d, 3, v0", t + 3); k("v_lshlrev_b32 v%d, 3, v%d", t + 3, t + 3)
        k("v_add3_u32 v%d, v%d, v%d, v%d", t + 1, t, t + 1, t + 2); k("v_add_u32 v%d, v%d, v%d", vG1r, t + 1, t + 3)
        for j in range(2):
            k("s_lshl_b32 s%d, s%d, 3", sT, sWv); k("s_add_u32 s%d, s%d, %d", sT, sT, 4 * j)
            k("s_mul_i32 s%d, s%d, 7168", sT, sT); k("s_mul_i32 s%d, s%d, 224", sT + 1, sNT); k("s_add_u32 s%d, s%d, s%d", sT, sT, sT + 1)
            if j: k("s_sub_u32 s%d, s%d, 1024", sT, sT)
            k("v_subrev_u32 v%d, %d, v0", t + 4, 8 * j)
            k("v_mul_u32_u24 v%d, 4682, v%d", t + 5, t + 4); k("v_lshrrev_b32 v%d, 16, v%d", t + 5, t + 5)
            k("v_mul_u32_u24 v%d, 14, v%d", t + 6, t + 5); k("v_sub_u32 v%d, v%d, v%d", t + 6, t + 4, t + 6)
            k("v_mul_u32_u24 v%d, 7168, v%d", t + 5, t + 5); k("v_lshl_add_u32 v%d, v%d, 4, v%d", t + 5, t + 6, t + 5)
            k("v_add_u32 v%d, s%d, v%d", t + 5, sT, t + 5)
            k("v_cmp_gt_u32 vcc, 56, v%d", t + 4)
            k("v_mov_b32 v%d, 0x80000000", t + 6)
            k("v_cndmask_b32 v%d, v%d, v%d, vcc", vG1w + j, t + 6, t + 5)
        k("v_lshlrev_b32 v%d, 4, v%d", t + 4, vI); k("v_lshl_add_u32 v%d, v%d, 9, v%d", vG2h, vG, t + 4)
        k("v_bfe_u32 v%d, v0, 2, 3", t + 4); k("v_lshrrev_b32 v%d, 1, v%d", t + 5, t + 4)
        k("v_lshl_add_u32 v%d, v%d, 7, v%d", t + 4, t + 4, t); k("v_add_u32 v%d, v%d, v%d", t + 4, t + 4, t + 3)
        k("v_add_u32 v%d, 0x%x, v%d", t + 4, L_G2, t + 4)
        for x in range(4):
            k("v_xor_b32 v%d, %d, v%d", t + 6, x, t + 5); k("v_lshl_add_u32 v%d, v%d, 5, v%d", vG2r + x, t + 6, t + 4)
        k("s_lshr_b32 s%d, s%d, 1", sT, sWv); k("s_lshl_b32 s%d, s%d, 13", sT, sT)
        k("s_lshl_b32 s%d, s%d, 8", sT + 1, sNT2); k("s_add_u32 s%d, s%d, s%d", sT, sT, sT + 1)
        k("v_lshrrev_b32 v%d, 5, v0", t + 4); k("v_bfe_u32 v%d, v0, 3, 2", t + 5); k("v_lshl_add_u32 v%d, v%d, 3, v%d", t + 4, t + 4, t + 5)
        k("v_lshlrev_b32 v%d, 11, v%d", t + 4, t + 4)
        k("v_bfe_u32 v%d, v0, 1, 2", t + 5); k("v_xor_b32 v%d, v%d, v%d", t + 5, t + 5, vG)
        k("v_lshl_add_u32 v%d, v%d, 5, v%d", t + 4, t + 5, t + 4)
        k("v_and_b32 v%d, 1, v0", t + 5); k("v_lshl_add_u32 v%d, v%d, 4, v%d", t + 4, t + 5, t + 4)
        k("v_add_u32 v%d, s%d, v%d", t + 4, sT, t + 4)
        for b in range(2): k("v_add_u32 v%d, 0x%x, v%d", vG2w + b, 3072 + b * 128 - b * 1024, t + 4)
        k("s_mul_i32 s%d, s%d, %d", sT, sKH, 1792 * 2048); k("s_and_b32 s%d, s%d, 1", sT + 1, sWv)
        k("s_mul_i32 s%d, s%d, %d", sDa, sT + 1, 16 * 2048); k("s_add_u32 s%d, s%d, s%d", sDa, sDa, sT)
        k("s_mul_i32 s%d, s%d, %d", sDb, sT + 1, 112 * 2048); k("s_add_u32 s%d, s%d, s%d", sDb, sDb, sT)

    XA, XB, XC = 32, 48, 208
    vP1x = 240
    def p1_addr(self):
        k = self.k
        k("v_lshlrev_b32 v%d, 3, v%d", self.vP1x, vI); k("v_lshl_add_u32 v%d, v%d, 9, v%d", self.vP1x, vG, self.vP1x)
    def p1_loads(self, src, fl_=None):
        k = self.k; X = (self.XA, self.XB, self.XC)[src]
        if fl_ is None: fl_ = self.LF
        k("s_lshl_b32 s%d, s%d, 20", sT, sWv); k("s_lshl_b32 s%d, s%d, 11", sT + 1, sN2); k("s_add_u32 s%d, s%d, s%d", sT, sT, sT + 1)
        if src == 2: k("s_add_u32 s%d, s%d, 0x400000", sT, sT)
        for q in range(2):
            for j, r in enumerate((0, 2, 1, 3)):
                k("buffer_load_dwordx2 %s, v%d, s[%d:%d], s%d offen offset:%d%s", vr(X + 8 * q + 2 * j, 2), self.vP1x, sXS, sXS + 3, sT, r * 128, fl_)
            if q == 0: k("s_add_u32 s%d, s%d, 0x80000", sT, sT)
    def exch_addr(self, base, a):
        k = self.k
        k("s_lshl_b32 s%d, s%d, 9", sT, sWv)
        k("v_lshlrev_b32 v%d, 12, v%d", a + 2, vG); k("v_add_u32 v%d, 0x%x, v%d", a + 2, base, a + 2)
        k("v_lshl_add_u32 v%d, v%d, 4, s%d", a + 3, vI, sT)
        k("v_add_u32 v%d, v%d, v%d", a, a + 2, a + 3)
        k("v_sub_u32 v%d, v%d, v%d", a + 1, a + 2, a + 3); k("v_add_u32 v%d, %d, v%d", a + 1, (512 - 33) * 8, a + 1)
        k("v_cmp_eq_u32 vcc, 0, v%d", a + 3)
        k("v_add_u32 v%d, %d, v%d", a + 2, (256 - 33) * 8, a + 2)
        k("v_cndmask_b32 v%d, v%d, v%d, vcc", a + 2, a + 1, a + 2)
        k("v_lshlrev_b32 v%d, 3, v%d", a + 3, vI); k("v_lshl_add_u32 v%d, v%d, 9, v%d", a + 3, vG, a + 3)
        k("s_add_u32 s%d, s%d, 0x%x", sT, sM0, base); k("v_add_u32 v%d, s%d, v%d", a + 3, sT, a + 3)
    def p1_pre(self):
        k = self.k; T1 = 96
        for c in range(2):
            for r in range(4):
                k("v_lshl_add_u32 v%d, v%d, 3, %d", vT, vG, 2 * r + c); k("v_mul_u32_u24 v%d, v%d, v%d", vT, vT, vI)
                self.cs(T1 + 8 * c + r, T1 + 8 * c + 4 + r, vT, 1.0 / 512)
        self.exch_addr(L_P1, 241)
        k("v_cmp_eq_u32 vcc, 0, v%d", vI); k("v_cndmask_b32 v245, 0, 1.0, vcc")
        k("v_lshlrev_b32 v246, 12, v%d", vG); k("v_lshl_add_u32 v246, v%d, 4, v246", vI)
    def p1_a(self, X, first, swap=True):
        k = self.k; D = 64
        if swap:
            for q in range(2):
                k("v_swap_b32 v%d, v%d", X + 8 * q + 1, X + 8 * q + 4); k("v_swap_b32 v%d, v%d", X + 8 * q + 3, X + 8 * q + 6)
        for l in range(4):
            for p in range(2): self.mf(D + (l * 2 + p) * 4, vr(X + 4 * l), ar(aF + 4 * p), "0" if first else D + (l * 2 + p) * 4)
    def x1_read(self):
        k = self.k
        k("v_add_u32 v%d, 0x%x, v%d", vT, L_X, vG1x)
        for l in range(4): k("ds_read_b128 %s, v%d offset:%d", vr(self.XA + 4 * l), vT, l * 1024)
    def x1_park(self):
        k = self.k; XI, O = 32, 160
        for q in range(2):
            for j in range(8):
                x = XI + 16 * q + 2 * j
                k("v_pk_add_f32 %s, %s, s[%d:%d] op_sel:[0,%d] op_sel_hi:[1,%d]", vr(x, 2), vr(x, 2), sK + 4, sK + 5, q, q)
        k("v_add_u32 v%d, 0x%x, v%d", vT, L_X, vG1x)
        for l in range(4):
            for r in range(4): k("v_cvt_pk_bf16_f32 v%d, v%d, v%d", O + 4 * l + r, XI + 8 * l + r, XI + 8 * l + 4 + r)
            k("ds_write_b128 v%d, %s offset:%d", vT, vr(O + 4 * l), l * 1024)
    def p1(self):
        k = self.k; XA, XB = self.XA, self.XB
        D, T1, T1s, O, B, E, tmp = 64, 96, 112, 144, 160, 192, 224
        t = O
        self.sums(D, t)
        k("v_mul_f32 v%d, v245, v%d", t, t); k("v_mul_f32 v%d, v245, v%d", t + 2, t + 2)
        self.reduce4(t, t + 2, t + 4, t + 6, 1.0 / (16 * 1024))
        k("v_rsq_f32 v%d, v%d", t + 4, t + 4)
        k("v_mov_b32 v252, v%d", t)
        k("v_mul_f32 v%d, %s, v%d", t, fl(-16.0), t); k("v_mul_f32 v%d, v%d, v%d", t, t, t + 4)
        for q in range(2):
            k("v_readlane_b32 s%d, v%d, %d", sK + 2 * q, t + 4, 16 * q); k("v_readlane_b32 s%d, v%d, %d", sK + 2 * q + 1, t, 16 * q)
        for q in range(2):
            for j in range(8): k("v_pk_mul_f32 %s, %s, s[%d:%d] op_sel_hi:[1,0]", vr(T1s + 16 * q + 2 * j, 2), vr(T1 + 2 * j, 2), sK + 2 * q, sK + 2 * q + 1)
            k("v_mul_f32 v%d, s%d, v245", 248 + 2 * q, sK + 2 * q + 1)
        for l in range(4):
            q, c = l >> 1, l & 1
            self.twiddle(D + l * 8, D + l * 8 + 4, T1s + 16 * q + 8 * c, T1s + 16 * q + 8 * c + 4, B + 8 * l, O + 4 * l, e=248 + 2 * q)
        def b(q, t_, p): return B + ((q * 2 + t_) * 2 + p) * 4
        for q in range(2):
            for p in range(2): self.mf(b(q, 0, p), ar(aF + 4 * p), vr(O + 8 * q))
        for q in range(2):
            for p in range(2): self.mf(b(q, 1, p), ar(aM1 + 8 + 4 * p), vr(O + 8 * q + 4), b(q, 0, p))
        for q in range(2):
            for p in range(2): self.mf(b(q, 0, p), ar(aM1 + 4 * p), vr(O + 8 * q + 4), b(q, 0, p))
        for t_ in (1, 0):
            for r in range(4):
                e = E + (t_ * 4 + r) * 2
                for q in range(2): k("v_cvt_pk_bf16_f32 v%d, v%d, v%d", e + q, b(q, t_, 0) + r, b(q, t_, 1) + r)
                k("ds_write_b64 v244, %s offset:%d", vr(e, 2), r * 128 + t_ * 2048)
        k("s_waitcnt lgkmcnt(0)"); k("s_barrier")
        for u in range(2): k("ds_read_b128 %s, v241 offset:%d", vr(O + 8 * u), u * 256)
        for u in range(2):
            for e in range(2): k("ds_read_b64 %s, v%d offset:%d", vr(O + 8 * u + 4 + 2 * e, 2), 243 if (u, e) == (0, 0) else 242, (33 - 32 * u - e) * 8)
        k("s_lshl_b32 s%d, s%d, 14", sT, sN2); k("s_lshl_b32 s%d, s%d, 9", sT + 1, sWv); k("s_add_u32 s%d, s%d, s%d", sT, sT, sT + 1)
        if U_OFF: k("s_add_u32 s%d, s%d, 0x%x", sT, sT, U_OFF)
        k("s_waitcnt lgkmcnt(4)")
        for u in range(2):
            for e in range(2): self.mf(D + (u * 4 + e) * 4, ar(aC, 2), vr(O + 8 * u + 2 * e, 2), kk=16)
        k("s_waitcnt lgkmcnt(0)")
        for u in range(2):
            for e in range(2): self.mf(D + (u * 4 + 2 + e) * 4, ar(aC + 2, 2), vr(O + 8 * u + 4 + 2 * e, 2), kk=16)
        for u in range(2):
            for p in range(2):
                e0 = E + (u * 2 + p) * 4
                for e in range(4): k("v_cvt_pk_bf16_f32 v%d, v%d, v%d", e0 + e, D + (u * 4 + e) * 4 + 2 * p, D + (u * 4 + e) * 4 + 2 * p + 1)
                k("buffer_store_dwordx4 %s, v246, s[%d:%d], s%d offen offset:%d%s", vr(e0), sWS, sWS + 3, sT, p * 2048 + u * 256, self.SF)
    def p2_pre(self):
        k = self.k; T2, CO = 64, 72
        for r in range(4):
            k("v_lshl_add_u32 v%d, v%d, 2, %d", vT, vG, r); k("v_mul_u32_u24 v%d, v%d, v%d", vT, vT, vI)
            self.cs(T2 + r, T2 + 4 + r, vT, 1.0 / 256)
        k("v_lshl_add_u32 v241, v%d, 6, v%d", vG, vI)
        k("v_lshlrev_b32 v240, 14, v241")
        k("v_bfe_u32 v242, v0, 1, 2"); k("v_xor_b32 v242, s%d, v242", sWv); k("v_lshlrev_b32 v242, 4, v242")
        k("v_lshl_add_u32 v241, v241, 6, v242"); k("v_add_u32 v241, 0x%x, v241", L_P2)
        k("v_bfe_u32 v242, v0, 3, 2"); k("v_xor_b32 v242, v0, v242"); k("v_lshlrev_b32 v242, 4, v242")
        k("s_add_u32 s%d, s%d, 0x%x", sT, sM0, L_P2); k("v_add_u32 v242, s%d, v242", sT)
    def p2_coef(self):
        k = self.k; T2, CO = 64, 72; WP = 136
        L = k.label("once")
        k("s_cmp_lg_u32 s%d, 0", sLay); k("s_cbranch_scc1 " + L)
        self.w_park()
        k(L + ":")
        k("s_lshl_b32 s%d, s%d, 2", sT, sWv); k("s_add_u32 s%d, s%d, 0x%x", sT + 1, sT, L_W); k("s_sub_u32 s%d, 0x%x, s%d", sT, L_W + 8192 + 12, sT)
        k("v_lshl_add_u32 v243, v0, 4, s%d", sT + 1); k("v_lshl_add_u32 v244, v0, 4, s%d", sT)
        for j in range(8):
            k("ds_read_b32 v%d, v243 offset:%d", WP + j, j * 1024); k("ds_read_b32 v%d, v244 offset:%d", WP + 8 + j, j * 1024)
        k("s_and_b32 s%d, s%d, 31", sT, sN2); k("s_lshl_b32 s%d, s%d, 3", sT, sT); k("s_lshl_b32 s%d, s%d, 1", sT + 1, sWv); k("s_add_u32 s%d, s%d, s%d", sT, sT, sT + 1)
        k("s_add_u32 s%d, s%d, 1", sT + 1, sT); k("s_cmp_eq_u32 s%d, 0", sT); k("s_cselect_b32 s%d, 256, s%d", sT, sT)
        NRM = 1.0 / (2048 * 512)
        W1, W2 = 120, 128
        for x in range(2):
            k("v_mov_b32 v%d, s%d", vT, sT + x)
            self.cs(vT + 1, vT + 3, vT, 1.0 / 1024)
            k("v_mul_f32 v%d, 0.5, v%d", vT + 1, vT + 1)
            k("v_fma_f32 v%d, v%d, -0.5, 0.5", vT + 3, vT + 3)
            if x == 0: k("s_waitcnt lgkmcnt(0)")
            for j in range(8):
                k("v_and_b32 v%d, 0xffff0000, v%d" % (W1 + j, WP + j) if x else "v_lshlrev_b32 v%d, 16, v%d" % (W1 + j, WP + j))
                k("v_lshlrev_b32 v%d, 16, v%d" % (W2 + j, WP + 8 + j) if x else "v_and_b32 v%d, 0xffff0000, v%d" % (W2 + j, WP + 8 + j))
            for j in range(8):
                k("v_mul_f32 v%d, %s, v%d", W1 + j, fl(NRM), W1 + j); k("v_mul_f32 v%d, %s, v%d", W2 + j, fl(-NRM if j >= 4 else NRM), W2 + j)
            c = CO + 24 * x
            for j in range(0, 8, 2):
                k("v_pk_add_f32 %s, %s, %s neg_lo:[0,1] neg_hi:[0,1]", vr(c + 16 + j, 2), vr(W1 + j, 2), vr(W2 + j, 2))
            for j in range(0, 8, 2):
                k("v_pk_fma_f32 %s, %s, %s, %s op_sel_hi:[1,0,1]", vr(c + j, 2), vr(c + 16 + j, 2), vr(vT + 3, 2), vr(W2 + j, 2))
                k("v_pk_fma_f32 %s, %s, %s, %s op_sel_hi:[1,0,1] neg_lo:[1,0,0] neg_hi:[1,0,0]", vr(c + 8 + j, 2), vr(c + 16 + j, 2), vr(vT + 3, 2), vr(W1 + j, 2))
                k("v_pk_mul_f32 %s, %s, %s op_sel_hi:[1,0]", vr(c + 16 + j, 2), vr(c + 16 + j, 2), vr(vT + 1, 2))
    def p2(self):
        k = self.k; T2, CO = 64, 72
        Lx, D, O, tmp = 224, 120, 152, 168
        k("s_lshl_b32 s%d, s%d, 6", sT, sN2); k("s_lshl_b32 s%d, s%d, 4", sT + 1, sWv); k("s_add_u32 s%d, s%d, s%d", sT, sT, sT + 1)
        if U_OFF: k("s_add_u32 s%d, s%d, 0x%x", sT, sT, U_OFF)
        for r in range(4):
            k("buffer_load_dwordx4 %s, v240, s[%d:%d], s%d offen%s", vr(Lx + 4 * r), sWS, sWS + 3, sT, self.LF)
            if r < 3: k("s_add_u32 s%d, s%d, 0x40000", sT, sT)
        n = self.pf(2)
        self.p2_coef()
        k("s_waitcnt vmcnt(%d)", n)
        self.mark("p2_loaded")
        for a in range(4):
            for b in range(a + 1, 4): k("v_swap_b32 v%d, v%d", Lx + 4 * a + b, Lx + 4 * b + a)
        for e in range(4):
            for p in range(2): self.mf(D + 8 * e + 4 * p, vr(Lx + 4 * e), ar(aF + 4 * p))
        for e in range(4): self.twiddle(D + 8 * e, D + 8 * e + 4, T2, T2 + 4, tmp + 8 * e, O + 4 * e)
        for e in (0, 2, 1, 3):
            for p in range(2): self.mf(D + 8 * e + 4 * p, ar(aF + 4 * p), vr(O + 4 * e))
        neg = " neg_lo:[1,0,0] neg_hi:[1,0,0]"
        for x in range(2):
            c = CO + 24 * x; Z = D + 8 * x; V = D + 8 * (2 + x); z = tmp + 8 * x; v = tmp + 8 * (2 + x)
            terms = [(z, [(c, Z, 0), (c + 4, Z + 4, 1), (c + 20, V, 1), (c + 16, V + 4, 1)]),
                     (z + 4, [(c, Z + 4, 0), (c + 4, Z, 0), (c + 16, V, 0), (c + 20, V + 4, 1)]),
                     (v, [(c + 8, V, 0), (c + 12, V + 4, 1), (c + 20, Z, 0), (c + 16, Z + 4, 0)]),
                     (v + 4, [(c + 8, V + 4, 0), (c + 12, V, 0), (c + 16, Z, 1), (c + 20, Z + 4, 0)])]
            for j in range(4):
                for h in (0, 2):
                    for d, tl in terms:
                        a, b, n = tl[j]
                        if j == 0: k("v_pk_mul_f32 %s, %s, %s", vr(d + h, 2), vr(a + h, 2), vr(b + h, 2))
                        else: k("v_pk_fma_f32 %s, %s, %s, %s%s", vr(d + h, 2), vr(a + h, 2), vr(b + h, 2), vr(d + h, 2), neg if n else "")
            for e in (x, 2 + x):
                for r in range(4): k("v_cvt_pk_bf16_f32 v%d, v%d, v%d", O + 4 * e + r, tmp + 8 * e + r, tmp + 8 * e + 4 + r)
        for e in (0, 2, 1, 3):
            for p in range(2): self.mf(D + 8 * e + 4 * p, vr(O + 4 * e), ar(aGm + 4 * p))
        for e in (0, 2, 1, 3): self.twiddle(D + 8 * e, D + 8 * e + 4, T2, T2 + 4, tmp + 8 * e, O + 4 * e, conj=True)
        for e in (0, 2, 1, 3):
            for p in range(2): self.mf(D + 8 * e + 4 * p, ar(aGm + 4 * p), vr(O + 4 * e))
        for r in range(4):
            for e in (0, 2, 1, 3): k("v_cvt_pk_bf16_f32 v%d, v%d, v%d", Lx + 4 * r + e, D + 8 * e + r, D + 8 * e + 4 + r)
            k("ds_write_b128 v241, %s offset:%d", vr(Lx + 4 * r), r * 1024)
        k("s_lshl_b32 s%d, s%d, 14", sT, sN2); k("s_add_u32 s%d, s%d, 0x%x", sT, sT, V_OFF)
        k("s_waitcnt lgkmcnt(0)"); k("s_barrier")
        for j in range(4): k("ds_read_b128 %s, v242 offset:%d", vr(O + 4 * j), j * 1024)
        for j in range(4):
            k("s_waitcnt lgkmcnt(%d)", 3 - j)
            k("buffer_store_dwordx4 %s, v%d, s[%d:%d], s%d offen offset:%d%s", vr(O + 4 * j), vG1x, sWS, sWS + 3, sT, j * 1024, self.SF)
    def x_sum(self, single):
        k = self.k; XI = 32; T = 32 if single else 120
        for l in (3, 2, 1, 0):
            for r in range(4): k("v_and_b32 v%d, 0xffff0000, v%d", T + 8 * l + 4 + r, self.XA + 4 * l + r)
            for r in range(4): k("v_lshlrev_b32 v%d, 16, v%d", T + 8 * l + r, self.XA + 4 * l + r)
        if single: return
        for X, d in ((self.XB, T), (self.XC, XI)):
            for l in range(4):
                for r in range(4):
                    k("v_lshlrev_b32 v%d, 16, v%d", 152 + r, X + 4 * l + r); k("v_and_b32 v%d, 0xffff0000, v%d", 156 + r, X + 4 * l + r)
                for h in range(0, 8, 2): k("v_pk_add_f32 %s, %s, %s", vr(d + 8 * l + h, 2), vr(T + 8 * l + h, 2), vr(152 + h, 2))
    def p3_pre(self):
        k = self.k; T3 = 64
        for c in range(2):
            for r in range(4):
                k("v_lshl_add_u32 v%d, v%d, 2, %d", vT, vG, r); k("v_lshl_add_u32 v%d, v%d, 1, %d", vT + 1, vI, c); k("v_mul_u32_u24 v%d, v%d, v%d", vT, vT, vT + 1)
                self.cs(T3 + 8 * c + r, T3 + 8 * c + 4 + r, vT, 1.0 / 512)
        self.exch_addr(L_P3A, 241)
        k("v_add_u32 v245, 2048, v244")
        k("v_lshrrev_b32 v240, 2, v%d", vI); k("v_lshl_add_u32 v240, v%d, 6, v240", vG); k("v_lshlrev_b32 v240, 14, v240")
        k("v_and_b32 v246, 3, v0"); k("v_lshl_add_u32 v240, v246, 4, v240")
        k("s_mul_i32 s%d, s%d, 4224", sT, sWv); k("s_add_u32 s%d, s%d, 0x%x", sT, sT, L_P3B)
        k("v_and_b32 v247, 8, v0"); k("v_lshlrev_b32 v247, 3, v247"); k("v_lshl_add_u32 v246, v246, 4, v247")
        k("v_and_b32 v247, 4, v0"); k("v_lshl_add_u32 v246, v247, 1, v246")
        k("v_lshl_add_u32 v246, v%d, 9, v246", vG); k("v_add_u32 v246, s%d, v246", sT)
        k("s_lshl_b32 s%d, s%d, 9", sT, sWv); k("s_add_u32 s%d, s%d, 0x%x", sT, sT, L_P3B)
        k("v_and_b32 v248, 7, v0"); k("v_mul_u32_u24 v247, 2112, v248"); k("v_lshrrev_b32 v249, 3, v0")
        k("v_lshl_add_u32 v247, v249, 4, v247"); k("v_add_u32 v247, s%d, v247", sT)
        k("v_lshlrev_b32 v248, 4, v248"); k("v_and_b32 v249, 3, v249"); k("v_lshl_add_u32 v248, v249, 8, v248")
        k("v_lshrrev_b32 v249, 5, v0"); k("v_lshl_add_u32 v248, v249, 14, v248")
    def p3(self, after_loads=None):
        k = self.k; T3, XI = 64, 32
        Lx, D, O, tmp = 112, 128, 160, 176
        k("s_lshl_b32 s%d, s%d, 6", sT, sN2); k("s_lshl_b32 s%d, s%d, 17", sT + 1, sWv); k("s_add_u32 s%d, s%d, s%d", sT, sT, sT + 1)
        k("s_add_u32 s%d, s%d, 0x%x", sT, sT, V_OFF)
        for u in range(2):
            for p in range(2):
                k("s_add_u32 s%d, s%d, 0x%x", sT + 1, sT, (32 * p + 4 * u) * 16384)
                k("buffer_load_dwordx4 %s, v240, s[%d:%d], s%d offen%s", vr(Lx + 8 * u + 4 * p), sWS, sWS + 3, sT + 1, self.LF)
        n = after_loads() if after_loads else 0
        k("s_waitcnt vmcnt(%d)", n)
        self.mark("p3_loaded")
        for u in range(2):
            b = Lx + 8 * u
            k("v_swap_b32 v%d, v%d", b + 1, b + 4); k("v_swap_b32 v%d, v%d", b + 3, b + 6)
        pos = {0: 0, 2: 2, 1: 4, 3: 6}
        for u in range(2):
            for e in range(4): self.mf(D + (u * 4 + e) * 4, ar(aCH + (2 if e >= 2 else 0), 2), vr(Lx + 8 * u + pos[e], 2), kk=16)
        for u in range(2):
            for e in range(4):
                d = D + (u * 4 + e) * 4
                for q in range(2): k("v_cvt_pk_bf16_f32 v%d, v%d, v%d", O + 8 * u + 2 * e + q, d + 2 * q, d + 2 * q + 1)
                if e == 1: k("ds_write_b128 v241, %s offset:%d", vr(O + 8 * u), u * 256)
                if e >= 2: k("ds_write_b64 v%d, %s offset:%d", 243 if (u, e) == (0, 2) else 242, vr(O + 8 * u + 2 * e, 2), (33 - 32 * u - (e - 2)) * 8)
        k("s_waitcnt lgkmcnt(0)"); k("s_barrier")
        for q in range(2):
            for t_ in range(2):
                for h in (0, 2): k("ds_read2_b32 %s, v%d offset0:%d offset1:%d", vr(Lx + (q * 2 + t_) * 4 + h, 2), 244 + t_, h * 32 + q, (h + 1) * 32 + q)
        for q in range(2):
            k("s_waitcnt lgkmcnt(%d)", 4 - 4 * q)
            for t_ in range(2):
                for c in range(2):
                    for p in range(2):
                        d = D + ((q * 2 + c) * 2 + p) * 4
                        m = aGm + 4 * p if c == 0 else aM1H + 8 * t_ + 4 * p
                        self.mf(d, vr(Lx + (q * 2 + t_) * 4), ar(m), d if t_ else "0")
        for l in range(4):
            c = l & 1
            self.twiddle(D + 8 * l, D + 8 * l + 4, T3 + 8 * c, T3 + 8 * c + 4, tmp + 8 * l, O + 4 * l, conj=True)
        for l in range(4):
            for p in range(2): self.mf(XI + 8 * l + 4 * p, ar(aGm + 4 * p), vr(O + 4 * l), XI + 8 * l + 4 * p)
        t = tmp
        self.sums(XI, t)
        self.reduce4(t, t + 2, t + 4, t + 6, 1.0 / 1024)
        k("v_rsq_f32 v%d, v%d", t + 2, t + 4)
        k("v_sub_f32 v252, v252, v%d", t)
        k("v_mul_f32 v%d, -v%d, v%d", t + 3, t, t + 2)
        for q in range(2):
            k("v_readlane_b32 s%d, v%d, %d", sK + 2 * q, t + 2, 16 * q); k("v_readlane_b32 s%d, v%d, %d", sK + 2 * q + 1, t + 3, 16 * q)
        for q in range(2):
            for j in range(8):
                x = XI + 16 * q + 2 * j
                k("v_pk_fma_f32 %s, %s, s[%d:%d], s[%d:%d] op_sel:[0,0,1] op_sel_hi:[1,0,1]", vr(x - XI + D, 2), vr(x, 2), sK + 2 * q, sK + 2 * q + 1, sK + 2 * q, sK + 2 * q + 1)
            for r in range(4):
                for c in range(2):
                    x = D + 16 * q + 8 * c
                    k("v_cvt_pk_bf16_f32 v%d, v%d, v%d", O + 8 * q + 2 * r + c, x + r, x + 4 + r)
                k("ds_write_b64 v246, %s offset:%d", vr(O + 8 * q + 2 * r, 2), q * 2112 + r * 128)
        for q in range(2): k("v_readlane_b32 s%d, v252, %d", sK + 4 + q, 16 * q)
        k("s_lshr_b32 s%d, s%d, 5", sT, sN2); k("s_lshl_b32 s%d, s%d, 19", sT, sT); k("s_lshl_b32 s%d, s%d, 17", sT + 1, sWv); k("s_add_u32 s%d, s%d, s%d", sT, sT, sT + 1)
        k("s_bfe_u32 s%d, s%d, 0x40001", sT + 1, sN2); k("s_lshl_b32 s%d, s%d, 10", sT + 1, sT + 1); k("s_add_u32 s%d, s%d, s%d", sT, sT, sT + 1)
        k("s_and_b32 s%d, s%d, 1", sT + 1, sN2); k("s_lshl_b32 s%d, s%d, 7", sT + 1, sT + 1); k("s_add_u32 s%d, s%d, s%d", sT, sT, sT + 1)
        k("s_add_u32 s%d, s%d, 0x%x", sT, sT, XL_OFF)
        k("s_waitcnt lgkmcnt(0)"); k("s_barrier")
        for j in range(4): k("ds_read_b128 %s, v247 offset:%d", vr(D + 4 * j), j * 128)
        for j in range(4):
            k("s_waitcnt lgkmcnt(%d)", 3 - j)
            k("buffer_store_dwordx4 %s, v248, s[%d:%d], s%d offen%s", vr(D + 4 * j), sWS, sWS + 3, sT, self.SF)
            if j < 3: k("s_add_u32 s%d, s%d, 0x8000", sT, sT)
    def g1_wdma(self, slot):
        o = ["s_add_u32 m0, s%d, 0x%x" % (sM0, L_G1 + slot * 16384)]
        for m in range(2):
            for j in range(2):
                s = sU if m else sG
                o.append("buffer_load_dwordx4 v%d, s[%d:%d], s%d offen offset:%d lds" % (vG1w + j, s, s + 3, sOw, m * 2048 + j * 1024))
        o.append("s_add_u32 s%d, s%d, %d" % (sOw, sOw, 32 * 7168))
        return o
    def g1_prefetch(self, slots, shadow):
        k = self.k
        if not slots: return 0
        L = k.label("gp")
        if shadow: k("s_cmp_eq_u32 s%d, 0", sWv); k("s_cbranch_scc1 " + L)
        for s in slots:
            k("s_mov_b32 s%d, %d", sOw, s * 32 * 7168)
            for x in self.g1_wdma(s)[:-1]: k(x)
        if shadow:
            for s in slots:
                L2 = k.label("gq")
                w = 1 + s % 3
                k("s_cmp_lg_u32 s%d, %d", sWv, w); k("s_cbranch_scc1 " + L2)
                k("s_mov_b32 m0, 0x%x", L_G1 + s * 16384)
                k("v_subrev_u32 v%d, %d, v%d", vT, w * 8 * 7168, vG1w); k("v_subrev_u32 v%d, %d, v%d", vT + 1, w * 8 * 7168, vG1w + 1)
                k("s_mov_b32 s%d, %d", sOw, s * 32 * 7168)
                for x in self.g1_wdma(s)[1:-1]: k(x.replace("dwordx4 v%d," % vG1w, "dwordx4 v%d," % vT).replace("dwordx4 v%d," % (vG1w + 1), "dwordx4 v%d," % (vT + 1)))
                k(L2 + ":")
        k(L + ":")
        return 0 if shadow else 4 * len(slots)
    def vm_reset(self): self.log = []
    def vm_note(self, ins, tag):
        self.log += [tag] * len([x for x in ins if x.startswith(("buffer", "global"))])
        return ins
    def vm_need(self, tags):
        last = max([i for i, t in enumerate(self.log) if t in tags] + [-1])
        return min(63, len(self.log) - 1 - last)
    def stream(self, mf, slots):
        for m, f in zip(mf, slots):
            self.k(m)
            for x in f: self.k(x)
    @staticmethod
    def spread(slots, ins, start, every, per=1):
        pos = start
        for x in ins:
            if x.startswith("buffer"): slots[min(pos, len(slots) - 1)].append(x); pos += every
            else: slots[max(0, min(pos - 1, len(slots) - 1))].append(x)
        return pos
    @staticmethod
    def fill(slots, ins, start=0, cap=1):
        pos = start; ins = list(ins)
        while ins and pos < len(slots):
            if len(slots[pos]) < cap: slots[pos].append(ins.pop(0))
            else: pos += 1
        return ins
    def looped(self, t0, t1, U, step):
        k = self.k
        save = list(self.log); n0 = len(k.lines); vms = []
        for t in range(t0, t1): vms.append(step(t))
        del k.lines[n0:]
        endlog = list(self.log); self.log = save
        k("s_mov_b32 s%d, %d", sIt, (t1 - t0) // U)
        L = k.label("loop")
        k(".p2align 6"); k(L + ":")
        for u in range(U): step(t0 + u, vm=min(vms[u::U]))
        self.log = endlog
        k("s_sub_u32 s%d, s%d, 1", sIt, sIt); k("s_cmp_lg_u32 s%d, 0", sIt); k("s_cbranch_scc1 " + L)
    ACC = 32
    NA = 3
    XE = 232
    def g1_acc(self, ft, m, st): return self.ACC + ((ft * 2 + m) * 4 + st) * 4
    def g1_reads(self, t, fts=range(7)):
        o = []
        for ft in fts:
            for m in range(2):
                for h in range(2):
                    r = (t & 1) * 56 + (ft * 2 + m) * 4 + 2 * h
                    o.append("ds_read_b64_tr_b16 %s, v%d offset:%d" % (ar(r, 2), vG1r, (t % 4) * 16384 + h * 8192 + m * 2048 + ft * 32))
        return o
    def g1_xf(self, t, st): return (self.XE if t == 31 else 112 + (t % 4) * 16) + st * 4
    def g1_mfmas(self, t, fts=range(7)):
        r = []
        for ft in fts:
            for m in range(2):
                for b in range(4):
                    st = b if m == 0 else 3 - b
                    a = self.g1_acc(ft, m, st)
                    r.append("v_mfma_f32_16x16x32_bf16 %s, %s, %s, %s" % (vr(a), ar((t & 1) * 56 + (ft * 2 + m) * 4), ar(self.g1_xf(t, st)), vr(a)))
        return r
    def g2_wdma(self, j, running=False):
        o = ["s_add_u32 m0, s%d, 0x%x" % (sM0, L_G2 + (j % 4) * 16384)]
        if running:
            o += ["s_add_u32 s%d, s%d, %d" % (sOd, sOd, 112 * 2048), "s_add_u32 s%d, s%d, %d" % (sOe, sOd, 31 * 2048)]
        else:
            for blk in range(2):
                if j < 8: base, rb = sDa, (2 * j + blk) * 7
                elif j < 12: base, rb = sDb, (4 * (j - 8) + 2 * blk) * 7 + 2
                else: base, rb = sDa, (j - 12) * 7 + 3 + 2 * blk
                o.append("s_add_u32 s%d, s%d, %d" % (sOe if blk else sOd, base, rb * 16 * 2048 - blk * 2048))
        for b in range(4):
            o.append("buffer_load_dwordx4 v%d, s[%d:%d], s%d offen offset:%d lds" % (vG2w + (b & 1), sD, sD + 3, sOe if b >> 1 else sOd, b * 1024))
        return o
    def g1_pre(self):
        k = self.k
        for x in self.g1_reads(0): k(x)
        k("s_lshl_b32 s%d, s%d, 19", sOx, sMT); k("s_add_u32 s%d, s%d, 0x%x", sOx, sOx, XL_OFF)
        k("s_mov_b32 s%d, %d", sOw, 4 * 32 * 7168)
        k("s_lshl_b32 s%d, s%d, 2", sT, sMT); k("s_add_u32 s%d, s%d, s%d", sT, sT, sWv); k("s_mul_i32 s%d, s%d, 448", sT, sT)
        k("s_lshr_b32 s%d, s%d, 4", sT + 1, sNT); k("s_mul_i32 s%d, s%d, 112", sT + 1, sT + 1); k("s_add_u32 s%d, s%d, s%d", sT, sT, sT + 1)
        k("s_lshl_b32 s%d, s%d, 10", sT, sT); k("s_add_u32 s%d, s%d, 0x%x", sT, sT, H_OFF)
        k("s_and_b32 s%d, s%d, 15", sT + 1, sNT)
        for j, (sh, off) in enumerate(((11, 0), (10, 32), (12, 48))):
            k("s_lshl_b32 s%d, s%d, %d", sT + 2, sT + 1, sh); k("s_add_u32 s%d, s%d, s%d", sT + 2, sT + 2, sT)
            k("s_add_u32 s%d, s%d, %d", sK + 2 * j, sT + 2, off * 1024); k("s_add_u32 s%d, s%d, %d", sK + 2 * j + 1, sT + 2, (off + 224) * 1024)
        k("v_lshlrev_b32 v%d, 4, v0", vT + 2)
        k("s_lshl_b32 s%d, s%d, 2", sT, sMT2); k("s_add_u32 s%d, s%d, s%d", sT, sT, sWv)
        k("s_lshl_b32 s%d, s%d, 1", sT + 1, sT); k("s_add_u32 s%d, s%d, s%d", sT + 1, sT + 1, sKH)
        k("s_mul_i32 s%d, s%d, %d", sOh, sT + 1, 112 * 1024); k("s_add_u32 s%d, s%d, 0x%x", sOh, sOh, H_OFF)
        k("s_lshr_b32 s%d, s%d, 4", sT + 1, sNT); k("s_lshl_b32 s%d, s%d, 1", sT + 2, sMT); k("s_add_u32 s%d, s%d, s%d", sT + 1, sT + 1, sT + 2)
        self.flag(sK + 8, FL_B4, sT + 1)
        k("s_add_u32 s%d, s%d, s%d", sT + 1, sT + 2, sKH); self.flag(sK + 9, FL_B4, sT + 1)
        k("s_and_b32 s%d, s%d, 1", sT + 1, sNT2); k("s_lshl_b32 s%d, s%d, 7", sT + 1, sT + 1); k("s_add_u32 s%d, s%d, s%d", sK + 9, sK + 9, sT + 1)
        k("v_mov_b32 v%d, 1", vT + 9)
    def w0(self, body):
        L = self.k.label("w0")
        return "\n".join(["s_cmp_lg_u32 s%d, 0" % sWv, "s_cbranch_scc1 " + L] + body + [L + ":"])
    def h_arrive(self, off):
        return self.w0(["s_mov_b64 exec, 3", "buffer_atomic_add v%d, v%d, s[%d:%d], s%d offen offset:%d sc1" % (vT + 9, vL128, sFL, sFL + 3, sK + 8, off), "s_mov_b64 exec, -1"])
    def h_poll(self, off):
        return ["v_mov_b32 v%d, 0" % vT, "s_mov_b64 exec, 1", "buffer_atomic_add v%d, v%d, s[%d:%d], s%d offen offset:%d sc0 sc1" % (vT, vL128, sFL, sFL + 3, sK + 9, off), "s_mov_b64 exec, -1"]
    def h_check(self, off):
        LP = self.k.label("hp"); LX = self.k.label("hx")
        return self.w0(["s_mov_b32 s%d, 0" % sT, LP + ":", "v_readfirstlane_b32 s%d, v%d" % (sT + 1, vT), "s_cmp_eq_u32 s%d, 16" % (sT + 1), "s_cbranch_scc1 " + LX]
                       + self.h_poll(off) + ["s_waitcnt vmcnt(0)", "s_add_u32 s%d, s%d, 1" % (sT, sT), "s_cmp_lt_u32 s%d, 0x40000" % sT, "s_cbranch_scc1 " + LP, LX + ":"])
    def g1_unit(self, ft, pr, dst, packed):
        o = []
        for q in range(2):
            g = self.g1_acc(ft, 0, 2 * pr + q); u = self.g1_acc(ft, 1, 2 * pr + q)
            if packed: o += ["v_pk_mul_f32 %s, %s, %s" % (vr(g + h, 2), vr(g + h, 2), vr(u + h, 2)) for h in (0, 2)]
            else: o += ["v_mul_f32 v%d, v%d, v%d" % (g + h, g + h, u + h) for h in range(4)]
        c = []
        for q in range(2):
            g = self.g1_acc(ft, 0, 2 * pr + q)
            c += ["v_cvt_pk_bf16_f32 v%d, v%d, v%d" % (dst + 2 * q + h, g + 2 * h, g + 2 * h + 1) for h in (0, 1)]
        sw = ["v_permlane16_swap_b32 v%d, v%d" % (dst, dst + 2), "v_permlane16_swap_b32 v%d, v%d" % (dst + 1, dst + 3)]
        so, off = ((sK, ft) if ft < 2 else ((sK + 2, 0) if ft == 2 else (sK + 4, ft - 3)))
        st = "buffer_store_dwordx4 %s, v%d, s[%d:%d], s%d offen offset:%d%s" % (vr(dst), vT + 2, sWS, sWS + 3, so + pr, off * 1024, self.SF)
        return o, c, sw, st
    def g1(self):
        k = self.k; o = self.opt
        A = range(self.NA); B = range(self.NA, 7)
        def xld(t):
            return ["buffer_load_dwordx4 %s, v%d, s[%d:%d], s%d offen offset:%d%s" % (ar(self.g1_xf(t, j)), vG1x, sWS, sWS + 3, sOx, j * 1024, self.LF) for j in range(4)] + \
                   ["s_add_u32 s%d, s%d, 0x4000" % (sOx, sOx)]
        self.vm_reset()
        for t in range(3):
            for x in self.vm_note(xld(t), ("X", t)): k(x)
        k("s_add_u32 s%d, s%d, 0x%x", sOx, sOx, 28 * 0x4000)
        for x in self.vm_note(xld(31), ("X", 31)): k(x)
        k("s_sub_u32 s%d, s%d, 0x%x", sOx, sOx, 29 * 0x4000)
        def step(t, vm=None):
            need = self.vm_need([("W", t + 1), ("X", t)])
            k("s_waitcnt vmcnt(%d) lgkmcnt(0)" % (need if vm is None else vm)); k("s_barrier")
            mf = self.g1_mfmas(t); slots = [[] for _ in mf]
            dm = self.vm_note(xld(t + 3), ("X", t + 3)) + self.vm_note(self.g1_wdma(t % 4), ("W", t + 4))
            self.spread(slots, dm, 1, 6)
            assert not self.fill(slots, self.g1_reads(t + 1))
            self.stream(mf, slots)
            return need
        self.looped(0, 28, 4, step)
        self.mark("g1_s28")
        groups = o.get("groups", [[0, 1], [2], [3], [4], [5], [6]])
        hold = o.get("hold", [5, 6])
        dst = {(6, 0): 240, (6, 1): 244, (3, 0): 224, (3, 1): 228, (4, 0): 232, (4, 1): 236, (5, 0): 248, (5, 1): 252}
        sub = [(g, t) for g in groups for t in range(28, 32)]
        freer = list(range(56, 112, 8)); where = {}
        for ft in range(7): where[(28, ft)] = ft * 8
        def rd(t, ft):
            b = where[(t, ft)] = freer.pop(0)
            return ["ds_read_b64_tr_b16 %s, v%d offset:%d" % (ar(b + m * 4 + 2 * h, 2), vG1r, (t % 4) * 16384 + h * 8192 + m * 2048 + ft * 32) for m in range(2) for h in range(2)]
        pend = [(t, ft) for g, t in sub if t > 28 for ft in g]
        side = [x for j in range(4) for x in self.g2_wdma(j)]
        epi = []; self.late_stores = []; landed = 28; issued = []
        apos = o.get("apos", (5, 28)); done_early = False; cool = 0
        for (g, t) in sub:
            need = [i for i, x in enumerate(issued) if x[0] == t and x[1] in g]
            lg = min(12, 4 * (len(issued) - 1 - max(need))) if need else (0 if (g, t) == sub[0] else None)
            first = g == groups[0]
            if first:
                k("s_waitcnt vmcnt(%d) lgkmcnt(%d)" % (self.vm_need([("W", t + 1), ("X", t)]), lg))
                if t < 31: k("s_barrier"); landed = t + 1
            elif g == groups[-1]:
                assert not pend
                if t == 28: k("s_waitcnt lgkmcnt(0)")
            elif lg is not None: k("s_waitcnt lgkmcnt(%d)" % lg)
            if not first and t == 28:
                prev = groups[groups.index(g) - 1]
                for ft in prev:
                    us = [self.g1_unit(ft, pr, self.g1_acc(ft, 1, 2 * pr), False) for pr in range(2)]
                    epi += us[0][0] + us[1][0] + us[0][1] + us[1][1] + us[0][2] + us[1][2]
                    if ft in hold: self.late_stores += [u[3] for u in us]
                    else: epi += [(u[3], "SA" if ft < self.NA else "SB") for u in us]
                if g == groups[-1]: epi = self.g2_reads(0)[:6] + epi + self.g2_reads(0)[6:]
                else: cool = 3
            mf = []
            for ft in g:
                for m in range(2):
                    for b in range(4):
                        st = b if m == 0 else 3 - b
                        a = self.g1_acc(ft, m, st)
                        mf.append("v_mfma_f32_16x16x32_bf16 %s, %s, %s, %s" % (vr(a), ar(where[(t, ft)] + 4 * m), ar(self.g1_xf(t, st)), vr(a)))
            rq = []
            for i, m in enumerate(mf):
                k(m); n = 0
                if (g[0], t) == apos and i == 0:
                    assert not [x for x in epi if isinstance(x, tuple) and x[1] == "SA"]
                    k("s_waitcnt vmcnt(%d)" % (63 if o.get("dbg_nowait") else self.vm_need(["SA"]))); k("s_barrier"); k(self.h_arrive(0)); n = 2
                if (g[0], t) == o.get("ppos", (6, 30)) and i == 0: k(self.w0(self.h_poll(0))); n = 2
                if not rq and pend and freer and pend[0][0] <= landed:
                    issued.append(pend[0]); rq = rd(*pend.pop(0))
                if rq and n < 2: k(rq.pop(0)); n += 1
                if side and i % 4 == 1 and n < 2:
                    while not side[0].startswith("buffer"): k(side.pop(0))
                    k(self.vm_note([side.pop(0)], "R")[0]); n = 2
                if cool: cool -= 1; continue
                while epi and n < 2:
                    x = epi.pop(0)
                    if isinstance(x, tuple):
                        if not o.get("dbg_nost"): k(self.vm_note([x[0]], x[1])[0]); n = 2
                    else: k(x); n += 1
            for x in rq: k(x)
            for ft in g: freer.append(where[(t, ft)])
        assert not pend and not side, (pend, side)
        self.mark("g1_loop")
        if not o.get("ppos", (6, 30)): k(self.w0(self.h_poll(0)))
        assert not epi
        un = [self.g1_unit(ft, pr, self.g1_acc(ft, 1, 2 * pr), True) for ft in groups[-1] for pr in range(2)]
        last = [x for j in range(3) for u in un for x in u[j]]
        if o.get("before", 1):
            for x in last: k(x)
            last = []
        self.after_h = self.late_stores + last + [u[3] for u in un]
        self.mark("g1_done")
        k("s_waitcnt vmcnt(0)")
        k(self.h_check(0))
        k("s_barrier")
        self.mark("b4")
    def g2_acc(self, t, st): return self.ACC + (t * 2 + st) * 4
    def g2_wf(self, p, kk, t): return 96 + ((p * 2 + kk) * 8 + t) * 4
    def g2_reads(self, j):
        o = []
        for kk in range(2):
            for t in range(8):
                for h in range(2):
                    o.append("ds_read_b64_tr_b16 %s, v%d offset:%d" % (vr(self.g2_wf(j & 1, kk, t) + 2 * h, 2), vG2r + (t & 3), (j % 4) * 16384 + h * 8192 + kk * 2048 + (t >> 2) * 1024))
        return o
    def g2(self):
        k = self.k; o = self.opt
        def hf(j, kk, st): return (((j % 4) * 2 + kk) * 2 + st) * 4
        def hld(j):
            return ["buffer_load_dwordx4 %s, v%d, s[%d:%d], s%d offen offset:%d%s" % (ar(hf(j, kk, st)), vG2h, sWS, sWS + 3, sOh, kk * 2048 + st * 256, self.LF)
                    for kk in range(2) for st in range(2)] + ["s_add_u32 s%d, s%d, 4096" % (sOh, sOh)]
        def mfmas(j):
            r = []
            for kk in range(2):
                for t in range(8):
                    for st in ((0, 1) if t % 2 == 0 else (1, 0)):
                        a = self.g2_acc(t, st)
                        r.append("v_mfma_f32_16x16x32_bf16 %s, %s, %s, %s" % (vr(a), vr(self.g2_wf(j & 1, kk, t)), ar(hf(j, kk, st)), "0" if j == 0 and kk == 0 else vr(a)))
            return r
        self.vm_reset()
        for j in range(3):
            for x in self.vm_note(hld(j), ("H", j)): k(x)
        jarr = 3
        for x in self.vm_note(self.after_h, "SB"): k(x)
        self.mark("g2_pre")
        def step(j, vm=None):
            need = self.vm_need([("W", j + 1), ("H", j)] + (["SB"] if j == jarr else []))
            k("s_waitcnt vmcnt(%d) lgkmcnt(0)" % (need if vm is None else vm))
            if j == 9: k(self.h_check(1024))
            if j < 27: k("s_barrier")
            if j in (0, 1, 3, 4, 8, 11, 24): self.mark("g2_s%d" % j)
            mf = mfmas(j); slots = [[] for _ in mf]; n = len(mf)
            if j == jarr: slots[0].append(self.h_arrive(1024))
            if j == 6: slots[0].append(self.w0(self.h_poll(1024)))
            dm = []
            if j + 4 < 28: dm += self.vm_note(self.g2_wdma(j + 4, running=j >= 12), ("W", j + 4))
            if j + 3 < 28: dm += self.vm_note(hld(j + 3), ("H", j + 3))
            rd = self.g2_reads(j + 1) if j < 27 else []
            for i, x in enumerate(rd): slots[i * 26 // len(rd)].append(x)
            self.spread(slots, dm, 2, 4)
            self.stream(mf, slots)
            return need
        for j in range(12): step(j)
        self.looped(12, 24, 4, step)
        for j in range(24, 28): step(j)
        self.mark("g2_loop")
        P = 272
        k("v_mul_u32_u24 v%d, %d, v%d", vT, P, vI); k("v_lshl_add_u32 v%d, v%d, 3, v%d", vT, vG, vT)
        k("s_mul_i32 s%d, s%d, %d", sT, sWv, 32 * P)
        k("v_add_u32 v%d, s%d, v%d", vT, sT, vT)
        k("v_mul_u32_u24 v%d, %d, v%d", vT + 1, P, vG); k("v_lshl_add_u32 v%d, v%d, 4, v%d", vT + 1, vI, vT + 1); k("v_add_u32 v%d, s%d, v%d", vT + 1, sT, vT + 1)
        k("v_lshlrev_b32 v%d, 19, v%d", vT + 2, vG); k("v_lshl_add_u32 v%d, v%d, 4, v%d", vT + 2, vI, vT + 2)
        k("v_add_u32 v%d, 0x200000, v%d", vT + 3, vT + 2)
        k("s_lshl_b32 s%d, s%d, 2", sT, sMT2); k("s_add_u32 s%d, s%d, s%d", sT, sT, sWv); k("s_lshl_b32 s%d, s%d, 13", sT, sT)
        k("s_lshl_b32 s%d, s%d, 8", sT + 1, sNT2); k("s_add_u32 s%d, s%d, s%d", sT, sT, sT + 1)
        k("s_lshl_b32 s%d, s%d, 22", sT + 1, sKH); k("s_add_u32 s%d, s%d, s%d", sT, sT, sT + 1)
        k("s_add_u32 s%d, s%d, 0x%x", sT, sT, PART_OFF)
        for st in range(2):
            for t in range(8):
                a = self.g2_acc(t, st)
                k("v_cvt_pk_bf16_f32 v%d, v%d, v%d", a, a, a + 1); k("v_cvt_pk_bf16_f32 v%d, v%d, v%d", a + 1, a + 2, a + 3)
                k("ds_write_b64 v%d, %s offset:%d", vT, vr(a, 2), st * 16 * P + t * 32)
            for j in range(4 * st, 4 * st + 4): k("ds_read_b128 %s, v%d offset:%d", vr(96 + 4 * j), vT + 1, j * 4 * P)
            for j in range(4 * st, 4 * st + 4):
                k("s_waitcnt lgkmcnt(%d)", 3 - j % 4)
                k("buffer_store_dwordx4 %s, v%d, s[%d:%d], s%d offen offset:%d%s", vr(96 + 4 * j), vT + 2 + (j & 1), sWS, sWS + 3, sT, ((j >> 1) % 2) * 2048, self.SF)
            if st == 0: k("s_add_u32 s%d, s%d, 4096", sT, sT)
    def final(self):
        k = self.k
        k("s_lshl_b32 s%d, s%d, 20", sT, sWv); k("s_lshl_b32 s%d, s%d, 11", sT + 1, sN2); k("s_add_u32 s%d, s%d, s%d", sT, sT, sT + 1)
        for X, base in ((self.XB, 8), (self.XC, 0)):
            for q in range(2):
                k("s_waitcnt vmcnt(%d)", base + 4 - 4 * q + (4 * q if X == self.XC else 0))
                for j, r in enumerate((0, 2, 1, 3)):
                    for c in range(2):
                        x = X + 8 * q + 2 * j + c; d = 64 + (q * 2 + c) * 8 + r
                        k("v_lshlrev_b32 v%d, 16, v%d", vT, x); k("v_and_b32 v%d, 0xffff0000, v%d", x, x)
                        k("v_add_f32 v%d, v%d, v%d", d, d, vT); k("v_add_f32 v%d, v%d, v%d", d + 4, d + 4, x)
                        if X == self.XC: k("v_cvt_pk_bf16_f32 v%d, v%d, v%d", x, d, d + 4)
                    if X == self.XC: k("buffer_store_dwordx2 %s, v%d, s[%d:%d], s%d offen offset:%d%s", vr(X + 8 * q + 2 * j, 2), self.vP1x, sOUT, sOUT + 3, sT, r * 128, self.opt.get("ofl", ""))
                if X == self.XC and q == 0: k("s_add_u32 s%d, s%d, 0x80000", sT, sT)
    def flag(self, s, off, sgrp=None):
        k = self.k
        k("s_add_u32 s%d, s%d, 0x%x", s, sFo, off)
        if sgrp is not None: k("s_lshl_b32 s%d, s%d, 11", sgrp, sgrp); k("s_add_u32 s%d, s%d, s%d", s, s, sgrp)
    def build(self):
        k = self.k; o = self.opt
        stop = o.get("stop")
        def stopat(n):
            if stop == n: k("s_branch L_fin")
        S1, R1 = 16, 16; S3, R3 = 2, 4; S4, R4 = 1, 2; S5, R5 = 1, 2
        gp = o.get("gp", {"1s": [0, 1], "2s": [2, 3]})
        self.prologue()
        k("L_layer:")
        self.p1_addr(); self.p1_pre()
        k("s_cmp_lg_u32 s%d, 0", sLay); k("s_cbranch_scc1 L_p1b")
        k("s_waitcnt vmcnt(%d)", 1 + (o.get("wtouch", 1) == 0) + self.npf0)
        if o.get("wtouch", 1) == 1: self.w_touch()
        self.pf(1)
        self.mark("p1_loaded")
        self.p1_a(self.XA, True)
        k("s_branch L_p1")
        k("L_last:")
        self.p1_addr()
        k("s_waitcnt lgkmcnt(0)")
        for l in range(4):
            for r in range(4):
                k("v_lshlrev_b32 v%d, 16, v%d", 64 + 8 * l + r, self.XA + 4 * l + r); k("v_and_b32 v%d, 0xffff0000, v%d", 64 + 8 * l + 4 + r, self.XA + 4 * l + r)
        k("s_branch L_p1c")
        k("L_p1b:")
        k("s_waitcnt lgkmcnt(0)")
        self.p1_a(self.XA, True, swap=False)
        k("L_p1c:")
        k("s_lshr_b32 s%d, s%d, 4", sT + 1, sN2); self.flag(sT, FL_B5 - FL_LSTRIDE & 0xffffffff, sT + 1)
        k("s_and_b32 s%d, s%d, %d", sT + 1, sN2, R5 - 1)
        self.watch(sT, S5, sT + 1, 16 // S5)
        k("s_mov_b32 s%d, s%d", sT + 1, sMT2); self.flag(sT, FL_B5 - FL_LSTRIDE & 0xffffffff, sT + 1)
        self.arrive(sT, S5, R5, None)
        self.mark("a5")
        self.wait()
        self.mark("b5")
        self.p1_loads(1); self.p1_loads(2)
        k("s_cmp_eq_u32 s%d, 2", sLay); k("s_cbranch_scc1 L_final")
        k("s_waitcnt vmcnt(8)")
        self.p1_a(self.XB, False)
        k("s_waitcnt vmcnt(0)")
        self.mark("p1_ld2")
        self.p1_a(self.XC, False)
        k("L_p1:")
        self.p1()
        self.mark("p1_done")
        L = k.label("clr"); LP = k.label("clrp"); L1 = k.label("clr1")
        k("s_or_b32 s%d, s%d, s%d", sIt, sLay, sWv); k("s_cmp_lg_u32 s%d, 0", sIt); k("s_cbranch_scc1 " + L1)
        k("v_mov_b32 v%d, 0", self.vP + 1)
        k("global_load_dword v%d, v%d, s[76:77] sc1", self.vP, self.vP + 1)
        k(L1 + ":")
        self.p2_pre()
        k("s_cmp_lg_u32 s%d, 0", sIt); k("s_cbranch_scc1 " + L)
        k(LP + ":")
        k("s_waitcnt vmcnt(0)")
        k("v_cmp_ne_u32 vcc, 1, v%d", self.vP); k("s_cbranch_vccz " + L)
        k("v_mov_b32 v%d, 0", self.vP + 1)
        k("global_load_dword v%d, v%d, s[76:77] sc1", self.vP, self.vP + 1)
        k("s_add_u32 s%d, s%d, 1", sIt, sIt); k("s_cmp_lt_u32 s%d, 0x40000", sIt); k("s_cbranch_scc1 " + LP)
        k(L + ":")
        self.flag(sT, FL_B1); k("s_and_b32 s%d, s2, %d", sT + 1, R1 - 1)
        self.watch(sT, S1, sT + 1, 256 // S1)
        k("s_lshr_b32 s%d, s2, 4", sT + 1)
        self.arrive(sT, S1, R1, sT + 1)
        self.mark("a1")
        self.poll()
        L = k.label("once"); L2 = k.label("nsp"); L3 = k.label("both")
        k("s_cmp_lg_u32 s%d, 0", sLay); k("s_cbranch_scc1 " + L)
        self.w_loads(False)
        k("s_cmp_ge_u32 s2, 8"); k("s_cbranch_scc1 " + L2)
        self.w_loads(True)
        k(L2 + ":")
        self.g_addr()
        self.x_sum(True)
        k("s_waitcnt vmcnt(0)")
        k("s_branch " + L3)
        k(L + ":")
        self.x_sum(False)
        k(L3 + ":")
        self.g1_prefetch(gp.get("1s"), True)
        self.pf("1s")
        self.wait()
        self.mark("b1")
        self.p2()
        self.mark("p2_done")
        self.p3_pre()
        self.flag(sT, FL_B2); k("s_and_b32 s%d, s2, %d", sT + 1, R1 - 1)
        self.watch(sT, S1, sT + 1, 256 // S1)
        k("s_lshr_b32 s%d, s2, 4", sT + 1)
        self.arrive(sT, S1, R1, sT + 1)
        self.mark("a2")
        self.g1_prefetch(gp.get("2s"), True)
        self.pf("2s")
        L = k.label("once")
        k("s_cmp_lg_u32 s%d, 0", sLay); k("s_cbranch_scc1 " + L)
        self.consts(True)
        k(L + ":")
        self.wait()
        self.mark("b2")
        self.p3(lambda: self.pf(3))
        self.mark("p3_done")
        self.x1_park()
        self.g1_pre()
        nz = o.get("nz", 64)
        for i in range(0, nz, 2): k("v_mov_b64 %s, 0", vr(self.ACC + i, 2))
        k("s_mov_b32 s%d, s%d", sT + 1, sMT); self.flag(sT, FL_B3, sT + 1); k("s_and_b32 s%d, s%d, %d", sT + 1, sNT, R3 - 1)
        self.watch(sT, S3, sT + 1, 32 // S3)
        k("s_lshr_b32 s%d, s%d, 5", sT + 1, sN2); self.flag(sT, FL_B3, sT + 1); k("s_and_b32 s%d, s%d, %d", sT + 1, sN2, S3 - 1)
        self.arrive(sT, S3, R3, sT + 1)
        self.mark("a3")
        self.poll()
        self.pf("3s")
        for i in range(nz, 224, 2): k("v_mov_b64 %s, 0", vr(self.ACC + i, 2))
        self.wait()
        self.mark("b3")
        self.g1()
        self.g2()
        self.mark("g2_done")
        self.x1_read()
        k("s_add_u32 s%d, s%d, 0x%x", sXS, sWS, PART_OFF); k("s_addc_u32 s%d, s%d, 0", sXS + 1, sWS + 1); k("s_mov_b32 s%d, 0x800000", sXS + 2)
        k("s_add_u32 s%d, s%d, 0x%x", sWS, sWS, LSTRIDE); k("s_addc_u32 s%d, s%d, 0", sWS + 1, sWS + 1)
        k("s_add_u32 s%d, s%d, 0x%x", sFo, sFo, FL_LSTRIDE)
        k("s_cmp_eq_u32 s%d, 0", sLay); k("s_cselect_b32 s%d, 1, 2", sLay)
        k("s_cbranch_scc0 L_last")
        k("s_branch L_layer")
        k("L_final:")
        self.final()
        k("L_fin:")
        if o.get("padat"): k("s_waitcnt vmcnt(0)"); self.mark("fin")
        if o.get("stamp"):
            k("s_waitcnt vmcnt(0)")
            k("s_mov_b32 s%d, 1", sLay); self.nmark = 31; self.mark("end")
            srd(k, sTM, 78, 1 << 20, 240 << 20)
            k("s_lshl_b32 s%d, s2, 10", sT); k("s_lshl_b32 s%d, s%d, 8", sT + 1, sWv); k("s_add_u32 s%d, s%d, s%d", sT, sT, sT + 1)
            k("v_lshlrev_b32 v%d, 2, v0", vT)
            k("buffer_store_dword v31, v%d, s[%d:%d], s%d offen", vT, sTM, sTM + 3, sT)
        k("L_end:")
        k("s_endpgm")
        k.lines = hazard.fix(k.lines)
        return k

HEADER = open("interleave_layers__spectral_gfnet__glu_gated_bilinear__prompt.s.ref").read().split("; Override")[0]
def generate(path, opt):
    g = Gen(opt); k = g.build()
    o = [HEADER.rstrip("\n")]
    if opt.get("stamp"): o.append("; marks " + repr(g.marknames))
    o.append("; @launch grid=(256,1,1) block=(256,1,1) lds=%d" % LDS_BYTES)
    o += ['.amdgcn_target "amdgcn-amd-amdhsa--gfx950"', ".text", k.text(), '.section .rodata,"a"', k.desc()]
    open(path, "w").write("\n".join(o))
if __name__ == "__main__":
    generate(sys.argv[1], eval(sys.argv[2]) if len(sys.argv) > 2 else {})
```

```python
import sys, math
sys.path.insert(0, "tools")
from asmgen import *
import hazard
KNAME = "interleave_layers__spectral_gfnet__glu_gated_bilinear__prompt_kernel"
U_OFF, V_OFF, XL_OFF, PART_OFF, H_OFF, ST_OFF = 0x0, 0x400000, 0x800000, 0xC00000, 0x1400000, 0x2200000
LSTRIDE = 0x2400000
FL_OFF = 2 * LSTRIDE
FL_B1, FL_B2, FL_B3, FL_B4, FL_B5, FL_LSTRIDE = 0, 0x8000, 0x10000, 0x14000, 0x1C000, 0x24000
L_G1, L_G2 = 0, 0x10000
L_P1, L_P2, L_P3A, L_P3B = 0x10000, 0x1C000, 0x18000, 0x10000
L_W2 = L_P3A
L_W = 0x20000
L_X = 0x24000
LDS_BYTES = 0x28000
sWS, sXS, sG, sU, sD, sOUT, sFL, sTM = 4, 8, 12, 16, 20, 24, 28, 32
sN2, sWv, sLay = 40, 41, 42
sMT, sNT, sMT2, sNT2, sKH = 43, 44, 45, 46, 47
sFo = 48
sOx, sOw, sOh, sOd, sM0, sIt = 49, 50, 51, 52, 53, 54
sPo = 39
sDa, sDb, sOe = 36, 37, 38
sT = 56
sK = 84
vL, vI, vG = 0, 1, 2
vG1r, vG1x, vG1w = 3, 4, 5
vG2r, vG2w, vG2h = 7, 11, 15
vL128 = 16
vT = 17
aF, aGm, aM1, aM1H, aC, aCH, aFp = 176, 184, 192, 208, 224, 228, 232
EPS = 1e-5
import struct
def fl(x): return "0x%x" % struct.unpack("<I", struct.pack("<f", x))[0]
def vr(b, n=4): return "v[%d:%d]" % (b, b + n - 1)
def ar(b, n=4): return "a[%d:%d]" % (b, b + n - 1)
def setexec(k, n):
    if n == 64: k("s_mov_b64 exec, -1"); return
    m = (1 << n) - 1
    k("s_mov_b32 exec_lo, 0x%x" % (m & 0xffffffff)); k("s_mov_b32 exec_hi, 0x%x" % (m >> 32))

class Gen:
    def __init__(self, opt):
        self.opt = opt
        self.k = Kern(KNAME, vgprs=256, agprs=256, sgprs=102)
        self.nmark = 0
        self.SF = " sc1"
        self.LF = opt.get("lf", " sc1")
    def mark(self, name):
        pad = self.opt.get("padat")
        if pad:
            k = self.k
            if name == "start": k("s_memrealtime s[100:101]"); k("s_waitcnt lgkmcnt(0)")
            if name == pad[0]:
                L = k.label("pad"); LX = k.label("padx")
                k("s_cmp_lg_u32 s%d, %d", sLay, pad[1]); k("s_cbranch_scc1 " + LX)
                k(L + ":"); k("s_memrealtime s[96:97]"); k("s_waitcnt lgkmcnt(0)")
                k("s_sub_u32 s96, s96, s100"); k("s_cmp_lt_u32 s96, %d", int(pad[2] * 100)); k("s_cbranch_scc1 " + L)
                k(LX + ":")
        if not self.opt.get("stamp"): return
        k = self.k; i = self.nmark; self.nmark += 1
        self.marknames = getattr(self, "marknames", []) + [name]
        k("s_memrealtime s[96:97]"); k("s_waitcnt lgkmcnt(0)")
        k("s_lshl_b32 s98, s%d, 5", sLay); k("s_add_u32 s98, s98, %d", i); k("s_mov_b32 s99, m0"); k("s_and_b32 m0, s98, 63")
        k("s_nop 0"); k("v_writelane_b32 v31, s96, m0"); k("s_mov_b32 m0, s99")
    def cs(self, dc, ds, vint, scale, add=None):
        k = self.k; t = vT + 13
        k("v_cvt_f32_u32 v%d, v%d", t, vint)
        k("v_mul_f32 v%d, %s, v%d", t, fl(scale), t)
        if add is not None: k("v_add_f32 v%d, v%d, v%d", t, add, t)
        k("v_fract_f32 v%d, v%d", t, t)
        k("v_cos_f32 v%d, v%d", dc, t); k("v_sin_f32 v%d, v%d", ds, t)
    def pack_to_a(self, a, lo, hi, neglo=False, neghi=False):
        k = self.k; t = vT + 12
        k("v_cvt_pk_bf16_f32 v%d, %sv%d, %sv%d", t, "-" if neglo else "", lo, "-" if neghi else "", hi)
        k("v_accvgpr_write_b32 a%d, v%d", a, t)
    vP, vQ = 13, 28
    def arrive(self, sbase, S, R, sshard):
        k = self.k
        if sshard is not None:
            k("s_lshl_b32 s%d, s%d, 7", sT + 3, sshard); k("s_add_u32 s%d, s%d, s%d", sT + 3, sT + 3, sbase)
        else: k("s_mov_b32 s%d, s%d", sT + 3, sbase)
        k("v_mul_u32_u24 v%d, %d, v%d", vT, S, vL128); k("v_mov_b32 v%d, 1", vT + 1)
        k("s_waitcnt vmcnt(0)"); k("s_barrier")
        L = k.label("arr")
        k("s_cmp_lg_u32 s%d, 0", sWv); k("s_cbranch_scc1 " + L)
        setexec(k, R)
        k("buffer_atomic_add v%d, v%d, s[%d:%d], s%d offen sc1", vT + 1, vT, sFL, sFL + 3, sT + 3)
        setexec(k, 64)
        k(L + ":")
    def watch(self, sbase, S, srep, count):
        k = self.k
        if srep is not None:
            k("s_mul_i32 s%d, s%d, %d", sPo, srep, S * 128); k("s_add_u32 s%d, s%d, s%d", sPo, sPo, sbase)
        else: k("s_mov_b32 s%d, s%d", sPo, sbase)
        self.wS, self.wcount, self.npoll = S, count, 0
    def poll(self, level=1):
        if level > self.opt.get("polls", 2): return
        k = self.k; L = k.label("pl"); v = self.vP + self.npoll; self.npoll += 1
        k("s_cmp_lg_u32 s%d, 0", sWv); k("s_cbranch_scc1 " + L)
        k("v_mov_b32 v%d, 0", v); setexec(k, self.wS)
        k("buffer_atomic_add v%d, v%d, s[%d:%d], s%d offen sc0 sc1", v, vL128, sFL, sFL + 3, sPo)
        setexec(k, 64)
        k(L + ":")
    def wait(self):
        k = self.k; S, count, n = self.wS, self.wcount, self.npoll
        L = k.label("wdone"); LP = k.label("poll"); LX = k.label("pollx")
        k("s_cmp_lg_u32 s%d, 0", sWv); k("s_cbranch_scc1 " + L)
        k("s_mov_b32 s%d, 0", sT + 2)
        setexec(k, S)
        k(LP + ":")
        k("v_mov_b32 v%d, 0", self.vQ)
        k("buffer_atomic_add v%d, v%d, s[%d:%d], s%d offen sc0 sc1", self.vQ, vL128, sFL, sFL + 3, sPo)
        for i in range(n):
            k("s_waitcnt vmcnt(%d)", n - i)
            k("v_cmp_ne_u32 vcc, %d, v%d", count, self.vP + i)
            k("s_cbranch_vccz " + LX)
        k("s_add_u32 s%d, s%d, 1", sT + 2, sT + 2); k("s_cmp_ge_u32 s%d, 0x40000", sT + 2); k("s_cbranch_scc1 " + LX)
        k("s_waitcnt vmcnt(0)")
        k("v_cmp_ne_u32 vcc, %d, v%d", count, self.vQ)
        k("s_cbranch_vccnz " + LP)
        k(LX + ":")
        setexec(k, 64)
        k(L + ":")
        k("s_barrier")
    def reduce4(self, p, q, r, s, c2):
        k = self.k
        k("v_permlane16_swap_b32 v%d, v%d", p, q); k("v_permlane16_swap_b32 v%d, v%d", r, s)
        k("v_add_f32 v%d, v%d, v%d", p, p, q); k("v_add_f32 v%d, v%d, v%d", r, r, s)
        k("v_permlane32_swap_b32 v%d, v%d", p, r)
        k("v_add_f32 v%d, v%d, v%d", r, p, r)
        for sh in (8, 4, 2, 1): k("v_add_f32_dpp v%d, v%d, v%d row_ror:%d row_mask:0xf bank_mask:0xf", r, r, r, sh)
        k("v_mov_b32 v%d, v%d", p, r)
        k("v_permlane32_swap_b32 v%d, v%d", p, r)
        k("v_mul_f32 v%d, %s, v%d", p, fl(1.0 / 1024), p)
        k("v_mul_f32 v%d, %s, v%d", r, fl(c2), r)
        k("v_fma_f32 v%d, -v%d, v%d, v%d", r, p, p, r)
        k("v_max_f32 v%d, 0, v%d", r, r)
        k("v_add_f32 v%d, %s, v%d", r, fl(EPS), r)
    def sums(self, base, t):
        k = self.k
        for j in range(8):
            for q in range(2):
                b = base + 16 * q + 2 * j
                if j == 0: k("v_pk_mul_f32 %s, %s, %s", vr(t + 4 + 2 * q, 2), vr(b, 2), vr(b, 2))
                else: k("v_pk_fma_f32 %s, %s, %s, %s", vr(t + 4 + 2 * q, 2), vr(b, 2), vr(b, 2), vr(t + 4 + 2 * q, 2))
                if j == 1: k("v_pk_add_f32 %s, %s, %s", vr(t + 2 * q, 2), vr(b - 2, 2), vr(b, 2))
                elif j > 1: k("v_pk_add_f32 %s, %s, %s", vr(t + 2 * q, 2), vr(t + 2 * q, 2), vr(b, 2))
        for j in range(4): k("v_add_f32 v%d, v%d, v%d", t + 2 * j, t + 2 * j, t + 2 * j + 1)
    def twiddle(self, re, im, tc, ts, tmp, out, conj=False, e=None):
        k = self.k
        for h in (0, 2):
            if e is None:
                k("v_pk_mul_f32 %s, %s, %s", vr(tmp + h, 2), vr(re + h, 2), vr(tc + h, 2))
                k("v_pk_mul_f32 %s, %s, %s", vr(tmp + 4 + h, 2), vr(im + h, 2), vr(tc + h, 2))
            else:
                k("v_pk_fma_f32 %s, %s, %s, %s op_sel_hi:[1,1,0]", vr(tmp + h, 2), vr(re + h, 2), vr(tc + h, 2), vr(e, 2))
                k("v_pk_fma_f32 %s, %s, %s, %s op_sel_hi:[1,1,0]", vr(tmp + 4 + h, 2), vr(im + h, 2), vr(tc + h, 2), vr(e, 2))
        neg = " neg_lo:[1,0,0] neg_hi:[1,0,0]"
        for h in (0, 2):
            k("v_pk_fma_f32 %s, %s, %s, %s%s", vr(tmp + h, 2), vr(im + h, 2), vr(ts + h, 2), vr(tmp + h, 2), neg if conj else "")
            k("v_pk_fma_f32 %s, %s, %s, %s%s", vr(tmp + 4 + h, 2), vr(re + h, 2), vr(ts + h, 2), vr(tmp + 4 + h, 2), "" if conj else neg)
        for r in range(4): k("v_cvt_pk_bf16_f32 v%d, v%d, v%d", out + r, tmp + r, tmp + 4 + r)
    def mf(self, d, a, b, c="0", kk=32):
        self.k("v_mfma_f32_16x16x%d_bf16 %s, %s, %s, %s", kk, vr(d), a, b, c if isinstance(c, str) else vr(c))

    def prologue(self):
        k = self.k; o = self.opt
        k("s_cmp_ge_u32 s2, 256"); k("s_cbranch_scc1 L_end")
        k("s_load_dwordx4 s[60:63], s[0:1], 0")
        k("s_load_dwordx2 s[64:65], s[0:1], 16")
        k("s_load_dwordx8 s[68:75], s[0:1], 32")
        k("s_load_dwordx4 s[76:79], s[0:1], 64")
        if not o.get("nocodepf"):
            k("s_getpc_b64 s[66:67]")
            k("L_pc:")
            k("v_lshlrev_b32 v%d, 7, v0", vT)
            k("v_min_u32 v%d, (L_end-L_pc), v%d", vT, vT)
            k("global_load_dword a254, v%d, s[66:67]", vT)
            k("v_add_u32 v%d, 0x8000, v%d", vT, vT); k("v_min_u32 v%d, (L_end-L_pc), v%d", vT, vT)
            k("global_load_dword a254, v%d, s[66:67]", vT)
        k("v_lshrrev_b32 v%d, 6, v0", vT); k("v_and_b32 v0, 63, v0")
        k("v_readfirstlane_b32 s%d, v%d", sWv, vT)
        k("v_and_b32 v%d, 15, v0", vI); k("v_lshrrev_b32 v%d, 4, v0", vG)
        k("v_lshlrev_b32 v%d, 7, v0", vL128)
        k("s_and_b32 s%d, s2, 7", sT); k("s_lshr_b32 s%d, s2, 3", sT + 1)
        k("s_lshl_b32 s%d, s%d, 5", sN2, sT); k("s_add_u32 s%d, s%d, s%d", sN2, sN2, sT + 1)
        k("s_and_b32 s%d, s%d, 1", sKH, sT); k("s_lshr_b32 s%d, s%d, 1", sT, sT)
        k("s_lshr_b32 s%d, s%d, 1", sT + 2, sT); k("s_lshl_b32 s%d, s%d, 2", sT + 2, sT + 2)
        k("s_and_b32 s%d, s%d, 3", sT + 3, sT + 1); k("s_add_u32 s%d, s%d, s%d", sMT, sT + 3, sT + 2)
        k("s_lshr_b32 s%d, s%d, 2", sT + 1, sT + 1)
        k("s_and_b32 s%d, s%d, 1", sT + 2, sT); k("s_lshl_b32 s%d, s%d, 3", sT + 2, sT + 2); k("s_lshl_b32 s%d, s%d, 4", sNT, sKH)
        k("s_add_u32 s%d, s%d, s%d", sNT, sNT, sT + 2); k("s_add_u32 s%d, s%d, s%d", sNT, sNT, sT + 1)
        if o.get("map2", 0) == 0:
            k("s_lshl_b32 s%d, s%d, 2", sMT2, sT); k("s_add_u32 s%d, s%d, s%d", sMT2, sMT2, sT + 3); k("s_mov_b32 s%d, s%d", sNT2, sT + 1)
        else:
            k("s_and_b32 s%d, s%d, 1", sT + 3, sT + 1); k("s_lshl_b32 s%d, s%d, 1", sMT2, sMT); k("s_add_u32 s%d, s%d, s%d", sMT2, sMT2, sT + 3)
            k("s_lshr_b32 s%d, s%d, 1", sT + 2, sT + 2); k("s_lshr_b32 s%d, s%d, 1", sNT2, sT + 1); k("s_add_u32 s%d, s%d, s%d", sNT2, sNT2, sT + 2)
        k("s_mov_b32 s%d, 0", sLay); k("s_mov_b32 s%d, 0", sFo)
        k("s_lshl_b32 s%d, s%d, 12", sM0, sWv)
        if o.get("stamp"): k("v_mov_b32 v31, 0")
        self.p1_addr()
        k("v_lshlrev_b32 v%d, 4, v0", vT); k("v_mov_b64 v[20:21], 0"); k("v_mov_b64 v[22:23], 0")
        k("s_waitcnt lgkmcnt(0)")
        srd(k, sXS, 60, 2048 * 2048)
        srd(k, sFL, 78, 2 * FL_LSTRIDE, FL_OFF)
        self.mark("start")
        L = k.label("nz")
        k("s_sub_u32 s%d, s2, 8", sIt); k("s_cmp_ge_u32 s%d, 4", sIt); k("s_cbranch_scc1 " + L)
        k("s_lshl_b32 s%d, s%d, 13", sT, sIt); k("s_lshl_b32 s%d, s%d, 11", sT + 1, sWv); k("s_add_u32 s%d, s%d, s%d", sT, sT, sT + 1)
        for j in range(2): k("buffer_store_dwordx4 v[20:23], v%d, s[%d:%d], s%d offen offset:%d sc1", vT, sFL, sFL + 3, sT, j * 1024)
        k(L + ":")
        self.p1_loads(0, o.get("xfl", ""))
        srd(k, sWS, 78, LSTRIDE)
        srd(k, sG, 68, 1024 * 7168)
        k("s_sub_u32 s%d, s70, 2048", sU); k("s_subb_u32 s%d, s71, 0", sU + 1)
        k("s_mov_b32 s%d, 0x%x", sU + 2, 1024 * 7168 + 2048); k("s_mov_b32 s%d, 0x20000", sU + 3)
        k("s_sub_u32 s%d, s72, 3072", sD); k("s_subb_u32 s%d, s73, 0", sD + 1)
        k("s_mov_b32 s%d, 0x%x", sD + 2, 3584 * 2048 + 3072); k("s_mov_b32 s%d, 0x20000", sD + 3)
        srd(k, sOUT, 74, 2048 * 2048)
        k("s_lshl_b32 s%d, s2, 10", sT); k("s_lshl_b32 s%d, s%d, 8", sT + 1, sWv); k("s_add_u32 s%d, s%d, s%d", sT, sT, sT + 1); k("s_add_u32 s%d, s%d, 0x8000", sT, sT)
        setexec(k, 16)
        k("buffer_store_dwordx4 v[20:23], v%d, s[%d:%d], s%d offen sc1", vT, sFL, sFL + 3, sT)
        setexec(k, 64)
        self.w_prep()
        self.npf0 = self.pf(0)
        self.consts(False)
    def w_prep(self):
        k = self.k
        k("s_lshr_b32 s%d, s%d, 5", sT, sN2); k("s_and_b32 s%d, s%d, 31", sT + 1, sN2)
        k("s_lshl_b32 s80, s%d, 4", sT + 1); k("s_sub_u32 s%d, 1010, s80", sT + 3)
        k("s_cmp_ge_u32 s%d, 2", sWv); k("s_cselect_b32 s80, s%d, s80", sT + 3); k("s_cselect_b32 s%d, -1, 0", sT + 3); k("s_cselect_b32 s%d, 508, 0", sT + 2)
        k("s_bitcmp1_b32 s%d, 0", sWv); k("s_cselect_b32 s%d, s64, s62", sTM); k("s_cselect_b32 s%d, s65, s63", sTM + 1)
        k("s_mov_b32 s%d, 0x%x", sTM + 2, 2048 * 1026); k("s_mov_b32 s%d, 0x20000", sTM + 3)
        def row(d, src):
            k("v_xor_b32 v%d, s%d, v%d", d, sT + 3, src); k("v_subrev_u32 v%d, s%d, v%d", d, sT + 3, d)
            k("v_and_b32 v%d, 2047, v%d", d, d); k("v_mul_u32_u24 v%d, 1026, v%d", d, d)
        k("s_lshl_b32 s81, s%d, 6", sT + 1); k("s_add_u32 s81, s81, s%d", sT)
        k("v_and_b32 v%d, 56, v0", vT); k("v_add_u32 v%d, s81, v%d", vT, vT); row(vT, vT)
        k("v_and_b32 v%d, 7, v0", vT + 1); k("v_lshlrev_b32 v%d, 7, v%d", vT + 1, vT + 1); k("v_min_u32 v%d, 514, v%d", vT + 1, vT + 1)
        k("v_add3_u32 v214, v%d, v%d, s%d", vT, vT + 1, sT + 2)
        if self.opt.get("wtouch", 1) == 0: self.w_touch()
        k("v_lshlrev_b32 v%d, 3, v%d", vT, vI); k("v_lshl_add_u32 v%d, v%d, 9, v%d", vT, vG, vT); k("v_add_u32 v%d, s%d, v%d", vT, sT, vT)
        for r in range(4):
            k("v_add_u32 v%d, %d, v%d", 208 + r, 128 * r, vT); row(208 + r, 208 + r)
        for j in range(2):
            k("s_and_b32 s%d, s%d, 2", sT, sWv); k("s_add_u32 s%d, s%d, %d", sT, sT, j); k("s_lshl_b32 s%d, s%d, 7", sT, sT)
            k("v_add_u32 v%d, s%d, v%d", 212 + j, sT, vT); k("v_mul_u32_u24 v%d, 1026, v%d", 212 + j, 212 + j); k("v_add_u32 v%d, 512, v%d", 212 + j, 212 + j)
    def w_touch(self):
        self.k("buffer_load_dword a255, v214, s[%d:%d], 0 offen%s", sTM, sTM + 3, self.opt.get("wfl", ""))
    def w_in_p1(self, rs):
        k = self.k
        rs = [r for r in rs if r < self.opt.get("wp1", 0)]
        if not rs: return
        L = k.label("wp"); k("s_cmp_lg_u32 s%d, 0", sLay); k("s_cbranch_scc1 " + L)
        self.w_loads(False, rs)
        k(L + ":")
    def w_loads(self, special, rs=None):
        k = self.k
        if rs is None: rs = range(self.opt.get("wp1", 0), 4)
        if self.opt.get("now"): return
        if special:
            k("s_lshl_b32 s%d, s%d, 9", sT, sWv)
            for j in range(2):
                k("s_add_u32 m0, s%d, 0x%x", sT, L_W2 + j * 256)
                k("buffer_load_ushort v%d, s[%d:%d], 0 offen lds", 212 + j, sTM, sTM + 3)
            return
        for r in rs:
            k("s_add_u32 m0, s%d, 0x%x", sM0, L_W + r * 1024)
            k("buffer_load_dwordx4 v%d, s[%d:%d], s80 offen lds", 208 + r, sTM, sTM + 3)
    def w_park(self):
        k = self.k; W = 152
        L = k.label("nsp")
        k("s_and_b32 s%d, s%d, 31", sT, sN2); k("s_or_b32 s%d, s%d, s%d", sT, sT, sWv)
        k("s_cmp_lg_u32 s%d, 0", sT); k("s_cbranch_scc1 " + L)
        k("v_lshlrev_b32 v%d, 4, v0", vT); k("v_add_u32 v%d, 0x%x, v%d", vT, L_W, vT)
        k("v_lshlrev_b32 v%d, 2, v0", vT + 1); k("v_add_u32 v%d, 0x%x, v%d", vT + 1, L_W2, vT + 1)
        for r in range(4):
            for m in range(2): k("ds_read_b32 v%d, v%d offset:%d", W + 4 * m + r, vT + 1, ((r & 2) + m) * 512 + (r & 1) * 256)
        k("s_waitcnt lgkmcnt(0)")
        for r in range(4):
            for m in range(2): k("ds_write_b16 v%d, v%d offset:%d", vT, W + 4 * m + r, m * 4096 + r * 1024)
        k(L + ":")
    def pf(self, window):
        k = self.k; n = 0
        todo = self.opt.get("pf", {}).get(window, [])
        if not todo: return 0
        shadow = str(window).endswith("s")
        L = k.label("pf")
        if shadow:
            k("s_sub_u32 s%d, s%d, 1", sT + 1, sWv); k("s_lshl_b32 s%d, s%d, 4", sT, sLay); k("s_add_u32 s%d, s%d, s%d", sT + 1, sT + 1, sT)
            k("s_cmp_ge_u32 s%d, 2", sT + 1); k("s_cbranch_scc1 " + L)
            k("s_lshl_b32 s%d, s2, 1", sT); k("s_add_u32 s%d, s%d, s%d", sT, sT, sT + 1); k("s_mul_i32 s%d, s%d, %d", sT, sT, 28 * 128)
            setexec(k, 28)
        else:
            k("s_lshl_b32 s%d, s2, 2", sT); k("s_add_u32 s%d, s%d, s%d", sT, sT, sWv); k("s_mul_i32 s%d, s%d, %d", sT, sT, 14 * 128)
            k("s_cmp_eq_u32 s%d, 0", sLay); k("s_cselect_b64 exec, 0x3fff, 1")
        for (m, c) in todo:
            r, bias = {"g": (sG, 0), "u": (sU, 2048), "d": (sD, 3072)}[m]
            k("s_add_u32 s%d, s%d, %d", sT + 1, sT, int(c * (7340032 // 4)) + bias)
            k("buffer_load_dword a255, v%d, s[%d:%d], s%d offen", vL128, r, r + 3, sT + 1); n += 1
        setexec(k, 64)
        k(L + ":")
        return 0 if shadow else n
    def consts(self, inv):
        k = self.k; c, s, n = vT, vT + 1, vT + 2
        for r in range(4):
            k("v_lshl_add_u32 v%d, v%d, 2, %d", n + 1, vG, r)
            k("v_mul_u32_u24 v%d, v%d, v%d", n, vI, n + 1)
            if not inv:
                self.cs(c, s, n, 1.0 / 16)
                self.pack_to_a(aF + r, c, s); k("v_accvgpr_write_b32 a%d, v%d", aFp + self.RO[r], vT + 12)
                self.pack_to_a(aF + 4 + r, s, c, neglo=True); k("v_accvgpr_write_b32 a%d, v%d", aFp + 4 + self.RO[r], vT + 12)
                self.pack_to_a(aGm + r, c, s, neghi=True); self.pack_to_a(aGm + 4 + r, s, c)
                k("v_lshl_add_u32 v%d, v%d, 1, v%d", n + 2, n, vI)
                self.cs(c, s, n + 2, 1.0 / 32)
                self.pack_to_a(aM1 + r, c, s); self.pack_to_a(aM1 + 4 + r, s, c, neglo=True)
                self.pack_to_a(aM1 + 8 + r, c, s, True, True); self.pack_to_a(aM1 + 12 + r, s, c, neghi=True)
            else:
                k("v_lshl_add_u32 v%d, v%d, 1, v%d", n + 2, n, n + 1)
                self.cs(c, s, n + 2, 1.0 / 32)
                self.pack_to_a(aM1H + r, c, s, neghi=True); self.pack_to_a(aM1H + 4 + r, s, c)
                self.pack_to_a(aM1H + 8 + r, c, s, neglo=True); self.pack_to_a(aM1H + 12 + r, s, c, True, True)
        k("v_and_b32 v%d, 1, v%d", n + 3, vI); k("v_cvt_f32_u32 v%d, v%d", n + 4, n + 3); k("v_mul_f32 v%d, 0x3e800000, v%d", n + 4, n + 4)
        if inv: k("v_mul_u32_u24 v%d, 0x8000, v%d", n + 3, n + 3); k("v_lshl_or_b32 v%d, v%d, 16, v%d", n + 3, n + 3, n + 3)
        k("v_lshrrev_b32 v%d, 1, v%d", n + 5, vI)
        for q in range(2):
            k("v_lshl_add_u32 v%d, v%d, 1, %d", n + 1, vG, q)
            if not inv:
                k("v_lshlrev_b32 v%d, 8, v%d", n, n + 1); k("v_add_u32 v%d, s%d, v%d", n, sN2, n); k("v_mul_u32_u24 v%d, v%d, v%d", n, n, n + 5)
                self.cs(c, s, n, 1.0 / 2048, add=n + 4)
                self.pack_to_a(aC + q, c, s); self.pack_to_a(aC + 2 + q, c, s, neghi=True)
            else:
                k("v_lshlrev_b32 v%d, 8, v%d", n, n + 5); k("v_add_u32 v%d, s%d, v%d", n, sN2, n); k("v_mul_u32_u24 v%d, v%d, v%d", n, n, n + 1)
                self.cs(c, s, n, -1.0 / 2048, add=n + 4)
                self.pack_to_a(aCH + q, c, s)
                k("v_xor_b32 v%d, v%d, v%d", vT + 12, vT + 12, n + 3); k("v_accvgpr_write_b32 a%d, v%d", aCH + 2 + q, vT + 12)
    def g_addr(self):
        k = self.k; t = vT
        k("v_lshlrev_b32 v%d, 4, v0", t); k("v_add_u32 v%d, s%d, v%d", vG1x, sM0, t)
        k("v_lshrrev_b32 v%d, 5, v0", t); k("v_lshlrev_b32 v%d, 12, v%d", t, t)
        k("v_bfe_u32 v%d, v0, 4, 1", t + 1); k("v_mul_u32_u24 v%d, 1152, v%d", t + 1, t + 1)
        k("v_bfe_u32 v%d, v0, 2, 2", t + 2); k("v_mul_u32_u24 v%d, 224, v%d", t + 2, t + 2)
        k("v_and_b32 v%d, 3, v0", t + 3); k("v_lshlrev_b32 v%d, 3, v%d", t + 3, t + 3)
        k("v_add3_u32 v%d, v%d, v%d, v%d", t + 1, t, t + 1, t + 2); k("v_add_u32 v%d, v%d, v%d", vG1r, t + 1, t + 3)
        for j in range(2):
            k("s_lshl_b32 s%d, s%d, 3", sT, sWv); k("s_add_u32 s%d, s%d, %d", sT, sT, 4 * j)
            k("s_mul_i32 s%d, s%d, 7168", sT, sT); k("s_mul_i32 s%d, s%d, 224", sT + 1, sNT); k("s_add_u32 s%d, s%d, s%d", sT, sT, sT + 1)
            if j: k("s_sub_u32 s%d, s%d, 1024", sT, sT)
            k("v_subrev_u32 v%d, %d, v0", t + 4, 8 * j)
            k("v_mul_u32_u24 v%d, 4682, v%d", t + 5, t + 4); k("v_lshrrev_b32 v%d, 16, v%d", t + 5, t + 5)
            k("v_mul_u32_u24 v%d, 14, v%d", t + 6, t + 5); k("v_sub_u32 v%d, v%d, v%d", t + 6, t + 4, t + 6)
            k("v_mul_u32_u24 v%d, 7168, v%d", t + 5, t + 5); k("v_lshl_add_u32 v%d, v%d, 4, v%d", t + 5, t + 6, t + 5)
            k("v_add_u32 v%d, s%d, v%d", t + 5, sT, t + 5)
            k("v_cmp_gt_u32 vcc, 56, v%d", t + 4)
            k("v_mov_b32 v%d, 0x80000000", t + 6)
            k("v_cndmask_b32 v%d, v%d, v%d, vcc", vG1w + j, t + 6, t + 5)
        k("v_lshlrev_b32 v%d, 4, v%d", t + 4, vI); k("v_lshl_add_u32 v%d, v%d, 9, v%d", vG2h, vG, t + 4)
        k("v_bfe_u32 v%d, v0, 2, 3", t + 4); k("v_lshrrev_b32 v%d, 1, v%d", t + 5, t + 4)
        k("v_lshl_add_u32 v%d, v%d, 7, v%d", t + 4, t + 4, t); k("v_add_u32 v%d, v%d, v%d", t + 4, t + 4, t + 3)
        k("s_lshr_b32 s%d, s%d, 1", sT, sWv); k("s_lshl_b32 s%d, s%d, 14", sT, sT); k("v_add_u32 v%d, s%d, v%d", t + 4, sT, t + 4)
        for x in range(4):
            k("v_xor_b32 v%d, %d, v%d", t + 6, x, t + 5); k("v_lshl_add_u32 v%d, v%d, 5, v%d", vG2r + x, t + 6, t + 4)
        k("s_lshr_b32 s%d, s%d, 1", sT, sWv); k("s_lshl_b32 s%d, s%d, 13", sT, sT)
        if self.opt.get("ilv"):
            k("s_lshr_b32 s%d, s%d, 1", sT + 1, sNT2); k("s_lshl_b32 s%d, s%d, 9", sT + 1, sT + 1); k("s_add_u32 s%d, s%d, s%d", sT, sT, sT + 1)
            k("s_and_b32 s%d, s%d, 1", sT + 1, sNT2); k("s_lshl_b32 s%d, s%d, 7", sT + 1, sT + 1); k("s_add_u32 s%d, s%d, s%d", sT, sT, sT + 1)
        else: k("s_lshl_b32 s%d, s%d, 8", sT + 1, sNT2); k("s_add_u32 s%d, s%d, s%d", sT, sT, sT + 1)
        k("v_lshrrev_b32 v%d, 5, v0", t + 4); k("v_bfe_u32 v%d, v0, 3, 2", t + 5); k("v_lshl_add_u32 v%d, v%d, 3, v%d", t + 4, t + 4, t + 5)
        k("v_lshlrev_b32 v%d, 11, v%d", t + 4, t + 4)
        k("v_bfe_u32 v%d, v0, 1, 2", t + 5); k("v_xor_b32 v%d, v%d, v%d", t + 5, t + 5, vG)
        k("v_lshl_add_u32 v%d, v%d, 5, v%d", t + 4, t + 5, t + 4)
        k("v_and_b32 v%d, 1, v0", t + 5); k("v_lshl_add_u32 v%d, v%d, 4, v%d", t + 4, t + 5, t + 4)
        k("v_add_u32 v%d, s%d, v%d", t + 4, sT, t + 4)
        for b in range(2): k("v_add_u32 v%d, 0x%x, v%d", vG2w + b, 3072 + b * (256 if self.opt.get("ilv") else 128) - b * 1024, t + 4)
        k("s_mul_i32 s%d, s%d, %d", sT, sKH, 1792 * 2048); k("s_and_b32 s%d, s%d, 1", sT + 1, sWv)
        k("s_mul_i32 s%d, s%d, %d", sDa, sT + 1, 16 * 2048); k("s_add_u32 s%d, s%d, s%d", sDa, sDa, sT)
        k("s_mul_i32 s%d, s%d, %d", sDb, sT + 1, 112 * 2048); k("s_add_u32 s%d, s%d, s%d", sDb, sDb, sT)
        if self.opt.get("dbg_lin"):
            k("s_lshl_b32 s%d, s%d, 1", sDa, sNT2); k("s_add_u32 s%d, s%d, s%d", sDa, sDa, sKH); k("s_mul_i32 s%d, s%d, %d", sDa, sDa, 28 * 16384)

    XA, XB, XC = 32, 48, 208
    vP1x = 240
    def p1_addr(self):
        k = self.k
        k("v_lshlrev_b32 v%d, 3, v%d", self.vP1x, vI); k("v_lshl_add_u32 v%d, v%d, 9, v%d", self.vP1x, vG, self.vP1x)
    def p1_loads(self, src, fl_=None):
        k = self.k; X = (self.XA, self.XB, self.XC)[src]
        if src == 0:
            k("s_lshl_b32 s%d, s%d, 20", sT, sWv); k("s_lshl_b32 s%d, s%d, 11", sT + 1, sN2); k("s_add_u32 s%d, s%d, s%d", sT, sT, sT + 1)
            for q in range(2):
                for r in range(4):
                    k("buffer_load_dwordx2 %s, v%d, s[%d:%d], s%d offen offset:%d%s", vr(X + 8 * q + 2 * self.LO[r], 2), self.vP1x, sXS, sXS + 3, sT, r * 128, fl_)
                if q == 0: k("s_add_u32 s%d, s%d, 0x80000", sT, sT)
            return
        for j in range(2):
            for q in range(2):
                k("buffer_load_dwordx4 %s, v247, s[%d:%d], s%d offen offset:%d%s", vr(X + 8 * q + 4 * j), sXS, sXS + 3, sK + 2 * (src - 1) + j, q * 64, self.LF)
    @property
    def RO(self): return (0, 1, 2, 3) if self.opt.get("ilv") else (0, 2, 1, 3)
    @property
    def LO(self): return (0, 2, 1, 3) if self.opt.get("ilv") else (0, 1, 2, 3)
    def part_addr(self):
        k = self.k
        k("v_lshrrev_b32 v247, 2, v%d", vI); k("v_lshl_add_u32 v247, v%d, 3, v247", vG); k("v_lshlrev_b32 v247, 10, v247")
        k("v_and_b32 v%d, 3, v0", vT); k("v_lshl_add_u32 v247, v%d, 4, v247", vT)
        k("s_lshr_b32 s%d, s%d, 1", sT, sN2); k("s_lshl_b32 s%d, s%d, 15", sT, sT); k("s_and_b32 s%d, s%d, 1", sT + 1, sN2); k("s_lshl_b32 s%d, s%d, 9", sT + 1, sT + 1)
        k("s_add_u32 s%d, s%d, s%d", sT, sT, sT + 1); k("s_lshl_b32 s%d, s%d, 7", sT + 1, sWv); k("s_add_u32 s%d, s%d, s%d", sK, sT, sT + 1)
        k("s_add_u32 s%d, s%d, 4096", sK + 1, sK); k("s_add_u32 s%d, s%d, 0x400000", sK + 2, sK); k("s_add_u32 s%d, s%d, 0x401000", sK + 3, sK)
    def exch_addr(self, base, a):
        k = self.k
        k("s_lshl_b32 s%d, s%d, 9", sT, sWv)
        k("v_lshlrev_b32 v%d, 12, v%d", a + 2, vG); k("v_add_u32 v%d, 0x%x, v%d", a + 2, base, a + 2)
        k("v_lshl_add_u32 v%d, v%d, 4, s%d", a + 3, vI, sT)
        k("v_add_u32 v%d, v%d, v%d", a, a + 2, a + 3)
        k("v_sub_u32 v%d, v%d, v%d", a + 1, a + 2, a + 3); k("v_add_u32 v%d, %d, v%d", a + 1, (512 - 33) * 8, a + 1)
        k("v_cmp_eq_u32 vcc, 0, v%d", a + 3)
        k("v_add_u32 v%d, %d, v%d", a + 2, (256 - 33) * 8, a + 2)
        k("v_cndmask_b32 v%d, v%d, v%d, vcc", a + 2, a + 1, a + 2)
        k("v_lshlrev_b32 v%d, 3, v%d", a + 3, vI); k("v_lshl_add_u32 v%d, v%d, 9, v%d", a + 3, vG, a + 3)
        k("s_add_u32 s%d, s%d, 0x%x", sT, sM0, base); k("v_add_u32 v%d, s%d, v%d", a + 3, sT, a + 3)
    def p1_pre(self):
        k = self.k; T1 = 96
        for c in range(2):
            for r in range(4):
                k("v_lshl_add_u32 v%d, v%d, 3, %d", vT, vG, 2 * r + c); k("v_mul_u32_u24 v%d, v%d, v%d", vT, vT, vI)
                self.cs(T1 + 8 * c + r, T1 + 8 * c + 4 + r, vT, 1.0 / 512)
        self.exch_addr(L_P1, 241)
        k("v_cmp_eq_u32 vcc, 0, v%d", vI); k("v_cndmask_b32 v245, 0, 1.0, vcc")
        k("v_lshlrev_b32 v246, 12, v%d", vG); k("v_lshl_add_u32 v246, v%d, 4, v246", vI)
    def p1_a(self, X, first, swap=True):
        k = self.k; D = 64
        if swap:
            for q in range(2):
                k("v_swap_b32 v%d, v%d", X + 8 * q + 1, X + 8 * q + 4); k("v_swap_b32 v%d, v%d", X + 8 * q + 3, X + 8 * q + 6)
        for l in range(4):
            for p in range(2): self.mf(D + (l * 2 + p) * 4, vr(X + 4 * l), ar(aFp + 4 * p), "0" if first else D + (l * 2 + p) * 4)
    def x1_read(self):
        k = self.k
        k("v_add_u32 v%d, 0x%x, v%d", vT, L_X, vG1x)
        for l in range(4): k("ds_read_b128 %s, v%d offset:%d", vr(self.XA + 4 * l), vT, l * 1024)
    def x1_park(self):
        k = self.k; XI, O = 32, 160
        for q in range(2):
            for j in range(8):
                x = XI + 16 * q + 2 * j
                k("v_pk_add_f32 %s, %s, s[%d:%d] op_sel:[0,%d] op_sel_hi:[1,%d]", vr(x, 2), vr(x, 2), sK + 4, sK + 5, q, q)
        k("v_add_u32 v%d, 0x%x, v%d", vT, L_X, vG1x)
        for l in range(4):
            for r in range(4): k("v_cvt_pk_bf16_f32 v%d, v%d, v%d", O + 4 * l + self.RO[r], XI + 8 * l + r, XI + 8 * l + 4 + r)
            k("ds_write_b128 v%d, %s offset:%d", vT, vr(O + 4 * l), l * 1024)
    def p1(self):
        k = self.k; XA, XB = self.XA, self.XB
        D, T1, T1s, O, B, E, tmp = 64, 96, 112, 144, 160, 192, 224
        t = O
        self.sums(D, t)
        k("v_mul_f32 v%d, v245, v%d", t, t); k("v_mul_f32 v%d, v245, v%d", t + 2, t + 2)
        self.w_in_p1([0, 1])
        self.reduce4(t, t + 2, t + 4, t + 6, 1.0 / (16 * 1024))
        k("v_rsq_f32 v%d, v%d", t + 4, t + 4)
        k("v_mov_b32 v252, v%d", t)
        k("v_mul_f32 v%d, %s, v%d", t, fl(-16.0), t); k("v_mul_f32 v%d, v%d, v%d", t, t, t + 4)
        for q in range(2):
            k("v_readlane_b32 s%d, v%d, %d", sK + 2 * q, t + 4, 16 * q); k("v_readlane_b32 s%d, v%d, %d", sK + 2 * q + 1, t, 16 * q)
        for q in range(2):
            for j in range(8): k("v_pk_mul_f32 %s, %s, s[%d:%d] op_sel_hi:[1,0]", vr(T1s + 16 * q + 2 * j, 2), vr(T1 + 2 * j, 2), sK + 2 * q, sK + 2 * q + 1)
            k("v_mul_f32 v%d, s%d, v245", 248 + 2 * q, sK + 2 * q + 1)
        for l in range(4):
            q, c = l >> 1, l & 1
            self.twiddle(D + l * 8, D + l * 8 + 4, T1s + 16 * q + 8 * c, T1s + 16 * q + 8 * c + 4, B + 8 * l, O + 4 * l, e=248 + 2 * q)
        self.w_in_p1([2, 3])
        def b(q, t_, p): return B + ((q * 2 + t_) * 2 + p) * 4
        for q in range(2):
            for p in range(2): self.mf(b(q, 0, p), ar(aF + 4 * p), vr(O + 8 * q))
        for q in range(2):
            for p in range(2): self.mf(b(q, 1, p), ar(aM1 + 8 + 4 * p), vr(O + 8 * q + 4), b(q, 0, p))
        for q in range(2):
            for p in range(2): self.mf(b(q, 0, p), ar(aM1 + 4 * p), vr(O + 8 * q + 4), b(q, 0, p))
        for t_ in (1, 0):
            for r in range(4):
                e = E + (t_ * 4 + r) * 2
                for q in range(2): k("v_cvt_pk_bf16_f32 v%d, v%d, v%d", e + q, b(q, t_, 0) + r, b(q, t_, 1) + r)
                k("ds_write_b64 v244, %s offset:%d", vr(e, 2), r * 128 + t_ * 2048)
        k("s_waitcnt lgkmcnt(0)"); k("s_barrier")
        for u in range(2): k("ds_read_b128 %s, v241 offset:%d", vr(O + 8 * u), u * 256)
        for u in range(2):
            for e in range(2): k("ds_read_b64 %s, v%d offset:%d", vr(O + 8 * u + 4 + 2 * e, 2), 243 if (u, e) == (0, 0) else 242, (33 - 32 * u - e) * 8)
        k("s_lshl_b32 s%d, s%d, 14", sT, sN2); k("s_lshl_b32 s%d, s%d, 9", sT + 1, sWv); k("s_add_u32 s%d, s%d, s%d", sT, sT, sT + 1)
        if U_OFF: k("s_add_u32 s%d, s%d, 0x%x", sT, sT, U_OFF)
        k("s_waitcnt lgkmcnt(4)")
        for u in range(2):
            for e in range(2): self.mf(D + (u * 4 + e) * 4, ar(aC, 2), vr(O + 8 * u + 2 * e, 2), kk=16)
        k("s_waitcnt lgkmcnt(0)")
        for u in range(2):
            for e in range(2): self.mf(D + (u * 4 + 2 + e) * 4, ar(aC + 2, 2), vr(O + 8 * u + 4 + 2 * e, 2), kk=16)
        for u in range(2):
            for p in range(2):
                e0 = E + (u * 2 + p) * 4
                for e in range(4): k("v_cvt_pk_bf16_f32 v%d, v%d, v%d", e0 + e, D + (u * 4 + e) * 4 + 2 * p, D + (u * 4 + e) * 4 + 2 * p + 1)
                k("buffer_store_dwordx4 %s, v246, s[%d:%d], s%d offen offset:%d%s", vr(e0), sWS, sWS + 3, sT, p * 2048 + u * 256, self.SF)
    def p2_pre(self):
        k = self.k; T2, CO = 64, 72
        for r in range(4):
            k("v_lshl_add_u32 v%d, v%d, 2, %d", vT, vG, r); k("v_mul_u32_u24 v%d, v%d, v%d", vT, vT, vI)
            self.cs(T2 + r, T2 + 4 + r, vT, 1.0 / 256)
        k("v_lshl_add_u32 v241, v%d, 6, v%d", vG, vI)
        k("v_lshlrev_b32 v240, 14, v241")
        k("v_bfe_u32 v242, v0, 1, 2"); k("v_xor_b32 v242, s%d, v242", sWv); k("v_lshlrev_b32 v242, 4, v242")
        k("v_lshl_add_u32 v241, v241, 6, v242"); k("v_add_u32 v241, 0x%x, v241", L_P2)
        k("v_bfe_u32 v242, v0, 3, 2"); k("v_xor_b32 v242, v0, v242"); k("v_lshlrev_b32 v242, 4, v242")
        k("s_add_u32 s%d, s%d, 0x%x", sT, sM0, L_P2); k("v_add_u32 v242, s%d, v242", sT)
    def p2_coef(self):
        k = self.k; T2, CO = 64, 72; WP = 136
        L = k.label("once")
        k("s_cmp_lg_u32 s%d, 0", sLay); k("s_cbranch_scc1 " + L)
        self.w_park()
        k(L + ":")
        k("s_lshl_b32 s%d, s%d, 2", sT, sWv); k("s_add_u32 s%d, s%d, 0x%x", sT + 1, sT, L_W); k("s_sub_u32 s%d, 0x%x, s%d", sT, L_W + 8192 + 12, sT)
        k("v_lshl_add_u32 v243, v0, 4, s%d", sT + 1); k("v_lshl_add_u32 v244, v0, 4, s%d", sT)
        for j in range(8):
            k("ds_read_b32 v%d, v243 offset:%d", WP + j, j * 1024); k("ds_read_b32 v%d, v244 offset:%d", WP + 8 + j, j * 1024)
        k("s_and_b32 s%d, s%d, 31", sT, sN2); k("s_lshl_b32 s%d, s%d, 3", sT, sT); k("s_lshl_b32 s%d, s%d, 1", sT + 1, sWv); k("s_add_u32 s%d, s%d, s%d", sT, sT, sT + 1)
        k("s_add_u32 s%d, s%d, 1", sT + 1, sT); k("s_cmp_eq_u32 s%d, 0", sT); k("s_cselect_b32 s%d, 256, s%d", sT, sT)
        NRM = 1.0 / (2048 * 512)
        W1, W2 = 120, 128
        for x in range(2):
            k("v_mov_b32 v%d, s%d", vT, sT + x)
            self.cs(vT + 1, vT + 3, vT, 1.0 / 1024)
            k("v_mul_f32 v%d, 0.5, v%d", vT + 1, vT + 1)
            k("v_fma_f32 v%d, v%d, -0.5, 0.5", vT + 3, vT + 3)
            if x == 0: k("s_waitcnt lgkmcnt(0)")
            for j in range(8):
                k("v_and_b32 v%d, 0xffff0000, v%d" % (W1 + j, WP + j) if x else "v_lshlrev_b32 v%d, 16, v%d" % (W1 + j, WP + j))
                k("v_lshlrev_b32 v%d, 16, v%d" % (W2 + j, WP + 8 + j) if x else "v_and_b32 v%d, 0xffff0000, v%d" % (W2 + j, WP + 8 + j))
            for j in range(8):
                k("v_mul_f32 v%d, %s, v%d", W1 + j, fl(NRM), W1 + j); k("v_mul_f32 v%d, %s, v%d", W2 + j, fl(-NRM if j >= 4 else NRM), W2 + j)
            c = CO + 24 * x
            for j in range(0, 8, 2):
                k("v_pk_add_f32 %s, %s, %s neg_lo:[0,1] neg_hi:[0,1]", vr(c + 16 + j, 2), vr(W1 + j, 2), vr(W2 + j, 2))
            for j in range(0, 8, 2):
                k("v_pk_fma_f32 %s, %s, %s, %s op_sel_hi:[1,0,1]", vr(c + j, 2), vr(c + 16 + j, 2), vr(vT + 3, 2), vr(W2 + j, 2))
                k("v_pk_fma_f32 %s, %s, %s, %s op_sel_hi:[1,0,1] neg_lo:[1,0,0] neg_hi:[1,0,0]", vr(c + 8 + j, 2), vr(c + 16 + j, 2), vr(vT + 3, 2), vr(W1 + j, 2))
                k("v_pk_mul_f32 %s, %s, %s op_sel_hi:[1,0]", vr(c + 16 + j, 2), vr(c + 16 + j, 2), vr(vT + 1, 2))
    def p2(self):
        k = self.k; T2, CO = 64, 72
        Lx, D, O, tmp = 224, 120, 152, 168
        k("s_lshl_b32 s%d, s%d, 6", sT, sN2); k("s_lshl_b32 s%d, s%d, 4", sT + 1, sWv); k("s_add_u32 s%d, s%d, s%d", sT, sT, sT + 1)
        if U_OFF: k("s_add_u32 s%d, s%d, 0x%x", sT, sT, U_OFF)
        for r in range(4):
            k("buffer_load_dwordx4 %s, v240, s[%d:%d], s%d offen%s", vr(Lx + 4 * r), sWS, sWS + 3, sT, self.LF)
            if r < 3: k("s_add_u32 s%d, s%d, 0x40000", sT, sT)
        n = self.pf(2)
        self.p2_coef()
        k("s_waitcnt vmcnt(%d)", n)
        self.mark("p2_loaded")
        for a in range(4):
            for b in range(a + 1, 4): k("v_swap_b32 v%d, v%d", Lx + 4 * a + b, Lx + 4 * b + a)
        for e in range(4):
            for p in range(2): self.mf(D + 8 * e + 4 * p, vr(Lx + 4 * e), ar(aF + 4 * p))
        for e in range(4): self.twiddle(D + 8 * e, D + 8 * e + 4, T2, T2 + 4, tmp + 8 * e, O + 4 * e)
        for e in (0, 2, 1, 3):
            for p in range(2): self.mf(D + 8 * e + 4 * p, ar(aF + 4 * p), vr(O + 4 * e))
        neg = " neg_lo:[1,0,0] neg_hi:[1,0,0]"
        for x in range(2):
            c = CO + 24 * x; Z = D + 8 * x; V = D + 8 * (2 + x); z = tmp + 8 * x; v = tmp + 8 * (2 + x)
            terms = [(z, [(c, Z, 0), (c + 4, Z + 4, 1), (c + 20, V, 1), (c + 16, V + 4, 1)]),
                     (z + 4, [(c, Z + 4, 0), (c + 4, Z, 0), (c + 16, V, 0), (c + 20, V + 4, 1)]),
                     (v, [(c + 8, V, 0), (c + 12, V + 4, 1), (c + 20, Z, 0), (c + 16, Z + 4, 0)]),
                     (v + 4, [(c + 8, V + 4, 0), (c + 12, V, 0), (c + 16, Z, 1), (c + 20, Z + 4, 0)])]
            for j in range(4):
                for h in (0, 2):
                    for d, tl in terms:
                        a, b, n = tl[j]
                        if j == 0: k("v_pk_mul_f32 %s, %s, %s", vr(d + h, 2), vr(a + h, 2), vr(b + h, 2))
                        else: k("v_pk_fma_f32 %s, %s, %s, %s%s", vr(d + h, 2), vr(a + h, 2), vr(b + h, 2), vr(d + h, 2), neg if n else "")
            for e in (x, 2 + x):
                for r in range(4): k("v_cvt_pk_bf16_f32 v%d, v%d, v%d", O + 4 * e + r, tmp + 8 * e + r, tmp + 8 * e + 4 + r)
        for e in (0, 2, 1, 3):
            for p in range(2): self.mf(D + 8 * e + 4 * p, vr(O + 4 * e), ar(aGm + 4 * p))
        for e in (0, 2, 1, 3): self.twiddle(D + 8 * e, D + 8 * e + 4, T2, T2 + 4, tmp + 8 * e, O + 4 * e, conj=True)
        for e in (0, 2, 1, 3):
            for p in range(2): self.mf(D + 8 * e + 4 * p, ar(aGm + 4 * p), vr(O + 4 * e))
        for r in range(4):
            for e in (0, 2, 1, 3): k("v_cvt_pk_bf16_f32 v%d, v%d, v%d", Lx + 4 * r + e, D + 8 * e + r, D + 8 * e + 4 + r)
            k("ds_write_b128 v241, %s offset:%d", vr(Lx + 4 * r), r * 1024)
        k("s_lshl_b32 s%d, s%d, 14", sT, sN2); k("s_add_u32 s%d, s%d, 0x%x", sT, sT, V_OFF)
        k("s_waitcnt lgkmcnt(0)"); k("s_barrier")
        for j in range(4): k("ds_read_b128 %s, v242 offset:%d", vr(O + 4 * j), j * 1024)
        for j in range(4):
            k("s_waitcnt lgkmcnt(%d)", 3 - j)
            k("buffer_store_dwordx4 %s, v%d, s[%d:%d], s%d offen offset:%d%s", vr(O + 4 * j), vG1x, sWS, sWS + 3, sT, j * 1024, self.SF)
    def x_sum(self, single):
        k = self.k; XI = 32; T = 32 if single else 120
        for l in (3, 2, 1, 0):
            if single and l == 0 and self.RO[1] != 1: k("v_swap_b32 v%d, v%d", self.XA + 1, self.XA + 2)
            ro = (0, 1, 2, 3) if single and l == 0 else self.RO
            for r in range(4): k("v_and_b32 v%d, 0xffff0000, v%d", T + 8 * l + 4 + r, self.XA + 4 * l + ro[r])
            for r in range(4): k("v_lshlrev_b32 v%d, 16, v%d", T + 8 * l + r, self.XA + 4 * l + ro[r])
        if single: return
        for X, d in ((self.XB, T), (self.XC, XI)):
            for l in range(4):
                for r in range(4):
                    k("v_lshlrev_b32 v%d, 16, v%d", 152 + r, X + 4 * l + self.RO[r]); k("v_and_b32 v%d, 0xffff0000, v%d", 156 + r, X + 4 * l + self.RO[r])
                for h in range(0, 8, 2): k("v_pk_add_f32 %s, %s, %s", vr(d + 8 * l + h, 2), vr(T + 8 * l + h, 2), vr(152 + h, 2))
    def p3_pre(self):
        k = self.k; T3 = 64
        for c in range(2):
            for r in range(4):
                k("v_lshl_add_u32 v%d, v%d, 2, %d", vT, vG, r); k("v_lshl_add_u32 v%d, v%d, 1, %d", vT + 1, vI, c); k("v_mul_u32_u24 v%d, v%d, v%d", vT, vT, vT + 1)
                self.cs(T3 + 8 * c + r, T3 + 8 * c + 4 + r, vT, 1.0 / 512)
        self.exch_addr(L_P3A, 241)
        k("v_add_u32 v245, 2048, v244")
        k("v_lshrrev_b32 v240, 2, v%d", vI); k("v_lshl_add_u32 v240, v%d, 6, v240", vG); k("v_lshlrev_b32 v240, 14, v240")
        k("v_and_b32 v246, 3, v0"); k("v_lshl_add_u32 v240, v246, 4, v240")
        k("s_mul_i32 s%d, s%d, 4224", sT, sWv); k("s_add_u32 s%d, s%d, 0x%x", sT, sT, L_P3B)
        k("v_and_b32 v247, 8, v0"); k("v_lshlrev_b32 v247, 3, v247"); k("v_lshl_add_u32 v246, v246, 4, v247")
        k("v_and_b32 v247, 4, v0"); k("v_lshl_add_u32 v246, v247, 1, v246")
        k("v_lshl_add_u32 v246, v%d, 9, v246", vG); k("v_add_u32 v246, s%d, v246", sT)
        k("s_lshl_b32 s%d, s%d, 9", sT, sWv); k("s_add_u32 s%d, s%d, 0x%x", sT, sT, L_P3B)
        k("v_and_b32 v248, 7, v0"); k("v_mul_u32_u24 v247, 2112, v248"); k("v_lshrrev_b32 v249, 3, v0")
        k("v_lshl_add_u32 v247, v249, 4, v247"); k("v_add_u32 v247, s%d, v247", sT)
        k("v_lshlrev_b32 v248, 4, v248"); k("v_and_b32 v249, 3, v249"); k("v_lshl_add_u32 v248, v249, 8, v248")
        k("v_lshrrev_b32 v249, 5, v0"); k("v_lshl_add_u32 v248, v249, 14, v248")
    def p3(self, after_loads=None):
        k = self.k; T3, XI = 64, 32
        Lx, D, O, tmp = 112, 128, 160, 176
        k("s_lshl_b32 s%d, s%d, 6", sT, sN2); k("s_lshl_b32 s%d, s%d, 17", sT + 1, sWv); k("s_add_u32 s%d, s%d, s%d", sT, sT, sT + 1)
        k("s_add_u32 s%d, s%d, 0x%x", sT, sT, V_OFF)
        for u in range(2):
            for p in range(2):
                k("s_add_u32 s%d, s%d, 0x%x", sT + 1, sT, (32 * p + 4 * u) * 16384)
                k("buffer_load_dwordx4 %s, v240, s[%d:%d], s%d offen%s", vr(Lx + 8 * u + 4 * p), sWS, sWS + 3, sT + 1, self.LF)
        n = after_loads() if after_loads else 0
        k("s_waitcnt vmcnt(%d)", n)
        self.mark("p3_loaded")
        for u in range(2):
            b = Lx + 8 * u
            k("v_swap_b32 v%d, v%d", b + 1, b + 4); k("v_swap_b32 v%d, v%d", b + 3, b + 6)
        pos = {0: 0, 2: 2, 1: 4, 3: 6}
        for u in range(2):
            for e in range(4): self.mf(D + (u * 4 + e) * 4, ar(aCH + (2 if e >= 2 else 0), 2), vr(Lx + 8 * u + pos[e], 2), kk=16)
        for u in range(2):
            for e in range(4):
                d = D + (u * 4 + e) * 4
                for q in range(2): k("v_cvt_pk_bf16_f32 v%d, v%d, v%d", O + 8 * u + 2 * e + q, d + 2 * q, d + 2 * q + 1)
                if e == 1: k("ds_write_b128 v241, %s offset:%d", vr(O + 8 * u), u * 256)
                if e >= 2: k("ds_write_b64 v%d, %s offset:%d", 243 if (u, e) == (0, 2) else 242, vr(O + 8 * u + 2 * e, 2), (33 - 32 * u - (e - 2)) * 8)
        k("s_waitcnt lgkmcnt(0)"); k("s_barrier")
        for q in range(2):
            for t_ in range(2):
                for h in (0, 2): k("ds_read2_b32 %s, v%d offset0:%d offset1:%d", vr(Lx + (q * 2 + t_) * 4 + h, 2), 244 + t_, h * 32 + q, (h + 1) * 32 + q)
        for q in range(2):
            k("s_waitcnt lgkmcnt(%d)", 4 - 4 * q)
            for t_ in range(2):
                for c in range(2):
                    for p in range(2):
                        d = D + ((q * 2 + c) * 2 + p) * 4
                        m = aGm + 4 * p if c == 0 else aM1H + 8 * t_ + 4 * p
                        self.mf(d, vr(Lx + (q * 2 + t_) * 4), ar(m), d if t_ else "0")
        for l in range(4):
            c = l & 1
            self.twiddle(D + 8 * l, D + 8 * l + 4, T3 + 8 * c, T3 + 8 * c + 4, tmp + 8 * l, O + 4 * l, conj=True)
        for l in range(4):
            for p in range(2): self.mf(XI + 8 * l + 4 * p, ar(aGm + 4 * p), vr(O + 4 * l), XI + 8 * l + 4 * p)
        t = tmp
        self.sums(XI, t)
        self.reduce4(t, t + 2, t + 4, t + 6, 1.0 / 1024)
        k("v_rsq_f32 v%d, v%d", t + 2, t + 4)
        k("v_sub_f32 v252, v252, v%d", t)
        k("v_mul_f32 v%d, -v%d, v%d", t + 3, t, t + 2)
        for q in range(2):
            k("v_readlane_b32 s%d, v%d, %d", sK + 2 * q, t + 2, 16 * q); k("v_readlane_b32 s%d, v%d, %d", sK + 2 * q + 1, t + 3, 16 * q)
        for q in range(2):
            for j in range(8):
                x = XI + 16 * q + 2 * j
                k("v_pk_fma_f32 %s, %s, s[%d:%d], s[%d:%d] op_sel:[0,0,1] op_sel_hi:[1,0,1]", vr(x - XI + D, 2), vr(x, 2), sK + 2 * q, sK + 2 * q + 1, sK + 2 * q, sK + 2 * q + 1)
            for r in range(4):
                for c in range(2):
                    x = D + 16 * q + 8 * c
                    k("v_cvt_pk_bf16_f32 v%d, v%d, v%d", O + 8 * q + 2 * r + c, x + r, x + 4 + r)
                k("ds_write_b64 v246, %s offset:%d", vr(O + 8 * q + 2 * r, 2), q * 2112 + r * 128)
        for q in range(2): k("v_readlane_b32 s%d, v252, %d", sK + 4 + q, 16 * q)
        k("s_lshr_b32 s%d, s%d, 5", sT, sN2); k("s_lshl_b32 s%d, s%d, 19", sT, sT); k("s_lshl_b32 s%d, s%d, 17", sT + 1, sWv); k("s_add_u32 s%d, s%d, s%d", sT, sT, sT + 1)
        k("s_bfe_u32 s%d, s%d, 0x40001", sT + 1, sN2); k("s_lshl_b32 s%d, s%d, 10", sT + 1, sT + 1); k("s_add_u32 s%d, s%d, s%d", sT, sT, sT + 1)
        k("s_and_b32 s%d, s%d, 1", sT + 1, sN2); k("s_lshl_b32 s%d, s%d, 7", sT + 1, sT + 1); k("s_add_u32 s%d, s%d, s%d", sT, sT, sT + 1)
        k("s_add_u32 s%d, s%d, 0x%x", sT, sT, XL_OFF)
        k("s_waitcnt lgkmcnt(0)"); k("s_barrier")
        for j in range(4): k("ds_read_b128 %s, v247 offset:%d", vr(D + 4 * j), j * 128)
        for j in range(4):
            k("s_waitcnt lgkmcnt(%d)", 3 - j)
            k("buffer_store_dwordx4 %s, v248, s[%d:%d], s%d offen%s", vr(D + 4 * j), sWS, sWS + 3, sT, self.SF)
            if j < 3: k("s_add_u32 s%d, s%d, 0x8000", sT, sT)
    def g1_wdma(self, slot):
        o = ["s_add_u32 m0, s%d, 0x%x" % (sM0, L_G1 + slot * 16384)]
        for m in range(2):
            for j in range(2):
                s = sU if m else sG
                o.append("buffer_load_dwordx4 v%d, s[%d:%d], s%d offen offset:%d lds" % (vG1w + j, s, s + 3, sOw, m * 2048 + j * 1024))
        o.append("s_add_u32 s%d, s%d, %d" % (sOw, sOw, 32 * 7168))
        return o
    def g1_prefetch(self, slots, shadow):
        k = self.k
        if not slots: return 0
        L = k.label("gp")
        if shadow: k("s_cmp_eq_u32 s%d, 0", sWv); k("s_cbranch_scc1 " + L)
        for s in slots:
            k("s_mov_b32 s%d, %d", sOw, s * 32 * 7168)
            for x in self.g1_wdma(self.g1_slot(s))[:-1]: k(x)
        if shadow:
            for s in slots:
                L2 = k.label("gq")
                w = 1 + s % 3
                k("s_cmp_lg_u32 s%d, %d", sWv, w); k("s_cbranch_scc1 " + L2)
                k("s_mov_b32 m0, 0x%x", L_G1 + self.g1_slot(s) * 16384)
                k("v_subrev_u32 v%d, %d, v%d", vT, w * 8 * 7168, vG1w); k("v_subrev_u32 v%d, %d, v%d", vT + 1, w * 8 * 7168, vG1w + 1)
                k("s_mov_b32 s%d, %d", sOw, s * 32 * 7168)
                for x in self.g1_wdma(s)[1:-1]: k(x.replace("dwordx4 v%d," % vG1w, "dwordx4 v%d," % vT).replace("dwordx4 v%d," % (vG1w + 1), "dwordx4 v%d," % (vT + 1)))
                k(L2 + ":")
        k(L + ":")
        return 0 if shadow else 4 * len(slots)
    def vm_reset(self): self.log = []
    def vm_note(self, ins, tag):
        self.log += [tag] * len([x for x in ins if x.startswith(("buffer", "global"))])
        return ins
    def vm_need(self, tags):
        last = max([i for i, t in enumerate(self.log) if t in tags] + [-1])
        return min(63, len([t for t in self.log[last + 1:] if t != "P"]))
    def unit(self, mf, rq, vq, nv, eq=None, cap=1, first=None):
        k = self.k; vs = self.opt.get("vs", (2, 6, 0, 4))[:nv]; rq = list(rq)
        for i, m in enumerate(mf):
            k(m); n = 0
            if i == 0 and first:
                for x in first: k(x)
                n = 2
            if vq and vq[0][0].startswith("buffer"):
                if i % 8 in vs and n == 0:
                    x, tag = vq.pop(0); k(self.vm_note([x], tag)[0]); n = 2
            elif vq and nv and n == 0:
                while vq and not vq[0][0].startswith("buffer") and n < 2: k(vq.pop(0)[0]); n += 1
            if rq and n == 0: k(rq.pop(0)); n += 1
            while eq and n < cap:
                x = eq.pop(0)
                if x is None: break
                if isinstance(x, tuple): k(self.vm_note([x[0]], x[1])[0]); n = cap
                else: k(x); n += 1
        for x in rq: k(x)
    ACC = 32
    NA = 3
    def g1_acc(self, ft, m, st): return self.ACC + ((ft * 2 + m) * 4 + st) * 4
    def g1_slot(self, t): return 6 + (t & 1) if t >= 30 else t % 4
    def g1_rd(self, s, a, buf):
        o = []
        for h in range(2):
            sl = self.g1_slot(2 * s + h)
            for hh in range(2):
                o.append("ds_read_b64_tr_b16 %s, v%d offset:%d" % (ar(buf * 8 + 4 * h + 2 * hh, 2), vG1r if sl < 4 else vT + 10, (sl % 4) * 16384 + hh * 8192 + (a % 2) * 2048 + (a // 2) * 32))
        return o
    def g1_xf(self, s, h, st): return (120 if s == 15 else 56 + (s % 2) * 32) + (h * 4 + st) * 4
    def g1_mf(self, s, a, buf):
        r = []
        for b in range(4):
            st = b if a % 2 == 0 else 3 - b
            c = self.g1_acc(a // 2, a % 2, st)
            for h in range(2):
                r.append("v_mfma_f32_16x16x32_bf16 %s, %s, %s, %s" % (vr(c), ar(buf * 8 + 4 * h), ar(self.g1_xf(s, h, st)), "0" if s == 0 and h == 0 else vr(c)))
        return r
    def g2_rows(self, j):
        if j < 8: return sDa, 2 * j * 7, (2 * j + 1) * 7
        if j < 12: return sDb, 4 * (j - 8) * 7 + 2, (4 * (j - 8) + 2) * 7 + 2
        if j < 28: return sDa, (j - 12) * 7 + 3, (j - 12) * 7 + 5
        return sDa, 112 + (j - 12 - self.opt.get("bal", 0)) * 7 + 3, 112 + (j - 12 - self.opt.get("bal", 0)) * 7 + 5
    def g2_wdma(self, j):
        if self.opt.get("dbg_lin"):
            o = ["s_add_u32 m0, s%d, 0x%x" % (sM0, ((j + 2) % 8) * 16384), "s_add_u32 s%d, s%d, %d" % (sOd, sDa, j * 16384 + 3072)]
            o += ["buffer_load_dwordx4 v%d, s[%d:%d], s%d offen offset:%d lds" % (vG1x, sD, sD + 3, sOd, b * 1024) for b in range(4)]
            return [(x, ("W", j)) for x in o]
        base, r0, r1 = self.g2_rows(j)
        o = ["s_add_u32 m0, s%d, 0x%x" % (sM0, ((j + 2) % 8) * 16384),
             "s_add_u32 s%d, s%d, %d" % (sOd, base, r0 * 16 * 2048), "s_add_u32 s%d, s%d, %d" % (sOe, base, r1 * 16 * 2048 - 2048)]
        for b in range(4):
            o.append("buffer_load_dwordx4 v%d, s[%d:%d], s%d offen offset:%d lds" % (vG2w + (b & 1), sD, sD + 3, sOe if b >> 1 else sOd, b * 1024))
        return [(x, ("W", j)) for x in o]
    def g1_pre(self):
        k = self.k
        for a in range(6):
            for x in self.g1_rd(0, a, a): k(x)
        k("s_lshl_b32 s%d, s%d, 19", sOx, sMT); k("s_add_u32 s%d, s%d, 0x%x", sOx, sOx, XL_OFF)
        k("s_lshl_b32 s%d, s%d, 2", sT, sMT); k("s_add_u32 s%d, s%d, s%d", sT, sT, sWv); k("s_mul_i32 s%d, s%d, 448", sT, sT)
        k("s_lshr_b32 s%d, s%d, 4", sT + 1, sNT); k("s_mul_i32 s%d, s%d, 112", sT + 1, sT + 1); k("s_add_u32 s%d, s%d, s%d", sT, sT, sT + 1)
        k("s_lshl_b32 s%d, s%d, 10", sT, sT); k("s_add_u32 s%d, s%d, 0x%x", sT, sT, H_OFF)
        k("s_and_b32 s%d, s%d, 15", sT + 1, sNT)
        for j, (sh, off) in enumerate(((11, 0), (10, 32), (12, 48))):
            k("s_lshl_b32 s%d, s%d, %d", sT + 2, sT + 1, sh); k("s_add_u32 s%d, s%d, s%d", sT + 2, sT + 2, sT)
            k("s_add_u32 s%d, s%d, %d", sK + 2 * j, sT + 2, off * 1024); k("s_add_u32 s%d, s%d, %d", sK + 2 * j + 1, sT + 2, (off + 224) * 1024)
        k("v_lshlrev_b32 v%d, 4, v0", vT + 2)
        k("v_add_u32 v%d, 0x10000, v%d", vT + 10, vG1r)
        k("s_and_b32 s%d, s%d, 1", sT, sWv); k("s_lshl_b32 s%d, s%d, 1", sT, sT); k("s_lshr_b32 s%d, s%d, 1", sT + 1, sWv); k("s_add_u32 s%d, s%d, s%d", sT, sT, sT + 1)
        k("s_lshl_b32 s%d, s%d, 2", sT + 2, sMT2); k("s_add_u32 s%d, s%d, s%d", sT, sT, sT + 2)
        k("s_lshl_b32 s%d, s%d, 16", sK + 10, sT); k("s_lshl_b32 s%d, s%d, 12", sT + 2, sNT2); k("s_add_u32 s%d, s%d, s%d", sK + 10, sK + 10, sT + 2)
        k("s_lshl_b32 s%d, s%d, 22", sT + 2, sKH); k("s_add_u32 s%d, s%d, s%d", sK + 10, sK + 10, sT + 2); k("s_add_u32 s%d, s%d, 0x%x", sK + 10, sK + 10, PART_OFF)
        k("s_add_u32 s%d, s%d, 0x8000", sK + 11, sK + 10)
        k("s_lshl_b32 s%d, s%d, 12", sT + 1, sT + 1); k("s_mul_i32 s%d, s%d, %d", sT + 2, sKH, 112 * 1024); k("s_add_u32 s%d, s%d, s%d", sT + 1, sT + 1, sT + 2)
        k("s_add_u32 s%d, s%d, 0x%x", sT + 1, sT + 1, H_OFF)
        k("s_mul_i32 s%d, s%d, %d", sOh, sT, 224 * 1024); k("s_add_u32 s%d, s%d, s%d", sOh, sOh, sT + 1)
        k("s_xor_b32 s%d, s%d, 1", sT, sT); k("s_mul_i32 s%d, s%d, %d", sK + 7, sT, 224 * 1024); k("s_add_u32 s%d, s%d, s%d", sK + 7, sK + 7, sT + 1)
        k("s_lshr_b32 s%d, s%d, 4", sT + 1, sNT); k("s_lshl_b32 s%d, s%d, 1", sT + 2, sMT); k("s_add_u32 s%d, s%d, s%d", sT + 1, sT + 1, sT + 2)
        self.flag(sK + 8, FL_B4, sT + 1)
        k("s_and_b32 s%d, s%d, 14", sT + 1, sMT2); k("s_add_u32 s%d, s%d, s%d", sT + 1, sT + 1, sKH); self.flag(sK + 9, FL_B4, sT + 1)
        k("s_and_b32 s%d, s%d, 1", sT + 1, sNT2); k("s_lshl_b32 s%d, s%d, 7", sT + 1, sT + 1); k("s_add_u32 s%d, s%d, s%d", sK + 9, sK + 9, sT + 1)
        k("v_mov_b32 v%d, 1", vT + 9)
        if self.opt.get("lpf"): k("s_mov_b32 s%d, 0x3fc000", sK + 6)
    def lpf_setup(self):
        k = self.k; AH = self.opt["lpf"]
        k("s_lshl_b32 s%d, s2, 2", sT); k("s_add_u32 s%d, s%d, s%d", sT, sT, sWv)
        k("s_mul_i32 s%d, s%d, %d", sT + 1, sT, 7 * 128); k("s_add_u32 s%d, s%d, %d", sT + 1, sT + 1, AH * 128 * 7168)
        k("s_lshl_b32 s%d, s%d, 10", sT, sT)
        k("v_add_u32 v20, s%d, v%d", sT + 1, vL128); k("v_mov_b32 v22, s68"); k("v_mov_b32 v23, s69"); k("v_mov_b32 v24, 0x%x", 128 * 7168)
        k("s_mov_b64 exec, 0x3fff80")
        k("v_subrev_u32 v20, %d, v20", 7 * 128); k("v_mov_b32 v22, s70"); k("v_mov_b32 v23, s71")
        k("s_mov_b64 exec, 0x3fc000")
        k("v_subrev_u32 v20, %d, v%d", 14 * 128, vL128); k("v_add_u32 v20, s%d, v20", sT); k("v_mov_b32 v22, s72"); k("v_mov_b32 v23, s73"); k("v_mov_b32 v24, 0x100000")
        k("s_mov_b64 exec, -1")
        k("v_add_co_u32 v20, vcc, v22, v20"); k("v_addc_co_u32 v21, vcc, 0, v23, vcc")
    def lpf(self):
        AH = self.opt["lpf"]; L = self.k.label("lpf")
        return "\n".join(["s_cmp_lg_u32 s%d, 0" % sLay, "s_cbranch_scc1 " + L,
                          "s_cmp_ge_u32 s%d, %d" % (sIt, AH), "s_cselect_b32 exec_lo, 0x3fffff, s%d" % (sK + 6), "s_mov_b32 exec_hi, 0",
                          "global_load_dword a255, v[20:21], off", "s_mov_b64 exec, -1",
                          "v_add_co_u32 v20, vcc, v20, v24", "v_addc_co_u32 v21, vcc, 0, v21, vcc", L + ":"])
    def w0(self, body):
        L = self.k.label("w0")
        return "\n".join(["s_cmp_lg_u32 s%d, 0" % sWv, "s_cbranch_scc1 " + L] + body + [L + ":"])
    def h_arrive(self, off):
        return self.w0(["s_mov_b64 exec, 3", "buffer_atomic_add v%d, v%d, s[%d:%d], s%d offen offset:%d sc1" % (vT + 9, vL128, sFL, sFL + 3, sK + 8, off), "s_mov_b64 exec, -1"])
    def h_poll(self, off):
        return ["v_mov_b32 v%d, 0" % vT, "s_mov_b64 exec, 1", "buffer_atomic_add v%d, v%d, s[%d:%d], s%d offen offset:%d sc0 sc1" % (vT, vL128, sFL, sFL + 3, sK + 9, off), "s_mov_b64 exec, -1"]
    def h_check(self, off):
        LP = self.k.label("hp"); LX = self.k.label("hx")
        return self.w0(["s_mov_b32 s%d, 0" % sT, LP + ":", "v_readfirstlane_b32 s%d, v%d" % (sT + 1, vT), "s_cmp_eq_u32 s%d, 16" % (sT + 1), "s_cbranch_scc1 " + LX]
                       + self.h_poll(off) + ["s_waitcnt vmcnt(0)", "s_add_u32 s%d, s%d, 1" % (sT, sT), "s_cmp_lt_u32 s%d, 0x40000" % sT, "s_cbranch_scc1 " + LP, LX + ":"])
    def g1_unit(self, ft, pr, dst, packed):
        o = []
        for q in range(2):
            g = self.g1_acc(ft, 0, 2 * pr + q); u = self.g1_acc(ft, 1, 2 * pr + q)
            if packed: o += ["v_pk_mul_f32 %s, %s, %s" % (vr(g + h, 2), vr(g + h, 2), vr(u + h, 2)) for h in (0, 2)]
            else: o += ["v_mul_f32 v%d, v%d, v%d" % (g + h, g + h, u + h) for h in range(4)]
        c = []
        for q in range(2):
            g = self.g1_acc(ft, 0, 2 * pr + q)
            c += ["v_cvt_pk_bf16_f32 v%d, v%d, v%d" % (dst + 2 * q + h, g + 2 * h, g + 2 * h + 1) for h in (0, 1)]
        sw = ["v_permlane16_swap_b32 v%d, v%d" % (dst, dst + 2), "v_permlane16_swap_b32 v%d, v%d" % (dst + 1, dst + 3)]
        so, off = ((sK, ft) if ft < 2 else ((sK + 2, 0) if ft == 2 else (sK + 4, ft - 3)))
        st = "buffer_store_dwordx4 %s, v%d, s[%d:%d], s%d offen offset:%d%s" % (vr(dst), vT + 2, sWS, sWS + 3, so + pr, off * 1024, self.SF)
        return o, c, sw, st
    def g1(self):
        k = self.k; o = self.opt; NB, D = 7, 6
        def xld(s):
            r = []
            for h in range(2):
                r += ["buffer_load_dwordx4 %s, v%d, s[%d:%d], s%d offen offset:%d%s" % (ar(self.g1_xf(s, h, j)), vG1x, sWS, sWS + 3, sOx, j * 1024, self.LF) for j in range(4)]
                r += ["s_add_u32 s%d, s%d, 0x4000" % (sOx, sOx)]
            return [(x, ("X", s)) for x in r]
        groups = o.get("groups", [[0, 1], [2], [3], [4], [5], [6]])
        hold = o.get("hold", [5])
        seq = [(s, a) for s in range(14) for a in range(14)] + [(s, 2 * ft + m) for g in groups for s in (14, 15) for ft in g for m in range(2)]
        self.vm_reset()
        k("s_mov_b32 s%d, %d", sOw, 4 * 32 * 7168); k("s_mov_b32 s%d, 7", sIt)
        for x, tag in xld(0): k(self.vm_note([x], tag)[0])
        def reads(n): return self.g1_rd(seq[n + D][0], seq[n + D][1], (n + D) % NB) if n + D < len(seq) else []
        def lgk(n): return min(12, 4 * min(D - 1, len(seq) - 1 - n))
        def sstep(s, vms=None):
            used = []; vq = xld(s + 1)
            for a in range(14):
                n = 14 * s + a; first = None
                if a == 0:
                    used.append(self.vm_need([("X", s)]))
                    k("s_waitcnt vmcnt(%d) lgkmcnt(%d)" % (used[-1] if vms is None else vms[0], lgk(n)))
                elif a == 14 - D:
                    used.append(self.vm_need([("W", s + 1)]))
                    k("s_waitcnt vmcnt(%d) lgkmcnt(0)" % (used[-1] if vms is None else vms[1])); k("s_barrier")
                    assert not vq
                    vq = xld(15) if s == 13 else [(x, ("W", s + 2)) for h in range(2) for x in self.g1_wdma(self.g1_slot(2 * s + h))]
                else: k("s_waitcnt lgkmcnt(%d)" % lgk(n))
                if o.get("lpf") and a == 6 and (s == 0 or (s % 2 == 1 and s < 13)): first = [self.lpf()]
                self.unit(self.g1_mf(s, a, n % NB), reads(n), vq, o.get("nvx", 2) if a < 14 - D else 2, first=first)
            for x, tag in vq: assert not x.startswith("buffer"); k(x)
            return used
        sstep(0)
        save = list(self.log); n0 = len(k.lines); vv = [sstep(s) for s in range(1, 13)]
        del k.lines[n0:]; endlog = list(self.log); self.log = save
        k("s_mov_b32 s%d, 6", sIt)
        L = k.label("loop"); k(".p2align 6"); k(L + ":")
        for u in range(2): sstep(1 + u, [min(v[j] for v in vv[u::2]) for j in range(2)])
        self.log = endlog
        k("s_sub_u32 s%d, s%d, 1", sIt, sIt); k("s_cmp_lg_u32 s%d, 0", sIt); k("s_cbranch_scc1 " + L)
        sstep(13)
        self.mark("g1_s28")
        vq = [x for j in range(4) for x in self.g2_wdma(j)]
        epi = []; self.late_stores = []; seen = set()
        apos = o.get("apos", 20); ppos = o.get("ppos", 26); fpos = 28 - D + 1; self.g2_w = 4
        for i in range(28):
            n = 196 + i; s, a = seq[n]; first = []
            if s not in seen: k("s_waitcnt vmcnt(%d) lgkmcnt(%d)" % (self.vm_need([("X", s)]), lgk(n))); seen.add(s)
            elif i <= fpos: k("s_waitcnt lgkmcnt(%d)" % (lgk(n) if i < fpos else 0))
            g = [g for g in groups if a // 2 in g][0]
            if (s, a) == (14, 2 * g[0]) and g != groups[0]:
                if not epi: epi += [None] * 4
                for ft in groups[groups.index(g) - 1]:
                    us = [self.g1_unit(ft, pr, self.g1_acc(ft, 1, 2 * pr), False) for pr in range(2)]
                    epi += us[1][0] + us[0][0] + us[1][1] + us[0][1] + us[1][2] + us[0][2]
                    if ft in hold: self.late_stores += [u[3] for u in us]
                    else: epi += [(u[3], "SA" if ft < self.NA else "SB") for u in us]
                if g == groups[-1]: epi += [x for t in range(4) for x in self.g2_rd(0, t)]
            if i == apos:
                assert not [x for x in epi if isinstance(x, tuple) and x[1] == "SA"] and not vq
                first += ["s_waitcnt vmcnt(%d)" % self.vm_need(["SA", ("W", 3)]), "s_barrier", self.h_arrive(0)]
            if i == fpos and o.get("wmore", 2):
                first += ["s_barrier"]
                vq = [x for j in range(4, 4 + o.get("wmore", 2)) for x in self.g2_wdma(j)]; self.g2_w += o.get("wmore", 2)
            if i == ppos: first += [self.w0(self.h_poll(0))]
            self.unit(self.g1_mf(s, a, n % NB), reads(n), vq, 2, eq=epi, cap=2, first=first)
        for x, tag in vq: k(self.vm_note([x], tag)[0])
        self.mark("g1_loop")
        for x in epi: k(x)
        un = [self.g1_unit(ft, pr, self.g1_acc(ft, 1, 2 * pr), True) for ft in groups[-1] for pr in (1, 0)]
        for j in range(3):
            for u in un:
                for x in u[j]: k(x)
        self.late_stores += [u[3] for u in un]
        self.mark("g1_done")
        k("s_waitcnt vmcnt(%d)", 0)
        k(self.h_check(0))
        k("s_barrier")
        self.mark("b4")
    def g2_acc(self, t, st): return self.ACC + (t * 4 + st) * 4
    def g2_rd(self, u, t):
        off = ((2 * u + 2) % 8) * 16384
        return ["ds_read_b64_tr_b16 %s, v%d offset:%d" % (vr(160 + t * 8 + 4 * kk + 2 * h, 2), (vG2r if off < 65536 else 232) + (t & 3), off % 65536 + h * 8192 + kk * 2048 + (t >> 2) * 1024)
                for kk in range(2) for h in range(2)]
    def g2(self, NU):
        k = self.k; o = self.opt; D = o.get("d2", 6); XS = o.get("xs2", 4); npre = o.get("npre", 2)
        def hf(u, kk, st): return (u % XS) * 32 + (kk * 4 + st) * 4
        def hld(u):
            r = []
            for b in range(2):
                so = sK + 7 if b else sOh
                if u == 14: r += ["s_add_u32 s%d, s%d, %d" % (so, so, (112 - 4 * o["bal"]) * 1024)]
                r += ["buffer_load_dwordx4 %s, v%d, s[%d:%d], s%d offen offset:%d%s" % (ar(hf(u, kk, 2 * b + st)), vG2h, sWS, sWS + 3, so, kk * 2048 + st * 256, self.LF) for kk in range(2) for st in range(2)]
                r += ["s_add_u32 s%d, s%d, 8192" % (so, so)]
            return [(x, ("H", u)) for x in r]
        def mf(u, t, sts):
            r = []
            for st in sts:
                a = self.g2_acc(t, st)
                for kk in range(2):
                    r.append("v_mfma_f32_16x16x32_bf16 %s, %s, %s, %s" % (vr(a), vr(160 + t * 8 + 4 * kk), ar(hf(u, kk, st)), "0" if u == 0 and kk == 0 else vr(a)))
            return r
        self.vm_reset()
        for x, tag in hld(0): k(self.vm_note([x], tag)[0])
        for x in self.vm_note(self.late_stores, "SB"): k(x)
        for t in range(4, D):
            for x in self.g2_rd(0, t): k(x)
        for x in range(4): k("v_add_u32 v%d, 0x10000, v%d", 232 + x, vG2r + x)
        k("v_lshrrev_b32 v230, 2, v%d", vI); k("v_and_b32 v231, 1, v0"); k("v_lshlrev_b32 v231, 4, v231"); k("v_lshlrev_b32 v231, v231, v%d", vT + 9)
        k("v_mul_u32_u24 v231, 0x3f80, v231"); k("v_cmp_eq_u32 vcc, v230, v%d", vG); k("v_cndmask_b32 v231, 0, v231, vcc")
        k("v_and_b32 v230, 2, v0"); k("v_cmp_eq_u32 vcc, 0, v230"); k("v_cndmask_b32 v226, 0, v231, vcc"); k("v_cndmask_b32 v227, v231, 0, vcc")
        k("v_mov_b64 v[224:225], 0"); k("v_mov_b64 v[228:229], 0")
        xo = ((2 * NU + 2) % 8) * 16384
        k("s_lshl_b32 s%d, s%d, 13", sT, sWv); k("s_add_u32 s%d, s%d, 0x%x", sT + 1, sT, xo); k("v_add_u32 v230, s%d, v%d", sT + 1, vT + 2)
        k("s_xor_b32 s%d, s%d, 0x4000", sT, sT); k("s_add_u32 s%d, s%d, 0x%x", sT + 1, sT, xo); k("v_add_u32 v231, s%d, v%d", sT + 1, vT + 2)
        k("v_lshlrev_b32 v236, 6, v%d", vI); k("v_lshl_add_u32 v236, v%d, 4, v236", vG)
        if npre > 1:
            for x, tag in hld(1): k(self.vm_note([x], tag)[0])
        self.mark("g2_pre")
        NS = 2 * NU; grp = []
        for u in range(npre, NU):
            h = hld(u); cut = len(h) // 2
            rel = max(8 * (u - XS + 1), 32 if u >= 6 else 0, 96 if u >= 14 else 0)
            grp += [(8 * u, rel, h[:cut]), (8 * u, rel, h[cut:])]
        for j in range(self.g2_w, NS): grp.append((8 * (j // 2 - 1) + 8 - D, max(0, 8 * (j // 2 - 4) + 8 - D), self.g2_wdma(j)))
        uend = 8 * (NU - 1) - o.get("slack", 10); plan = {}; ng = len(grp); tnext = 0.0; slack = []
        for n in range(8 * NU):
            ok = sorted([g for g in grp if g[1] <= n], key=lambda g: g[0])
            if n >= tnext and ok:
                plan[n] = ok[0][2]; grp.remove(ok[0]); slack.append(ok[0][0] - n - 2)
                tnext = max(n + 2, tnext + max(2.0, (uend - n) / float(len(grp) + 1)))
        assert not grp
        if o.get("verbose"): print("g2 plan", sorted(plan), "slack", slack)
        vq = []
        for u in range(NU):
            last = u == NU - 1
            for t in range(8):
                n = 8 * u + t; first = []
                lg = min(12, 4 * min(D - 1, 8 * NU - 1 - n))
                if t == 0:
                    tags = [("H", u)] + (["P"] if u in (4, 12) else [])
                    assert u < npre or self.log.count(("H", u)) == 8
                    k("s_waitcnt vmcnt(%d) lgkmcnt(%d)" % (self.vm_need(tags), lg))
                    if u == 4 or (u == 12 and NU > 14): k(self.h_check(1024 if u == 4 else 3072)); k("s_barrier")
                    if u in (0, 2, 6, 12): self.mark("g2_s%d" % (2 * u))
                    if u == 3 or (u == 11 and NU > 14):
                        first.append(self.w0(self.h_poll(1024 if u == 3 else 3072))); self.log.append("P")
                elif t == 8 - D and not last:
                    for j in (2 * u + 2, 2 * u + 3): assert j < self.g2_w or self.log.count(("W", j)) == 4
                    k("s_waitcnt vmcnt(%d) lgkmcnt(0)" % self.vm_need([("W", 2 * u + 2), ("W", 2 * u + 3)] + (["SB"] if u == 1 else []))); k("s_barrier")
                    if u == 1: first.append(self.h_arrive(1024))
                elif not last: k("s_waitcnt lgkmcnt(%d)" % lg)
                if last: break
                vq += plan.get(n, [])
                m = n + D
                self.unit(mf(u, t, (0, 1, 2, 3) if t % 2 == 0 else (3, 2, 1, 0)), self.g2_rd(m // 8, m % 8), vq, 2, first=first)
        assert not vq
        u = NU - 1; eq = [x for t in range(D, 8) for x in self.g2_rd(u, t)]
        def pack(tp, st):
            d = self.g2_acc(tp, st); e = self.g2_acc(tp + 4, st)
            return ["v_cvt_pk_bf16_f32 v%d, v%d, v%d" % (d, d, d + 1), "v_cvt_pk_bf16_f32 v%d, v%d, v%d" % (d + 1, d + 2, d + 3),
                    "v_cvt_pk_bf16_f32 v%d, v%d, v%d" % (d + 2, e, e + 1), "v_cvt_pk_bf16_f32 v%d, v%d, v%d" % (d + 3, e + 2, e + 3)]
        k("s_waitcnt lgkmcnt(4)")
        for tp in range(4):
            if tp == 1: k("s_waitcnt lgkmcnt(8)")
            if tp == 2: k("s_waitcnt lgkmcnt(0)")
            self.unit(mf(u, tp, (2, 3)) + mf(u, tp + 4, (2, 3)), [], [], 0, eq=eq, cap=2)
            if not eq: eq += [None] * 3
            for st in (2, 3): eq += pack(tp, st) + ["ds_write_b128 v230, %s offset:%d" % (vr(self.g2_acc(tp, st)), (tp * 2 + st - 2) * 1024)]
        eq += ["s_waitcnt lgkmcnt(0)\ns_barrier"]
        eq += ["ds_read_b128 %s, v231 offset:%d" % (vr(self.g2_acc(tp + 4, st)), (tp * 2 + st - 2) * 1024) for tp in range(4) for st in (2, 3)]
        def addmf(tp):
            return ["v_mfma_f32_16x16x32_bf16 %s, %s, %s, %s" % (vr(self.g2_acc(tp + 4 * hh, st)), vr(226 - 2 * hh), vr(self.g2_acc(tp + 4, st + 2)), vr(self.g2_acc(tp + 4 * hh, st)))
                    for st in range(2) for hh in range(2)]
        def fin(tp):
            r = []
            for st in range(2): r += pack(tp, st) + [("buffer_store_dwordx4 %s, v236, s[%d:%d], s%d offen offset:%d%s" % (vr(self.g2_acc(tp, st)), sWS, sWS + 3, sK + 10 + st, tp * 1024, self.SF), "S")]
            return r
        for tp in range(2): self.unit(mf(u, tp, (0, 1)) + mf(u, tp + 4, (0, 1)), [], [], 0, eq=eq, cap=2)
        for x in eq: k(x)
        eq = []
        k("s_waitcnt lgkmcnt(4)")
        self.unit(addmf(0) + addmf(1), [], [], 0)
        eq = [None] * 2 + fin(0) + fin(1)
        k("s_waitcnt lgkmcnt(0)")
        self.unit(mf(u, 2, (0, 1)) + mf(u, 6, (0, 1)) + addmf(2), [], [], 0, eq=eq, cap=2)
        eq += [None] * 4 + fin(2)
        self.unit(mf(u, 3, (0, 1)) + mf(u, 7, (0, 1)) + addmf(3), [], [], 0, eq=eq, cap=2)
        self.mark("g2_loop")
        for x in eq + fin(3):
            if x is not None: k(x[0] if isinstance(x, tuple) else x)
    def final(self):
        k = self.k
        k("s_lshl_b32 s%d, s%d, 20", sT, sWv); k("s_lshl_b32 s%d, s%d, 11", sT + 1, sN2); k("s_add_u32 s%d, s%d, s%d", sT, sT, sT + 1)
        k("s_add_u32 s%d, s%d, 0x80000", sT + 1, sT)
        n = 0
        for X in (self.XB, self.XC):
            for j in range(2):
                for q in range(2):
                    k("s_waitcnt vmcnt(%d)", 7 - n + (2 * (n - 4) if n > 4 else 0)); n += 1
                    for r in (self.LO[2 * j], self.LO[2 * j + 1]):
                        for c in range(2):
                            x = X + 8 * q + 2 * self.LO[r] + c; d = 64 + (q * 2 + c) * 8 + r
                            k("v_lshlrev_b32 v%d, 16, v%d", vT, x); k("v_and_b32 v%d, 0xffff0000, v%d", x, x)
                            k("v_add_f32 v%d, v%d, v%d", d, d, vT); k("v_add_f32 v%d, v%d, v%d", d + 4, d + 4, x)
                            if X == self.XC: k("v_cvt_pk_bf16_f32 v%d, v%d, v%d", x, d, d + 4)
                        if X == self.XC: k("buffer_store_dwordx2 %s, v%d, s[%d:%d], s%d offen offset:%d%s", vr(X + 8 * q + 2 * self.LO[r], 2), self.vP1x, sOUT, sOUT + 3, sT + q, r * 128, self.opt.get("ofl", ""))
    def flag(self, s, off, sgrp=None):
        k = self.k
        k("s_add_u32 s%d, s%d, 0x%x", s, sFo, off)
        if sgrp is not None: k("s_lshl_b32 s%d, s%d, 11", sgrp, sgrp); k("s_add_u32 s%d, s%d, s%d", s, s, sgrp)
    def build(self):
        k = self.k; o = self.opt
        stop = o.get("stop")
        def stopat(n):
            if stop == n: k("s_branch L_fin")
        S1, R1 = 16, 16; S3, R3 = 2, 4; S4, R4 = 1, 2; S5, R5 = 1, 2
        gp = o.get("gp", {"2s": [0, 1, 2, 3]})
        self.prologue()
        k("L_layer:")
        self.p1_addr(); self.p1_pre()
        k("s_cmp_lg_u32 s%d, 0", sLay); k("s_cbranch_scc1 L_p1b")
        k("s_waitcnt vmcnt(%d)", 1 + (o.get("wtouch", 1) == 0) + self.npf0)
        L = k.label("rep")
        k("s_cmp_ge_u32 s%d, 4", sIt); k("s_cbranch_scc1 " + L)
        k("s_barrier")
        k("s_cmp_lg_u32 s%d, 0", sWv); k("s_cbranch_scc1 " + L)
        k("s_lshl_b32 s%d, s%d, 6", sT, sIt)
        k("v_mov_b32 v%d, 1", vT + 1); k("v_lshl_add_u32 v%d, v0, 2, s%d", vT, sT)
        setexec(k, 16)
        k("global_store_dword v%d, v%d, s[76:77] sc1", vT, vT + 1)
        setexec(k, 64)
        k(L + ":")
        if o.get("wtouch", 1) == 1: self.w_touch()
        self.pf(1)
        self.mark("p1_loaded")
        self.p1_a(self.XA, True)
        k("s_branch L_p1")
        k("L_last:")
        self.p1_addr()
        k("s_waitcnt lgkmcnt(0)")
        for l in range(4):
            for r in range(4):
                k("v_lshlrev_b32 v%d, 16, v%d", 64 + 8 * l + r, self.XA + 4 * l + self.RO[r]); k("v_and_b32 v%d, 0xffff0000, v%d", 64 + 8 * l + 4 + r, self.XA + 4 * l + self.RO[r])
        k("s_branch L_p1c")
        k("L_p1b:")
        k("s_waitcnt lgkmcnt(0)")
        self.p1_a(self.XA, True, swap=False)
        k("L_p1c:")
        self.part_addr()
        k("s_lshr_b32 s%d, s%d, 4", sT + 1, sN2); self.flag(sT, FL_B5 - FL_LSTRIDE & 0xffffffff, sT + 1)
        k("s_and_b32 s%d, s%d, %d", sT + 1, sN2, R5 - 1)
        self.watch(sT, S5, sT + 1, 16 // S5)
        k("s_mov_b32 s%d, s%d", sT + 1, sMT2); self.flag(sT, FL_B5 - FL_LSTRIDE & 0xffffffff, sT + 1)
        self.arrive(sT, S5, R5, None)
        self.mark("a5")
        self.wait()
        self.mark("b5")
        self.p1_loads(1); self.p1_loads(2)
        k("s_cmp_eq_u32 s%d, 2", sLay); k("s_cbranch_scc1 L_final")
        k("s_waitcnt vmcnt(4)")
        self.p1_a(self.XB, False)
        k("s_waitcnt vmcnt(0)")
        self.mark("p1_ld2")
        self.p1_a(self.XC, False)
        k("L_p1:")
        self.p1()
        self.mark("p1_done")
        L = k.label("clr"); LP = k.label("clrp"); L1 = k.label("clr1")
        k("s_or_b32 s%d, s%d, s%d", sIt, sLay, sWv); k("s_cmp_lg_u32 s%d, 0", sIt); k("s_cbranch_scc1 " + L1)
        k("v_lshlrev_b32 v%d, 2, v0", self.vP + 1)
        k("global_load_dword v%d, v%d, s[76:77] sc1", self.vP, self.vP + 1)
        k(L1 + ":")
        self.p2_pre()
        k("s_cmp_lg_u32 s%d, 0", sIt); k("s_cbranch_scc1 " + L)
        k(LP + ":")
        k("s_waitcnt vmcnt(0)")
        k("v_cmp_ne_u32 vcc, 1, v%d", self.vP); k("s_cbranch_vccz " + L)
        k("v_lshlrev_b32 v%d, 2, v0", self.vP + 1)
        k("global_load_dword v%d, v%d, s[76:77] sc1", self.vP, self.vP + 1)
        k("s_add_u32 s%d, s%d, 1", sIt, sIt); k("s_cmp_lt_u32 s%d, 0x40000", sIt); k("s_cbranch_scc1 " + LP)
        k(L + ":")
        self.flag(sT, FL_B1); k("s_and_b32 s%d, s2, %d", sT + 1, R1 - 1)
        self.watch(sT, S1, sT + 1, 256 // S1)
        k("s_lshr_b32 s%d, s2, 4", sT + 1)
        self.arrive(sT, S1, R1, sT + 1)
        self.mark("a1")
        self.poll()
        L = k.label("once"); L2 = k.label("nsp"); L3 = k.label("both")
        k("s_cmp_lg_u32 s%d, 0", sLay); k("s_cbranch_scc1 " + L)
        self.w_loads(False)
        k("s_cmp_ge_u32 s2, 8"); k("s_cbranch_scc1 " + L2)
        self.w_loads(True)
        k(L2 + ":")
        self.g_addr()
        self.x_sum(True)
        k("s_cmp_eq_u32 s%d, 0", sWv); k("s_cbranch_scc1 " + L3)
        k("s_waitcnt vmcnt(0)")
        k("s_branch " + L3)
        k(L + ":")
        self.x_sum(False)
        k(L3 + ":")
        self.g1_prefetch(gp.get("1s"), True)
        self.pf("1s")
        self.wait()
        self.mark("b1")
        self.p2()
        self.mark("p2_done")
        self.p3_pre()
        self.flag(sT, FL_B2); k("s_and_b32 s%d, s2, %d", sT + 1, R1 - 1)
        self.watch(sT, S1, sT + 1, 256 // S1)
        k("s_lshr_b32 s%d, s2, 4", sT + 1)
        self.arrive(sT, S1, R1, sT + 1)
        self.mark("a2")
        self.g1_prefetch(gp.get("2s"), True)
        self.pf("2s")
        L = k.label("once")
        k("s_cmp_lg_u32 s%d, 0", sLay); k("s_cbranch_scc1 " + L)
        self.consts(True)
        if o.get("lpf"): self.lpf_setup()
        if o.get("otouch"):
            L2 = k.label("ot"); k("s_cmp_lg_u32 s%d, 3", sWv); k("s_cbranch_scc1 " + L2)
            k("v_lshlrev_b32 v%d, 19, v0", vT); k("s_lshl_b32 s%d, s%d, 11", sT, sN2)
            k("buffer_load_dword a255, v%d, s[%d:%d], s%d offen", vT, sOUT, sOUT + 3, sT)
            k(L2 + ":")
        k(L + ":")
        self.wait()
        self.mark("b2")
        self.p3(lambda: self.pf(3))
        self.mark("p3_done")
        self.x1_park()
        self.g1_pre()
        k("s_mov_b32 s%d, s%d", sT + 1, sMT); self.flag(sT, FL_B3, sT + 1); k("s_and_b32 s%d, s%d, %d", sT + 1, sNT, R3 - 1)
        self.watch(sT, S3, sT + 1, 32 // S3)
        k("s_lshr_b32 s%d, s%d, 5", sT + 1, sN2); self.flag(sT, FL_B3, sT + 1); k("s_and_b32 s%d, s%d, %d", sT + 1, sN2, S3 - 1)
        self.arrive(sT, S3, R3, sT + 1)
        self.mark("a3")
        self.poll()
        self.g1_prefetch([30, 31], True)
        self.pf("3s")
        self.wait()
        self.mark("b3")
        self.g1()
        if o.get("bal"):
            k("s_cmp_lg_u32 s%d, 0", sKH); k("s_cbranch_scc1 L_g2b")
            nm = self.nmark; self.g2(14 + o["bal"] // 2)
            k("s_branch L_g2e"); k("L_g2b:")
            self.nmark = nm
            if o.get("stamp"): del self.marknames[nm:]
            self.g2(14 - o["bal"] // 2)
            k("L_g2e:")
        else: self.g2(14)
        self.mark("g2_done")
        self.x1_read()
        k("s_add_u32 s%d, s%d, 0x%x", sXS, sWS, PART_OFF); k("s_addc_u32 s%d, s%d, 0", sXS + 1, sWS + 1); k("s_mov_b32 s%d, 0x800000", sXS + 2)
        k("s_add_u32 s%d, s%d, 0x%x", sWS, sWS, LSTRIDE); k("s_addc_u32 s%d, s%d, 0", sWS + 1, sWS + 1)
        k("s_add_u32 s%d, s%d, 0x%x", sFo, sFo, FL_LSTRIDE)
        k("s_cmp_eq_u32 s%d, 0", sLay); k("s_cselect_b32 s%d, 1, 2", sLay)
        k("s_cbranch_scc0 L_last")
        k("s_branch L_layer")
        k("L_final:")
        self.final()
        k("L_fin:")
        if o.get("padat"): k("s_waitcnt vmcnt(0)"); self.mark("fin")
        if o.get("stamp"):
            k("s_waitcnt vmcnt(0)")
            k("s_mov_b32 s%d, 1", sLay); self.nmark = 31; self.mark("end")
            srd(k, sTM, 78, 1 << 20, 240 << 20)
            k("s_lshl_b32 s%d, s2, 10", sT); k("s_lshl_b32 s%d, s%d, 8", sT + 1, sWv); k("s_add_u32 s%d, s%d, s%d", sT, sT, sT + 1)
            k("v_lshlrev_b32 v%d, 2, v0", vT)
            k("buffer_store_dword v31, v%d, s[%d:%d], s%d offen", vT, sTM, sTM + 3, sT)
        k("L_end:")
        k("s_endpgm")
        k.lines = hazard.fix(k.lines)
        return k

HEADER = open("interleave_layers__spectral_gfnet__glu_gated_bilinear__prompt.s.ref").read().split("; Override")[0]
DEFAULTS = {"lf": "", "polls": 0, "wtouch": 0,
            "pf": {2: [("g", 0), ("u", 0)]}, "lpf": 2, "wp1": 2, "map2": 1, "ilv": 1}
def generate(path, opt):
    opt = dict(DEFAULTS, **opt)
    g = Gen(opt); k = g.build()
    o = [HEADER.rstrip("\n")]
    if opt.get("stamp"): o.append("; marks " + repr(g.marknames))
    o.append("; @launch grid=(256,1,1) block=(256,1,1) lds=%d" % LDS_BYTES)
    o += ['.amdgcn_target "amdgcn-amd-amdhsa--gfx950"', ".text", k.text(), '.section .rodata,"a"', k.desc()]
    open(path, "w").write("\n".join(o))
if __name__ == "__main__":
    generate(sys.argv[1], eval(sys.argv[2]) if len(sys.argv) > 2 else {})
```

```python
import sys, math
sys.path.insert(0, "tools")
from asmgen import *
import hazard
KNAME = "interleave_layers__spectral_gfnet__glu_gated_bilinear__prompt_kernel"
U_OFF, V_OFF, XL_OFF, PART_OFF, H_OFF, ST_OFF = 0x0, 0x400000, 0x800000, 0xC00000, 0x1400000, 0x2200000
LSTRIDE = 0x2400000
FL_OFF = 2 * LSTRIDE
FL_B1, FL_B2, FL_B3, FL_B4, FL_B5, FL_LSTRIDE = 0, 0x8000, 0x10000, 0x14000, 0x1C000, 0x24000
L_G1, L_G2 = 0, 0x10000
L_P1, L_P2, L_P3A, L_P3B = 0x10000, 0x1C000, 0x18000, 0x10000
L_W2 = L_P3A
L_W = 0x20000
LDS_BYTES = 0x28000
sWS, sXS, sG, sU, sD, sOUT, sFL, sTM = 4, 8, 12, 16, 20, 24, 28, 32
sN2, sWv, sLay = 40, 41, 42
sMT, sNT, sMT2, sNT2, sKH = 43, 44, 45, 46, 47
sFo = 48
sOx, sOw, sOh, sOd, sM0, sIt = 49, 50, 51, 52, 53, 54
sPo = 39
sDa, sDb, sOe = 36, 37, 38
sT = 56
sK = 84
vL, vI, vG = 0, 1, 2
vG1r, vG1x, vG1w = 3, 4, 5
vG2r, vG2w, vG2h = 7, 11, 15
vL128 = 16
vT = 17
aF, aGm, aM1, aM1H, aC, aCH = 176, 184, 192, 208, 224, 228
aX1, aW = 152, 232
EPS = 1e-5
import struct
def fl(x): return "0x%x" % struct.unpack("<I", struct.pack("<f", x))[0]
def vr(b, n=4): return "v[%d:%d]" % (b, b + n - 1)
def ar(b, n=4): return "a[%d:%d]" % (b, b + n - 1)
def setexec(k, n):
    if n == 64: k("s_mov_b64 exec, -1"); return
    m = (1 << n) - 1
    k("s_mov_b32 exec_lo, 0x%x" % (m & 0xffffffff)); k("s_mov_b32 exec_hi, 0x%x" % (m >> 32))

class Gen:
    def __init__(self, opt):
        self.opt = opt
        self.k = Kern(KNAME, vgprs=256, agprs=256, sgprs=102)
        self.nmark = 0; self.ool = []
        self.SF = " sc1"
        self.LF = opt.get("lf", " sc1")
    def mark(self, name):
        pad = self.opt.get("padat")
        if pad:
            k = self.k
            if name == "start": k("s_memrealtime s[100:101]"); k("s_waitcnt lgkmcnt(0)")
            if name == pad[0]:
                L = k.label("pad"); LX = k.label("padx")
                k("s_cmp_lg_u32 s%d, %d", sLay, pad[1]); k("s_cbranch_scc1 " + LX)
                k(L + ":"); k("s_memrealtime s[96:97]"); k("s_waitcnt lgkmcnt(0)")
                k("s_sub_u32 s96, s96, s100"); k("s_cmp_lt_u32 s96, %d", int(pad[2] * 100)); k("s_cbranch_scc1 " + L)
                k(LX + ":")
        if not self.opt.get("stamp"): return
        k = self.k; i = self.nmark; self.nmark += 1
        self.marknames = getattr(self, "marknames", []) + [name]
        k("s_memtime s[96:97]" if self.opt.get("cyc") else "s_memrealtime s[96:97]"); k("s_waitcnt lgkmcnt(0)")
        k("s_lshl_b32 s98, s%d, 5", sLay); k("s_add_u32 s98, s98, %d", i); k("s_mov_b32 s99, m0"); k("s_and_b32 m0, s98, 63")
        k("s_nop 0"); k("v_writelane_b32 v31, s96, m0"); k("s_mov_b32 m0, s99")
    def cs(self, dc, ds, vint, scale, add=None):
        k = self.k; t = vT + 13
        k("v_cvt_f32_u32 v%d, v%d", t, vint)
        k("v_mul_f32 v%d, %s, v%d", t, fl(scale), t)
        if add is not None: k("v_add_f32 v%d, v%d, v%d", t, add, t)
        k("v_fract_f32 v%d, v%d", t, t)
        k("v_cos_f32 v%d, v%d", dc, t); k("v_sin_f32 v%d, v%d", ds, t)
    def pack_to_a(self, a, lo, hi, neglo=False, neghi=False):
        k = self.k; t = vT + 12
        k("v_cvt_pk_bf16_f32 v%d, %sv%d, %sv%d", t, "-" if neglo else "", lo, "-" if neghi else "", hi)
        k("v_accvgpr_write_b32 a%d, v%d", a, t)
    vP, vQ = 13, 28
    def arrive(self, sbase, S, R, sshard):
        k = self.k
        if sshard is not None:
            k("s_lshl_b32 s%d, s%d, 7", sT + 3, sshard); k("s_add_u32 s%d, s%d, s%d", sT + 3, sT + 3, sbase)
        else: k("s_mov_b32 s%d, s%d", sT + 3, sbase)
        k("v_mul_u32_u24 v%d, %d, v%d", vT, S, vL128); k("v_mov_b32 v%d, 1", vT + 1)
        k("s_waitcnt vmcnt(0)"); k("s_barrier")
        L = k.label("arr")
        k("s_cmp_lg_u32 s%d, 0", sWv); k("s_cbranch_scc1 " + L)
        setexec(k, R)
        k("buffer_atomic_add v%d, v%d, s[%d:%d], s%d offen sc1", vT + 1, vT, sFL, sFL + 3, sT + 3)
        setexec(k, 64)
        k(L + ":")
    def watch(self, sbase, S, srep, count):
        k = self.k
        if srep is not None:
            k("s_mul_i32 s%d, s%d, %d", sPo, srep, S * 128); k("s_add_u32 s%d, s%d, s%d", sPo, sPo, sbase)
        else: k("s_mov_b32 s%d, s%d", sPo, sbase)
        self.wS, self.wcount, self.npoll = S, count, 0
    def poll(self, level=1):
        if level > self.opt.get("polls", 2): return
        k = self.k; L = k.label("pl"); v = self.vP + self.npoll; self.npoll += 1
        k("s_cmp_lg_u32 s%d, 0", sWv); k("s_cbranch_scc1 " + L)
        k("v_mov_b32 v%d, 0", v); setexec(k, self.wS)
        k("buffer_atomic_add v%d, v%d, s[%d:%d], s%d offen sc0 sc1", v, vL128, sFL, sFL + 3, sPo)
        setexec(k, 64)
        k(L + ":")
    def wait(self):
        k = self.k; S, count, n = self.wS, self.wcount, self.npoll
        L = k.label("wdone"); LP = k.label("poll"); LX = k.label("pollx")
        k("s_cmp_lg_u32 s%d, 0", sWv); k("s_cbranch_scc1 " + L)
        k("s_mov_b32 s%d, 0", sT + 2)
        setexec(k, S)
        k(LP + ":")
        k("v_mov_b32 v%d, 0", self.vQ)
        k("buffer_atomic_add v%d, v%d, s[%d:%d], s%d offen sc0 sc1", self.vQ, vL128, sFL, sFL + 3, sPo)
        for i in range(n):
            k("s_waitcnt vmcnt(%d)", n - i)
            k("v_cmp_ne_u32 vcc, %d, v%d", count, self.vP + i)
            k("s_cbranch_vccz " + LX)
        k("s_add_u32 s%d, s%d, 1", sT + 2, sT + 2); k("s_cmp_ge_u32 s%d, 0x40000", sT + 2); k("s_cbranch_scc1 " + LX)
        k("s_waitcnt vmcnt(0)")
        k("v_cmp_ne_u32 vcc, %d, v%d", count, self.vQ)
        k("s_cbranch_vccnz " + LP)
        k(LX + ":")
        setexec(k, 64)
        k(L + ":")
        k("s_barrier")
    def reduce4(self, p, q, r, s, c2):
        k = self.k
        k("v_permlane16_swap_b32 v%d, v%d", p, q); k("v_permlane16_swap_b32 v%d, v%d", r, s)
        k("v_add_f32 v%d, v%d, v%d", p, p, q); k("v_add_f32 v%d, v%d, v%d", r, r, s)
        k("v_permlane32_swap_b32 v%d, v%d", p, r)
        k("v_add_f32 v%d, v%d, v%d", r, p, r)
        for sh in (8, 4, 2, 1): k("v_add_f32_dpp v%d, v%d, v%d row_ror:%d row_mask:0xf bank_mask:0xf", r, r, r, sh)
        k("v_mov_b32 v%d, v%d", p, r)
        k("v_permlane32_swap_b32 v%d, v%d", p, r)
        k("v_mul_f32 v%d, %s, v%d", p, fl(1.0 / 1024), p)
        k("v_mul_f32 v%d, %s, v%d", r, fl(c2), r)
        k("v_fma_f32 v%d, -v%d, v%d, v%d", r, p, p, r)
        k("v_max_f32 v%d, 0, v%d", r, r)
        k("v_add_f32 v%d, %s, v%d", r, fl(EPS), r)
    def sums(self, base, t):
        k = self.k
        for j in range(8):
            for q in range(2):
                b = base + 16 * q + 2 * j
                if j == 0: k("v_pk_mul_f32 %s, %s, %s", vr(t + 4 + 2 * q, 2), vr(b, 2), vr(b, 2))
                else: k("v_pk_fma_f32 %s, %s, %s, %s", vr(t + 4 + 2 * q, 2), vr(b, 2), vr(b, 2), vr(t + 4 + 2 * q, 2))
                if j == 1: k("v_pk_add_f32 %s, %s, %s", vr(t + 2 * q, 2), vr(b - 2, 2), vr(b, 2))
                elif j > 1: k("v_pk_add_f32 %s, %s, %s", vr(t + 2 * q, 2), vr(t + 2 * q, 2), vr(b, 2))
        for j in range(4): k("v_add_f32 v%d, v%d, v%d", t + 2 * j, t + 2 * j, t + 2 * j + 1)
    def twiddle(self, re, im, tc, ts, tmp, out, conj=False, e=None):
        k = self.k
        for h in (0, 2):
            if e is None:
                k("v_pk_mul_f32 %s, %s, %s", vr(tmp + h, 2), vr(re + h, 2), vr(tc + h, 2))
                k("v_pk_mul_f32 %s, %s, %s", vr(tmp + 4 + h, 2), vr(im + h, 2), vr(tc + h, 2))
            else:
                k("v_pk_fma_f32 %s, %s, %s, %s op_sel_hi:[1,1,0]", vr(tmp + h, 2), vr(re + h, 2), vr(tc + h, 2), vr(e, 2))
                k("v_pk_fma_f32 %s, %s, %s, %s op_sel_hi:[1,1,0]", vr(tmp + 4 + h, 2), vr(im + h, 2), vr(tc + h, 2), vr(e, 2))
        neg = " neg_lo:[1,0,0] neg_hi:[1,0,0]"
        for h in (0, 2):
            k("v_pk_fma_f32 %s, %s, %s, %s%s", vr(tmp + h, 2), vr(im + h, 2), vr(ts + h, 2), vr(tmp + h, 2), neg if conj else "")
            k("v_pk_fma_f32 %s, %s, %s, %s%s", vr(tmp + 4 + h, 2), vr(re + h, 2), vr(ts + h, 2), vr(tmp + 4 + h, 2), "" if conj else neg)
        for r in range(4): k("v_cvt_pk_bf16_f32 v%d, v%d, v%d", out + r, tmp + r, tmp + 4 + r)
    def mf(self, d, a, b, c="0", kk=32):
        self.k("v_mfma_f32_16x16x%d_bf16 %s, %s, %s, %s", kk, vr(d), a, b, c if isinstance(c, str) else vr(c))

    def prologue(self):
        k = self.k; o = self.opt
        k("s_cmp_ge_u32 s2, 256"); k("s_cbranch_scc1 L_end")
        k("s_load_dwordx4 s[60:63], s[0:1], 0")
        k("s_load_dwordx2 s[64:65], s[0:1], 16")
        k("s_load_dwordx8 s[68:75], s[0:1], 32")
        k("s_load_dwordx4 s[76:79], s[0:1], 64")
        if not o.get("nocodepf"):
            k("s_getpc_b64 s[66:67]")
            k("L_pc:")
            k("v_lshlrev_b32 v%d, 7, v0", vT)
            k("v_min_u32 v%d, (L_end-L_pc), v%d", vT, vT)
            k("global_load_dword a254, v%d, s[66:67]", vT)
            k("v_add_u32 v%d, 0x8000, v%d", vT, vT); k("v_min_u32 v%d, (L_end-L_pc), v%d", vT, vT)
            k("global_load_dword a254, v%d, s[66:67]", vT)
        k("v_lshrrev_b32 v%d, 6, v0", vT); k("v_and_b32 v0, 63, v0")
        k("v_readfirstlane_b32 s%d, v%d", sWv, vT)
        k("v_and_b32 v%d, 15, v0", vI); k("v_lshrrev_b32 v%d, 4, v0", vG)
        k("v_lshlrev_b32 v%d, 7, v0", vL128)
        k("s_and_b32 s%d, s2, 7", sT); k("s_lshr_b32 s%d, s2, 3", sT + 1)
        k("s_lshl_b32 s%d, s%d, 5", sN2, sT); k("s_add_u32 s%d, s%d, s%d", sN2, sN2, sT + 1)
        k("s_and_b32 s%d, s%d, 1", sKH, sT); k("s_lshr_b32 s%d, s%d, 1", sT, sT)
        k("s_lshr_b32 s%d, s%d, 1", sT + 2, sT); k("s_lshl_b32 s%d, s%d, 2", sT + 2, sT + 2)
        k("s_and_b32 s%d, s%d, 3", sT + 3, sT + 1); k("s_add_u32 s%d, s%d, s%d", sMT, sT + 3, sT + 2)
        k("s_lshr_b32 s%d, s%d, 2", sT + 1, sT + 1)
        k("s_and_b32 s%d, s%d, 1", sT + 2, sT); k("s_lshl_b32 s%d, s%d, 3", sT + 2, sT + 2); k("s_lshl_b32 s%d, s%d, 4", sNT, sKH)
        k("s_add_u32 s%d, s%d, s%d", sNT, sNT, sT + 2); k("s_add_u32 s%d, s%d, s%d", sNT, sNT, sT + 1)
        if o.get("map2", 0) == 0:
            k("s_lshl_b32 s%d, s%d, 2", sMT2, sT); k("s_add_u32 s%d, s%d, s%d", sMT2, sMT2, sT + 3); k("s_mov_b32 s%d, s%d", sNT2, sT + 1)
        else:
            k("s_and_b32 s%d, s%d, 1", sT + 3, sT + 1); k("s_lshl_b32 s%d, s%d, 1", sMT2, sMT); k("s_add_u32 s%d, s%d, s%d", sMT2, sMT2, sT + 3)
            k("s_lshr_b32 s%d, s%d, 1", sT + 2, sT + 2); k("s_lshr_b32 s%d, s%d, 1", sNT2, sT + 1); k("s_add_u32 s%d, s%d, s%d", sNT2, sNT2, sT + 2)
        k("s_mov_b32 s%d, 0", sLay); k("s_mov_b32 s%d, 0", sFo)
        k("s_lshl_b32 s%d, s%d, 12", sM0, sWv)
        if o.get("stamp"): k("v_mov_b32 v31, 0")
        self.p1_addr()
        k("v_lshlrev_b32 v%d, 4, v0", vT); k("v_mov_b64 v[20:21], 0"); k("v_mov_b64 v[22:23], 0")
        k("s_waitcnt lgkmcnt(0)")
        srd(k, sXS, 60, 2048 * 2048)
        srd(k, sFL, 78, 2 * FL_LSTRIDE, FL_OFF)
        self.mark("start")
        L = k.label("nz")
        k("s_sub_u32 s%d, s2, 8", sIt); k("s_cmp_ge_u32 s%d, 4", sIt); k("s_cbranch_scc1 " + L)
        k("s_lshl_b32 s%d, s%d, 13", sT, sIt); k("s_lshl_b32 s%d, s%d, 11", sT + 1, sWv); k("s_add_u32 s%d, s%d, s%d", sT, sT, sT + 1)
        for j in range(2): k("buffer_store_dwordx4 v[20:23], v%d, s[%d:%d], s%d offen offset:%d sc1", vT, sFL, sFL + 3, sT, j * 1024)
        k(L + ":")
        self.p1_loads(0, o.get("xfl", ""))
        srd(k, sWS, 78, LSTRIDE)
        srd(k, sG, 68, 1024 * 7168)
        k("s_sub_u32 s%d, s70, 2048", sU); k("s_subb_u32 s%d, s71, 0", sU + 1)
        k("s_mov_b32 s%d, 0x%x", sU + 2, 1024 * 7168 + 2048); k("s_mov_b32 s%d, 0x20000", sU + 3)
        k("s_sub_u32 s%d, s72, 3072", sD); k("s_subb_u32 s%d, s73, 0", sD + 1)
        k("s_mov_b32 s%d, 0x%x", sD + 2, 3584 * 2048 + 3072); k("s_mov_b32 s%d, 0x20000", sD + 3)
        srd(k, sOUT, 74, 2048 * 2048)
        k("s_lshl_b32 s%d, s2, 10", sT); k("s_lshl_b32 s%d, s%d, 8", sT + 1, sWv); k("s_add_u32 s%d, s%d, s%d", sT, sT, sT + 1); k("s_add_u32 s%d, s%d, 0x8000", sT, sT)
        setexec(k, 16)
        k("buffer_store_dwordx4 v[20:23], v%d, s[%d:%d], s%d offen sc1", vT, sFL, sFL + 3, sT)
        setexec(k, 64)
        self.w_prep()
        self.npf0 = self.pf(0)
        self.consts(False)
    def w_prep(self):
        k = self.k
        k("s_lshr_b32 s%d, s%d, 5", sT, sN2); k("s_and_b32 s%d, s%d, 31", sT + 1, sN2)
        k("s_lshl_b32 s80, s%d, 4", sT + 1); k("s_sub_u32 s%d, 1010, s80", sT + 3)
        k("s_cmp_ge_u32 s%d, 2", sWv); k("s_cselect_b32 s80, s%d, s80", sT + 3); k("s_cselect_b32 s%d, -1, 0", sT + 3); k("s_cselect_b32 s%d, 508, 0", sT + 2)
        k("s_bitcmp1_b32 s%d, 0", sWv); k("s_cselect_b32 s%d, s64, s62", sTM); k("s_cselect_b32 s%d, s65, s63", sTM + 1)
        k("s_mov_b32 s%d, 0x%x", sTM + 2, 2048 * 1026); k("s_mov_b32 s%d, 0x20000", sTM + 3)
        def row(d, src):
            k("v_xor_b32 v%d, s%d, v%d", d, sT + 3, src); k("v_subrev_u32 v%d, s%d, v%d", d, sT + 3, d)
            k("v_and_b32 v%d, 2047, v%d", d, d); k("v_mul_u32_u24 v%d, 1026, v%d", d, d)
        k("s_lshl_b32 s81, s%d, 6", sT + 1); k("s_add_u32 s81, s81, s%d", sT)
        k("v_and_b32 v%d, 56, v0", vT); k("v_add_u32 v%d, s81, v%d", vT, vT); row(vT, vT)
        k("v_and_b32 v%d, 7, v0", vT + 1); k("v_lshlrev_b32 v%d, 7, v%d", vT + 1, vT + 1); k("v_min_u32 v%d, 514, v%d", vT + 1, vT + 1)
        k("v_add3_u32 v214, v%d, v%d, s%d", vT, vT + 1, sT + 2)
        if self.opt.get("wtouch", 1) == 0: self.w_touch()
        k("v_lshlrev_b32 v%d, 3, v%d", vT, vI); k("v_lshl_add_u32 v%d, v%d, 9, v%d", vT, vG, vT); k("v_add_u32 v%d, s%d, v%d", vT, sT, vT)
        for r in range(4):
            k("v_add_u32 v%d, %d, v%d", 208 + r, 128 * r, vT); row(208 + r, 208 + r)
        for j in range(2):
            k("s_and_b32 s%d, s%d, 2", sT, sWv); k("s_add_u32 s%d, s%d, %d", sT, sT, j); k("s_lshl_b32 s%d, s%d, 7", sT, sT)
            k("v_add_u32 v%d, s%d, v%d", 212 + j, sT, vT); k("v_mul_u32_u24 v%d, 1026, v%d", 212 + j, 212 + j); k("v_add_u32 v%d, 512, v%d", 212 + j, 212 + j)
    def w_touch(self):
        self.k("buffer_load_dword a255, v214, s[%d:%d], 0 offen%s", sTM, sTM + 3, self.opt.get("wfl", ""))
    def w_in_p1(self, rs):
        k = self.k
        rs = [r for r in rs if r < self.opt.get("wp1", 0)]
        if not rs: return
        L = k.label("wp"); k("s_cmp_lg_u32 s%d, 0", sLay); k("s_cbranch_scc1 " + L)
        self.w_loads(False, rs)
        k(L + ":")
    def w_loads(self, special, rs=None):
        k = self.k
        if rs is None: rs = range(self.opt.get("wp1", 0), 4)
        if self.opt.get("now"): return
        if special:
            k("s_lshl_b32 s%d, s%d, 9", sT, sWv)
            for j in range(2):
                k("s_add_u32 m0, s%d, 0x%x", sT, L_W2 + j * 256)
                k("buffer_load_ushort v%d, s[%d:%d], 0 offen lds", 212 + j, sTM, sTM + 3)
            return
        for r in rs:
            k("s_add_u32 m0, s%d, 0x%x", sM0, L_W + r * 1024)
            k("buffer_load_dwordx4 v%d, s[%d:%d], s80 offen lds", 208 + r, sTM, sTM + 3)
    def w_park(self):
        k = self.k; W = 152
        L = k.label("nsp")
        k("s_and_b32 s%d, s%d, 31", sT, sN2); k("s_or_b32 s%d, s%d, s%d", sT, sT, sWv)
        k("s_cmp_lg_u32 s%d, 0", sT); k("s_cbranch_scc1 " + L)
        k("v_lshlrev_b32 v%d, 4, v0", vT); k("v_add_u32 v%d, 0x%x, v%d", vT, L_W, vT)
        k("v_lshlrev_b32 v%d, 2, v0", vT + 1); k("v_add_u32 v%d, 0x%x, v%d", vT + 1, L_W2, vT + 1)
        for r in range(4):
            for m in range(2): k("ds_read_b32 v%d, v%d offset:%d", W + 4 * m + r, vT + 1, ((r & 2) + m) * 512 + (r & 1) * 256)
        k("s_waitcnt lgkmcnt(0)")
        for r in range(4):
            for m in range(2): k("ds_write_b16 v%d, v%d offset:%d", vT, W + 4 * m + r, m * 4096 + r * 1024)
        k(L + ":")
    def pf(self, window):
        k = self.k; n = 0
        todo = self.opt.get("pf", {}).get(window, [])
        if not todo: return 0
        shadow = str(window).endswith("s")
        L = k.label("pf")
        if shadow:
            k("s_sub_u32 s%d, s%d, 1", sT + 1, sWv); k("s_lshl_b32 s%d, s%d, 4", sT, sLay); k("s_add_u32 s%d, s%d, s%d", sT + 1, sT + 1, sT)
            k("s_cmp_ge_u32 s%d, 2", sT + 1); k("s_cbranch_scc1 " + L)
            k("s_lshl_b32 s%d, s2, 1", sT); k("s_add_u32 s%d, s%d, s%d", sT, sT, sT + 1); k("s_mul_i32 s%d, s%d, %d", sT, sT, 28 * 128)
            setexec(k, 28)
        else:
            k("s_lshl_b32 s%d, s2, 2", sT); k("s_add_u32 s%d, s%d, s%d", sT, sT, sWv); k("s_mul_i32 s%d, s%d, %d", sT, sT, 14 * 128)
            k("s_cmp_eq_u32 s%d, 0", sLay); k("s_cselect_b64 exec, 0x3fff, 1")
        for (m, c) in todo:
            r, bias = {"g": (sG, 0), "u": (sU, 2048), "d": (sD, 3072)}[m]
            k("s_add_u32 s%d, s%d, %d", sT + 1, sT, int(c * (7340032 // 4)) + bias)
            k("buffer_load_dword a255, v%d, s[%d:%d], s%d offen", vL128, r, r + 3, sT + 1); n += 1
        setexec(k, 64)
        k(L + ":")
        return 0 if shadow else n
    def consts(self, inv):
        k = self.k; c, s, n = vT, vT + 1, vT + 2
        for r in range(4):
            k("v_lshl_add_u32 v%d, v%d, 2, %d", n + 1, vG, r)
            k("v_mul_u32_u24 v%d, v%d, v%d", n, vI, n + 1)
            if not inv:
                self.cs(c, s, n, 1.0 / 16)
                self.pack_to_a(aF + r, c, s); self.pack_to_a(aF + 4 + r, s, c, neglo=True)
                self.pack_to_a(aGm + r, c, s, neghi=True); self.pack_to_a(aGm + 4 + r, s, c)
                k("v_lshl_add_u32 v%d, v%d, 1, v%d", n + 2, n, vI)
                self.cs(c, s, n + 2, 1.0 / 32)
                self.pack_to_a(aM1 + r, c, s); self.pack_to_a(aM1 + 4 + r, s, c, neglo=True)
                self.pack_to_a(aM1 + 8 + r, c, s, True, True); self.pack_to_a(aM1 + 12 + r, s, c, neghi=True)
            else:
                k("v_lshl_add_u32 v%d, v%d, 1, v%d", n + 2, n, n + 1)
                self.cs(c, s, n + 2, 1.0 / 32)
                self.pack_to_a(aM1H + r, c, s, neghi=True); self.pack_to_a(aM1H + 4 + r, s, c)
                self.pack_to_a(aM1H + 8 + r, c, s, neglo=True); self.pack_to_a(aM1H + 12 + r, s, c, True, True)
        k("v_and_b32 v%d, 1, v%d", n + 3, vI); k("v_cvt_f32_u32 v%d, v%d", n + 4, n + 3); k("v_mul_f32 v%d, 0x3e800000, v%d", n + 4, n + 4)
        if inv: k("v_mul_u32_u24 v%d, 0x8000, v%d", n + 3, n + 3); k("v_lshl_or_b32 v%d, v%d, 16, v%d", n + 3, n + 3, n + 3)
        k("v_lshrrev_b32 v%d, 1, v%d", n + 5, vI)
        for q in range(2):
            k("v_lshl_add_u32 v%d, v%d, 1, %d", n + 1, vG, q)
            if not inv:
                k("v_lshlrev_b32 v%d, 8, v%d", n, n + 1); k("v_add_u32 v%d, s%d, v%d", n, sN2, n); k("v_mul_u32_u24 v%d, v%d, v%d", n, n, n + 5)
                self.cs(c, s, n, 1.0 / 2048, add=n + 4)
                self.pack_to_a(aC + q, c, s); self.pack_to_a(aC + 2 + q, c, s, neghi=True)
            else:
                k("v_lshlrev_b32 v%d, 8, v%d", n, n + 5); k("v_add_u32 v%d, s%d, v%d", n, sN2, n); k("v_mul_u32_u24 v%d, v%d, v%d", n, n, n + 1)
                self.cs(c, s, n, -1.0 / 2048, add=n + 4)
                self.pack_to_a(aCH + q, c, s)
                k("v_xor_b32 v%d, v%d, v%d", vT + 12, vT + 12, n + 3); k("v_accvgpr_write_b32 a%d, v%d", aCH + 2 + q, vT + 12)
    def g_addr(self):
        k = self.k; t = vT
        k("v_lshlrev_b32 v%d, 4, v0", t); k("v_add_u32 v%d, s%d, v%d", vG1x, sM0, t)
        k("v_lshrrev_b32 v%d, 5, v0", t); k("v_lshlrev_b32 v%d, 12, v%d", t, t)
        k("v_bfe_u32 v%d, v0, 4, 1", t + 1); k("v_mul_u32_u24 v%d, 1152, v%d", t + 1, t + 1)
        k("v_bfe_u32 v%d, v0, 2, 2", t + 2); k("v_mul_u32_u24 v%d, 224, v%d", t + 2, t + 2)
        k("v_and_b32 v%d, 3, v0", t + 3); k("v_lshlrev_b32 v%d, 3, v%d", t + 3, t + 3)
        k("v_add3_u32 v%d, v%d, v%d, v%d", t + 1, t, t + 1, t + 2); k("v_add_u32 v%d, v%d, v%d", vG1r, t + 1, t + 3)
        for j in range(2):
            k("s_lshl_b32 s%d, s%d, 3", sT, sWv); k("s_add_u32 s%d, s%d, %d", sT, sT, 4 * j)
            k("s_mul_i32 s%d, s%d, 7168", sT, sT); k("s_mul_i32 s%d, s%d, 224", sT + 1, sNT); k("s_add_u32 s%d, s%d, s%d", sT, sT, sT + 1)
            if j: k("s_sub_u32 s%d, s%d, 1024", sT, sT)
            k("v_subrev_u32 v%d, %d, v0", t + 4, 8 * j)
            k("v_mul_u32_u24 v%d, 4682, v%d", t + 5, t + 4); k("v_lshrrev_b32 v%d, 16, v%d", t + 5, t + 5)
            k("v_mul_u32_u24 v%d, 14, v%d", t + 6, t + 5); k("v_sub_u32 v%d, v%d, v%d", t + 6, t + 4, t + 6)
            k("v_mul_u32_u24 v%d, 7168, v%d", t + 5, t + 5); k("v_lshl_add_u32 v%d, v%d, 4, v%d", t + 5, t + 6, t + 5)
            k("v_add_u32 v%d, s%d, v%d", t + 5, sT, t + 5)
            k("v_cmp_gt_u32 vcc, 56, v%d", t + 4)
            k("v_mov_b32 v%d, 0x80000000", t + 6)
            k("v_cndmask_b32 v%d, v%d, v%d, vcc", vG1w + j, t + 6, t + 5)
        k("v_lshlrev_b32 v%d, 4, v%d", t + 4, vI); k("v_lshl_add_u32 v%d, v%d, 9, v%d", vG2h, vG, t + 4)
        k("v_bfe_u32 v%d, v0, 2, 3", t + 4); k("v_lshrrev_b32 v%d, 1, v%d", t + 5, t + 4)
        k("v_lshl_add_u32 v%d, v%d, 7, v%d", t + 4, t + 4, t); k("v_add_u32 v%d, v%d, v%d", t + 4, t + 4, t + 3)
        k("s_lshr_b32 s%d, s%d, 1", sT, sWv); k("s_lshl_b32 s%d, s%d, 14", sT, sT); k("s_add_u32 s%d, s%d, 0x10000", sT, sT); k("v_add_u32 v%d, s%d, v%d", t + 4, sT, t + 4)
        for x in range(4):
            k("v_xor_b32 v%d, %d, v%d", t + 6, x, t + 5); k("v_lshl_add_u32 v%d, v%d, 5, v%d", vG2r + x, t + 6, t + 4)
        k("s_lshr_b32 s%d, s%d, 1", sT, sWv); k("s_lshl_b32 s%d, s%d, 13", sT, sT)
        if self.opt.get("ilv"):
            k("s_lshr_b32 s%d, s%d, 1", sT + 1, sNT2); k("s_lshl_b32 s%d, s%d, 9", sT + 1, sT + 1); k("s_add_u32 s%d, s%d, s%d", sT, sT, sT + 1)
            k("s_and_b32 s%d, s%d, 1", sT + 1, sNT2); k("s_lshl_b32 s%d, s%d, 7", sT + 1, sT + 1); k("s_add_u32 s%d, s%d, s%d", sT, sT, sT + 1)
        else: k("s_lshl_b32 s%d, s%d, 8", sT + 1, sNT2); k("s_add_u32 s%d, s%d, s%d", sT, sT, sT + 1)
        k("v_lshrrev_b32 v%d, 5, v0", t + 4); k("v_bfe_u32 v%d, v0, 3, 2", t + 5); k("v_lshl_add_u32 v%d, v%d, 3, v%d", t + 4, t + 4, t + 5)
        k("v_lshlrev_b32 v%d, 11, v%d", t + 4, t + 4)
        k("v_bfe_u32 v%d, v0, 1, 2", t + 5); k("v_xor_b32 v%d, v%d, v%d", t + 5, t + 5, vG)
        k("v_lshl_add_u32 v%d, v%d, 5, v%d", t + 4, t + 5, t + 4)
        k("v_and_b32 v%d, 1, v0", t + 5); k("v_lshl_add_u32 v%d, v%d, 4, v%d", t + 4, t + 5, t + 4)
        k("v_add_u32 v%d, s%d, v%d", t + 4, sT, t + 4)
        for b in range(2): k("v_add_u32 v%d, 0x%x, v%d", vG2w + b, 3072 + b * (256 if self.opt.get("ilv") else 128) - b * 1024, t + 4)
        k("s_mul_i32 s%d, s%d, %d", sT, sKH, 1792 * 2048); k("s_and_b32 s%d, s%d, 1", sT + 1, sWv)
        k("s_mul_i32 s%d, s%d, %d", sDa, sT + 1, 16 * 2048); k("s_add_u32 s%d, s%d, s%d", sDa, sDa, sT)
        k("s_mul_i32 s%d, s%d, %d", sDb, sT + 1, 112 * 2048); k("s_add_u32 s%d, s%d, s%d", sDb, sDb, sT)
        if self.opt.get("dbg_lin"):
            k("s_lshl_b32 s%d, s%d, 1", sDa, sNT2); k("s_add_u32 s%d, s%d, s%d", sDa, sDa, sKH); k("s_mul_i32 s%d, s%d, %d", sDa, sDa, 28 * 16384)

    XA, XB, XC = 32, 48, 208
    vP1x = 240
    def p1_addr(self):
        k = self.k
        k("v_lshlrev_b32 v%d, 3, v%d", self.vP1x, vI); k("v_lshl_add_u32 v%d, v%d, 9, v%d", self.vP1x, vG, self.vP1x)
    def p1_loads(self, src, fl_=None):
        k = self.k; X = (self.XA, self.XB, self.XC)[src]
        if src == 0:
            k("s_lshl_b32 s%d, s%d, 20", sT, sWv); k("s_lshl_b32 s%d, s%d, 11", sT + 1, sN2); k("s_add_u32 s%d, s%d, s%d", sT, sT, sT + 1)
            for q in range(2):
                for r in range(4):
                    k("buffer_load_dwordx2 %s, v%d, s[%d:%d], s%d offen offset:%d%s", vr(X + 8 * q + 2 * self.LO[r], 2), self.vP1x, sXS, sXS + 3, sT, r * 128, fl_)
                if q == 0: k("s_add_u32 s%d, s%d, 0x80000", sT, sT)
            return
        for j in range(2):
            for q in range(2):
                k("buffer_load_dwordx4 %s, v247, s[%d:%d], s%d offen offset:%d%s", vr(X + 8 * q + 4 * j), sXS, sXS + 3, sK + 2 * (src - 1) + j, q * 64, self.LF)
    @property
    def RO(self): return (0, 1, 2, 3) if self.opt.get("ilv") else (0, 2, 1, 3)
    @property
    def LO(self): return (0, 2, 1, 3) if self.opt.get("ilv") else (0, 1, 2, 3)
    def part_addr(self):
        k = self.k
        k("v_lshrrev_b32 v247, 2, v%d", vI); k("v_lshl_add_u32 v247, v%d, 3, v247", vG); k("v_lshlrev_b32 v247, 10, v247")
        k("v_and_b32 v%d, 3, v0", vT); k("v_lshl_add_u32 v247, v%d, 4, v247", vT)
        k("s_lshr_b32 s%d, s%d, 1", sT, sN2); k("s_lshl_b32 s%d, s%d, 15", sT, sT); k("s_and_b32 s%d, s%d, 1", sT + 1, sN2); k("s_lshl_b32 s%d, s%d, 9", sT + 1, sT + 1)
        k("s_add_u32 s%d, s%d, s%d", sT, sT, sT + 1); k("s_lshl_b32 s%d, s%d, 7", sT + 1, sWv); k("s_add_u32 s%d, s%d, s%d", sK, sT, sT + 1)
        k("s_add_u32 s%d, s%d, 4096", sK + 1, sK); k("s_add_u32 s%d, s%d, 0x400000", sK + 2, sK); k("s_add_u32 s%d, s%d, 0x401000", sK + 3, sK)
    def exch_addr(self, base, a):
        k = self.k
        k("s_lshl_b32 s%d, s%d, 9", sT, sWv)
        k("v_lshlrev_b32 v%d, 12, v%d", a + 2, vG); k("v_add_u32 v%d, 0x%x, v%d", a + 2, base, a + 2)
        k("v_lshl_add_u32 v%d, v%d, 4, s%d", a + 3, vI, sT)
        k("v_add_u32 v%d, v%d, v%d", a, a + 2, a + 3)
        k("v_sub_u32 v%d, v%d, v%d", a + 1, a + 2, a + 3); k("v_add_u32 v%d, %d, v%d", a + 1, (512 - 33) * 8, a + 1)
        k("v_cmp_eq_u32 vcc, 0, v%d", a + 3)
        k("v_add_u32 v%d, %d, v%d", a + 2, (256 - 33) * 8, a + 2)
        k("v_cndmask_b32 v%d, v%d, v%d, vcc", a + 2, a + 1, a + 2)
        k("v_lshlrev_b32 v%d, 3, v%d", a + 3, vI); k("v_lshl_add_u32 v%d, v%d, 9, v%d", a + 3, vG, a + 3)
        k("s_add_u32 s%d, s%d, 0x%x", sT, sM0, base); k("v_add_u32 v%d, s%d, v%d", a + 3, sT, a + 3)
    def p1_pre(self):
        k = self.k; T1 = 96
        for c in range(2):
            for r in range(4):
                k("v_lshl_add_u32 v%d, v%d, 3, %d", vT, vG, 2 * r + c); k("v_mul_u32_u24 v%d, v%d, v%d", vT, vT, vI)
                self.cs(T1 + 8 * c + r, T1 + 8 * c + 4 + r, vT, 1.0 / 512)
        self.exch_addr(L_P1, 241)
        k("v_cmp_eq_u32 vcc, 0, v%d", vI); k("v_cndmask_b32 v245, 0, 1.0, vcc")
        k("v_lshlrev_b32 v246, 12, v%d", vG); k("v_lshl_add_u32 v246, v%d, 4, v246", vI)
    def p1_a(self, X, first, swap=True):
        k = self.k; D = 64
        if swap:
            for q in range(2):
                k("v_swap_b32 v%d, v%d", X + 8 * q + 1, X + 8 * q + 4); k("v_swap_b32 v%d, v%d", X + 8 * q + 3, X + 8 * q + 6)
        for l in range(4):
            for p in range(2): self.mf(D + (l * 2 + p) * 4, vr(X + 4 * l), ar(aF + 4 * p), "0" if first else D + (l * 2 + p) * 4)
    def x1_read(self):
        for j in range(16): self.k("v_accvgpr_read_b32 v%d, a%d", self.XA + j, aX1 + j)
    def x1_park(self):
        k = self.k; XI, O = 32, 160
        for q in range(2):
            for j in range(8):
                x = XI + 16 * q + 2 * j
                k("v_pk_add_f32 %s, %s, s[%d:%d] op_sel:[0,%d] op_sel_hi:[1,%d]", vr(x, 2), vr(x, 2), sK + 4, sK + 5, q, q)
        for l in range(4):
            for r in range(4): k("v_cvt_pk_bf16_f32 v%d, v%d, v%d", O + 4 * l + self.RO[r], XI + 8 * l + r, XI + 8 * l + 4 + r)
        for j in range(16): k("v_accvgpr_write_b32 a%d, v%d", aX1 + j, O + j)
    def p1(self):
        k = self.k; XA, XB = self.XA, self.XB
        D, T1, T1s, O, B, E, tmp = 64, 96, 112, 144, 160, 192, 224
        t = O
        self.sums(D, t)
        k("v_mul_f32 v%d, v245, v%d", t, t); k("v_mul_f32 v%d, v245, v%d", t + 2, t + 2)
        self.w_in_p1([0, 1])
        self.reduce4(t, t + 2, t + 4, t + 6, 1.0 / (16 * 1024))
        k("v_rsq_f32 v%d, v%d", t + 4, t + 4)
        k("v_mov_b32 v252, v%d", t)
        k("v_mul_f32 v%d, %s, v%d", t, fl(-16.0), t); k("v_mul_f32 v%d, v%d, v%d", t, t, t + 4)
        for q in range(2):
            k("v_readlane_b32 s%d, v%d, %d", sK + 2 * q, t + 4, 16 * q); k("v_readlane_b32 s%d, v%d, %d", sK + 2 * q + 1, t, 16 * q)
        for q in range(2):
            for j in range(8): k("v_pk_mul_f32 %s, %s, s[%d:%d] op_sel_hi:[1,0]", vr(T1s + 16 * q + 2 * j, 2), vr(T1 + 2 * j, 2), sK + 2 * q, sK + 2 * q + 1)
            k("v_mul_f32 v%d, s%d, v245", 248 + 2 * q, sK + 2 * q + 1)
        for l in range(4):
            q, c = l >> 1, l & 1
            self.twiddle(D + l * 8, D + l * 8 + 4, T1s + 16 * q + 8 * c, T1s + 16 * q + 8 * c + 4, B + 8 * l, O + 4 * l, e=248 + 2 * q)
        self.w_in_p1([2, 3])
        def b(q, t_, p): return B + ((q * 2 + t_) * 2 + p) * 4
        for q in range(2):
            for p in range(2): self.mf(b(q, 0, p), ar(aF + 4 * p), vr(O + 8 * q))
        for q in range(2):
            for p in range(2): self.mf(b(q, 1, p), ar(aM1 + 8 + 4 * p), vr(O + 8 * q + 4), b(q, 0, p))
        for q in range(2):
            for p in range(2): self.mf(b(q, 0, p), ar(aM1 + 4 * p), vr(O + 8 * q + 4), b(q, 0, p))
        for t_ in (1, 0):
            for r in range(4):
                e = E + (t_ * 4 + r) * 2
                for q in range(2): k("v_cvt_pk_bf16_f32 v%d, v%d, v%d", e + q, b(q, t_, 0) + r, b(q, t_, 1) + r)
                k("ds_write_b64 v244, %s offset:%d", vr(e, 2), r * 128 + t_ * 2048)
        k("s_waitcnt lgkmcnt(0)"); k("s_barrier")
        for u in range(2): k("ds_read_b128 %s, v241 offset:%d", vr(O + 8 * u), u * 256)
        for u in range(2):
            for e in range(2): k("ds_read_b64 %s, v%d offset:%d", vr(O + 8 * u + 4 + 2 * e, 2), 243 if (u, e) == (0, 0) else 242, (33 - 32 * u - e) * 8)
        k("s_lshl_b32 s%d, s%d, 14", sT, sN2); k("s_lshl_b32 s%d, s%d, 9", sT + 1, sWv); k("s_add_u32 s%d, s%d, s%d", sT, sT, sT + 1)
        if U_OFF: k("s_add_u32 s%d, s%d, 0x%x", sT, sT, U_OFF)
        k("s_waitcnt lgkmcnt(4)")
        for u in range(2):
            for e in range(2): self.mf(D + (u * 4 + e) * 4, ar(aC, 2), vr(O + 8 * u + 2 * e, 2), kk=16)
        k("s_waitcnt lgkmcnt(0)")
        for u in range(2):
            for e in range(2): self.mf(D + (u * 4 + 2 + e) * 4, ar(aC + 2, 2), vr(O + 8 * u + 4 + 2 * e, 2), kk=16)
        for u in range(2):
            for p in range(2):
                e0 = E + (u * 2 + p) * 4
                for e in range(4): k("v_cvt_pk_bf16_f32 v%d, v%d, v%d", e0 + e, D + (u * 4 + e) * 4 + 2 * p, D + (u * 4 + e) * 4 + 2 * p + 1)
                k("buffer_store_dwordx4 %s, v246, s[%d:%d], s%d offen offset:%d%s", vr(e0), sWS, sWS + 3, sT, p * 2048 + u * 256, self.SF)
    def p2_pre(self):
        k = self.k; T2, CO = 64, 72
        for r in range(4):
            k("v_lshl_add_u32 v%d, v%d, 2, %d", vT, vG, r); k("v_mul_u32_u24 v%d, v%d, v%d", vT, vT, vI)
            self.cs(T2 + r, T2 + 4 + r, vT, 1.0 / 256)
        k("v_lshl_add_u32 v241, v%d, 6, v%d", vG, vI)
        k("v_lshlrev_b32 v240, 14, v241")
        k("v_bfe_u32 v242, v0, 1, 2"); k("v_xor_b32 v242, s%d, v242", sWv); k("v_lshlrev_b32 v242, 4, v242")
        k("v_lshl_add_u32 v241, v241, 6, v242"); k("v_add_u32 v241, 0x%x, v241", L_P2)
        k("v_bfe_u32 v242, v0, 3, 2"); k("v_xor_b32 v242, v0, v242"); k("v_lshlrev_b32 v242, 4, v242")
        k("s_add_u32 s%d, s%d, 0x%x", sT, sM0, L_P2); k("v_add_u32 v242, s%d, v242", sT)
    def p2_coef(self):
        k = self.k; T2, CO = 64, 72; WP = 136
        L = k.label("once")
        k("s_cmp_lg_u32 s%d, 0", sLay); k("s_cbranch_scc1 " + L)
        self.w_park()
        k("s_lshl_b32 s%d, s%d, 2", sT, sWv); k("s_add_u32 s%d, s%d, 0x%x", sT + 1, sT, L_W); k("s_sub_u32 s%d, 0x%x, s%d", sT, L_W + 8192 + 12, sT)
        k("v_lshl_add_u32 v243, v0, 4, s%d", sT + 1); k("v_lshl_add_u32 v244, v0, 4, s%d", sT)
        for j in range(8):
            k("ds_read_b32 a%d, v243 offset:%d", aW + j, j * 1024); k("ds_read_b32 a%d, v244 offset:%d", aW + 8 + j, j * 1024)
        k(L + ":")
        k("s_and_b32 s%d, s%d, 31", sT, sN2); k("s_lshl_b32 s%d, s%d, 3", sT, sT); k("s_lshl_b32 s%d, s%d, 1", sT + 1, sWv); k("s_add_u32 s%d, s%d, s%d", sT, sT, sT + 1)
        k("s_add_u32 s%d, s%d, 1", sT + 1, sT); k("s_cmp_eq_u32 s%d, 0", sT); k("s_cselect_b32 s%d, 256, s%d", sT, sT)
        NRM = 1.0 / (2048 * 512)
        W1, W2 = 120, 128
        for x in range(2):
            k("v_mov_b32 v%d, s%d", vT, sT + x)
            self.cs(vT + 1, vT + 3, vT, 1.0 / 1024)
            k("v_mul_f32 v%d, 0.5, v%d", vT + 1, vT + 1)
            k("v_fma_f32 v%d, v%d, -0.5, 0.5", vT + 3, vT + 3)
            if x == 0:
                k("s_waitcnt lgkmcnt(0)")
                for j in range(16): k("v_accvgpr_read_b32 v%d, a%d", WP + j, aW + j)
            for j in range(8):
                k("v_and_b32 v%d, 0xffff0000, v%d" % (W1 + j, WP + j) if x else "v_lshlrev_b32 v%d, 16, v%d" % (W1 + j, WP + j))
                k("v_lshlrev_b32 v%d, 16, v%d" % (W2 + j, WP + 8 + j) if x else "v_and_b32 v%d, 0xffff0000, v%d" % (W2 + j, WP + 8 + j))
            for j in range(8):
                k("v_mul_f32 v%d, %s, v%d", W1 + j, fl(NRM), W1 + j); k("v_mul_f32 v%d, %s, v%d", W2 + j, fl(-NRM if j >= 4 else NRM), W2 + j)
            c = CO + 24 * x
            for j in range(0, 8, 2):
                k("v_pk_add_f32 %s, %s, %s neg_lo:[0,1] neg_hi:[0,1]", vr(c + 16 + j, 2), vr(W1 + j, 2), vr(W2 + j, 2))
            for j in range(0, 8, 2):
                k("v_pk_fma_f32 %s, %s, %s, %s op_sel_hi:[1,0,1]", vr(c + j, 2), vr(c + 16 + j, 2), vr(vT + 3, 2), vr(W2 + j, 2))
                k("v_pk_fma_f32 %s, %s, %s, %s op_sel_hi:[1,0,1] neg_lo:[1,0,0] neg_hi:[1,0,0]", vr(c + 8 + j, 2), vr(c + 16 + j, 2), vr(vT + 3, 2), vr(W1 + j, 2))
                k("v_pk_mul_f32 %s, %s, %s op_sel_hi:[1,0]", vr(c + 16 + j, 2), vr(c + 16 + j, 2), vr(vT + 1, 2))
    def p2(self):
        k = self.k; T2, CO = 64, 72
        Lx, D, O, tmp = 224, 120, 152, 168
        k("s_lshl_b32 s%d, s%d, 6", sT, sN2); k("s_lshl_b32 s%d, s%d, 4", sT + 1, sWv); k("s_add_u32 s%d, s%d, s%d", sT, sT, sT + 1)
        if U_OFF: k("s_add_u32 s%d, s%d, 0x%x", sT, sT, U_OFF)
        for r in range(4):
            k("buffer_load_dwordx4 %s, v240, s[%d:%d], s%d offen%s", vr(Lx + 4 * r), sWS, sWS + 3, sT, self.LF)
            if r < 3: k("s_add_u32 s%d, s%d, 0x40000", sT, sT)
        n = self.pf(2)
        self.p2_coef()
        k("s_waitcnt vmcnt(%d)", n)
        self.mark("p2_loaded")
        for a in range(4):
            for b in range(a + 1, 4): k("v_swap_b32 v%d, v%d", Lx + 4 * a + b, Lx + 4 * b + a)
        for e in range(4):
            for p in range(2): self.mf(D + 8 * e + 4 * p, vr(Lx + 4 * e), ar(aF + 4 * p))
        for e in range(4): self.twiddle(D + 8 * e, D + 8 * e + 4, T2, T2 + 4, tmp + 8 * e, O + 4 * e)
        for e in (0, 2, 1, 3):
            for p in range(2): self.mf(D + 8 * e + 4 * p, ar(aF + 4 * p), vr(O + 4 * e))
        neg = " neg_lo:[1,0,0] neg_hi:[1,0,0]"
        for x in range(2):
            c = CO + 24 * x; Z = D + 8 * x; V = D + 8 * (2 + x); z = tmp + 8 * x; v = tmp + 8 * (2 + x)
            terms = [(z, [(c, Z, 0), (c + 4, Z + 4, 1), (c + 20, V, 1), (c + 16, V + 4, 1)]),
                     (z + 4, [(c, Z + 4, 0), (c + 4, Z, 0), (c + 16, V, 0), (c + 20, V + 4, 1)]),
                     (v, [(c + 8, V, 0), (c + 12, V + 4, 1), (c + 20, Z, 0), (c + 16, Z + 4, 0)]),
                     (v + 4, [(c + 8, V + 4, 0), (c + 12, V, 0), (c + 16, Z, 1), (c + 20, Z + 4, 0)])]
            for j in range(4):
                for h in (0, 2):
                    for d, tl in terms:
                        a, b, n = tl[j]
                        if j == 0: k("v_pk_mul_f32 %s, %s, %s", vr(d + h, 2), vr(a + h, 2), vr(b + h, 2))
                        else: k("v_pk_fma_f32 %s, %s, %s, %s%s", vr(d + h, 2), vr(a + h, 2), vr(b + h, 2), vr(d + h, 2), neg if n else "")
            for e in (x, 2 + x):
                for r in range(4): k("v_cvt_pk_bf16_f32 v%d, v%d, v%d", O + 4 * e + r, tmp + 8 * e + r, tmp + 8 * e + 4 + r)
        for e in (0, 2, 1, 3):
            for p in range(2): self.mf(D + 8 * e + 4 * p, vr(O + 4 * e), ar(aGm + 4 * p))
        for e in (0, 2, 1, 3): self.twiddle(D + 8 * e, D + 8 * e + 4, T2, T2 + 4, tmp + 8 * e, O + 4 * e, conj=True)
        for e in (0, 2, 1, 3):
            for p in range(2): self.mf(D + 8 * e + 4 * p, ar(aGm + 4 * p), vr(O + 4 * e))
        for r in range(4):
            for e in (0, 2, 1, 3): k("v_cvt_pk_bf16_f32 v%d, v%d, v%d", Lx + 4 * r + e, D + 8 * e + r, D + 8 * e + 4 + r)
            k("ds_write_b128 v241, %s offset:%d", vr(Lx + 4 * r), r * 1024)
        k("s_lshl_b32 s%d, s%d, 14", sT, sN2); k("s_add_u32 s%d, s%d, 0x%x", sT, sT, V_OFF)
        k("s_waitcnt lgkmcnt(0)"); k("s_barrier")
        for j in range(4): k("ds_read_b128 %s, v242 offset:%d", vr(O + 4 * j), j * 1024)
        for j in range(4):
            k("s_waitcnt lgkmcnt(%d)", 3 - j)
            k("buffer_store_dwordx4 %s, v%d, s[%d:%d], s%d offen offset:%d%s", vr(O + 4 * j), vG1x, sWS, sWS + 3, sT, j * 1024, self.SF)
    def x_sum(self, single):
        k = self.k; XI = 32; T = 32 if single else 120
        for l in (3, 2, 1, 0):
            if single and l == 0 and self.RO[1] != 1: k("v_swap_b32 v%d, v%d", self.XA + 1, self.XA + 2)
            ro = (0, 1, 2, 3) if single and l == 0 else self.RO
            for r in range(4): k("v_and_b32 v%d, 0xffff0000, v%d", T + 8 * l + 4 + r, self.XA + 4 * l + ro[r])
            for r in range(4): k("v_lshlrev_b32 v%d, 16, v%d", T + 8 * l + r, self.XA + 4 * l + ro[r])
        if single: return
        for X, d in ((self.XB, T), (self.XC, XI)):
            for l in range(4):
                for r in range(4):
                    k("v_lshlrev_b32 v%d, 16, v%d", 152 + r, X + 4 * l + self.RO[r]); k("v_and_b32 v%d, 0xffff0000, v%d", 156 + r, X + 4 * l + self.RO[r])
                for h in range(0, 8, 2): k("v_pk_add_f32 %s, %s, %s", vr(d + 8 * l + h, 2), vr(T + 8 * l + h, 2), vr(152 + h, 2))
    def p3_pre(self):
        k = self.k; T3 = 64
        for c in range(2):
            for r in range(4):
                k("v_lshl_add_u32 v%d, v%d, 2, %d", vT, vG, r); k("v_lshl_add_u32 v%d, v%d, 1, %d", vT + 1, vI, c); k("v_mul_u32_u24 v%d, v%d, v%d", vT, vT, vT + 1)
                self.cs(T3 + 8 * c + r, T3 + 8 * c + 4 + r, vT, 1.0 / 512)
        self.exch_addr(L_P3A, 241)
        k("v_add_u32 v245, 2048, v244")
        k("v_lshrrev_b32 v240, 2, v%d", vI); k("v_lshl_add_u32 v240, v%d, 6, v240", vG); k("v_lshlrev_b32 v240, 14, v240")
        k("v_and_b32 v246, 3, v0"); k("v_lshl_add_u32 v240, v246, 4, v240")
        k("s_mul_i32 s%d, s%d, 4224", sT, sWv); k("s_add_u32 s%d, s%d, 0x%x", sT, sT, L_P3B)
        k("v_and_b32 v247, 8, v0"); k("v_lshlrev_b32 v247, 3, v247"); k("v_lshl_add_u32 v246, v246, 4, v247")
        k("v_and_b32 v247, 4, v0"); k("v_lshl_add_u32 v246, v247, 1, v246")
        k("v_lshl_add_u32 v246, v%d, 9, v246", vG); k("v_add_u32 v246, s%d, v246", sT)
        k("s_lshl_b32 s%d, s%d, 9", sT, sWv); k("s_add_u32 s%d, s%d, 0x%x", sT, sT, L_P3B)
        k("v_and_b32 v248, 7, v0"); k("v_mul_u32_u24 v247, 2112, v248"); k("v_lshrrev_b32 v249, 3, v0")
        k("v_lshl_add_u32 v247, v249, 4, v247"); k("v_add_u32 v247, s%d, v247", sT)
        k("v_lshlrev_b32 v248, 4, v248"); k("v_and_b32 v249, 3, v249"); k("v_lshl_add_u32 v248, v249, 8, v248")
        k("v_lshrrev_b32 v249, 5, v0"); k("v_lshl_add_u32 v248, v249, 14, v248")
    def p3(self, after_loads=None):
        k = self.k; T3, XI = 64, 32
        Lx, D, O, tmp = 112, 128, 160, 176
        k("s_lshl_b32 s%d, s%d, 6", sT, sN2); k("s_lshl_b32 s%d, s%d, 17", sT + 1, sWv); k("s_add_u32 s%d, s%d, s%d", sT, sT, sT + 1)
        k("s_add_u32 s%d, s%d, 0x%x", sT, sT, V_OFF)
        for u in range(2):
            for p in range(2):
                k("s_add_u32 s%d, s%d, 0x%x", sT + 1, sT, (32 * p + 4 * u) * 16384)
                k("buffer_load_dwordx4 %s, v240, s[%d:%d], s%d offen%s", vr(Lx + 8 * u + 4 * p), sWS, sWS + 3, sT + 1, self.LF)
        n = after_loads() if after_loads else 0
        k("s_waitcnt vmcnt(%d)", n)
        self.mark("p3_loaded")
        for u in range(2):
            b = Lx + 8 * u
            k("v_swap_b32 v%d, v%d", b + 1, b + 4); k("v_swap_b32 v%d, v%d", b + 3, b + 6)
        pos = {0: 0, 2: 2, 1: 4, 3: 6}
        for u in range(2):
            for e in range(4): self.mf(D + (u * 4 + e) * 4, ar(aCH + (2 if e >= 2 else 0), 2), vr(Lx + 8 * u + pos[e], 2), kk=16)
        for u in range(2):
            for e in range(4):
                d = D + (u * 4 + e) * 4
                for q in range(2): k("v_cvt_pk_bf16_f32 v%d, v%d, v%d", O + 8 * u + 2 * e + q, d + 2 * q, d + 2 * q + 1)
                if e == 1: k("ds_write_b128 v241, %s offset:%d", vr(O + 8 * u), u * 256)
                if e >= 2: k("ds_write_b64 v%d, %s offset:%d", 243 if (u, e) == (0, 2) else 242, vr(O + 8 * u + 2 * e, 2), (33 - 32 * u - (e - 2)) * 8)
        k("s_waitcnt lgkmcnt(0)"); k("s_barrier")
        for q in range(2):
            for t_ in range(2):
                for h in (0, 2): k("ds_read2_b32 %s, v%d offset0:%d offset1:%d", vr(Lx + (q * 2 + t_) * 4 + h, 2), 244 + t_, h * 32 + q, (h + 1) * 32 + q)
        for q in range(2):
            k("s_waitcnt lgkmcnt(%d)", 4 - 4 * q)
            for t_ in range(2):
                for c in range(2):
                    for p in range(2):
                        d = D + ((q * 2 + c) * 2 + p) * 4
                        m = aGm + 4 * p if c == 0 else aM1H + 8 * t_ + 4 * p
                        self.mf(d, vr(Lx + (q * 2 + t_) * 4), ar(m), d if t_ else "0")
        for l in range(4):
            c = l & 1
            self.twiddle(D + 8 * l, D + 8 * l + 4, T3 + 8 * c, T3 + 8 * c + 4, tmp + 8 * l, O + 4 * l, conj=True)
        for l in range(4):
            for p in range(2): self.mf(XI + 8 * l + 4 * p, ar(aGm + 4 * p), vr(O + 4 * l), XI + 8 * l + 4 * p)
        t = tmp
        self.sums(XI, t)
        self.reduce4(t, t + 2, t + 4, t + 6, 1.0 / 1024)
        k("v_rsq_f32 v%d, v%d", t + 2, t + 4)
        k("v_sub_f32 v252, v252, v%d", t)
        k("v_mul_f32 v%d, -v%d, v%d", t + 3, t, t + 2)
        for q in range(2):
            k("v_readlane_b32 s%d, v%d, %d", sK + 2 * q, t + 2, 16 * q); k("v_readlane_b32 s%d, v%d, %d", sK + 2 * q + 1, t + 3, 16 * q)
        for q in range(2):
            for j in range(8):
                x = XI + 16 * q + 2 * j
                k("v_pk_fma_f32 %s, %s, s[%d:%d], s[%d:%d] op_sel:[0,0,1] op_sel_hi:[1,0,1]", vr(x - XI + D, 2), vr(x, 2), sK + 2 * q, sK + 2 * q + 1, sK + 2 * q, sK + 2 * q + 1)
            for r in range(4):
                for c in range(2):
                    x = D + 16 * q + 8 * c
                    k("v_cvt_pk_bf16_f32 v%d, v%d, v%d", O + 8 * q + 2 * r + c, x + r, x + 4 + r)
                k("ds_write_b64 v246, %s offset:%d", vr(O + 8 * q + 2 * r, 2), q * 2112 + r * 128)
        for q in range(2): k("v_readlane_b32 s%d, v252, %d", sK + 4 + q, 16 * q)
        k("s_lshr_b32 s%d, s%d, 5", sT, sN2); k("s_lshl_b32 s%d, s%d, 19", sT, sT); k("s_lshl_b32 s%d, s%d, 17", sT + 1, sWv); k("s_add_u32 s%d, s%d, s%d", sT, sT, sT + 1)
        k("s_bfe_u32 s%d, s%d, 0x40001", sT + 1, sN2); k("s_lshl_b32 s%d, s%d, 10", sT + 1, sT + 1); k("s_add_u32 s%d, s%d, s%d", sT, sT, sT + 1)
        k("s_and_b32 s%d, s%d, 1", sT + 1, sN2); k("s_lshl_b32 s%d, s%d, 7", sT + 1, sT + 1); k("s_add_u32 s%d, s%d, s%d", sT, sT, sT + 1)
        k("s_add_u32 s%d, s%d, 0x%x", sT, sT, XL_OFF)
        k("s_waitcnt lgkmcnt(0)"); k("s_barrier")
        for j in range(4): k("ds_read_b128 %s, v247 offset:%d", vr(D + 4 * j), j * 128)
        for j in range(4):
            k("s_waitcnt lgkmcnt(%d)", 3 - j)
            k("buffer_store_dwordx4 %s, v248, s[%d:%d], s%d offen%s", vr(D + 4 * j), sWS, sWS + 3, sT, self.SF)
            if j < 3: k("s_add_u32 s%d, s%d, 0x8000", sT, sT)
    def g1_wdma(self, slot):
        o = ["s_add_u32 m0, s%d, 0x%x" % (sM0, L_G1 + slot * 16384)]
        for m in range(2):
            for j in range(2):
                s = sU if m else sG
                o.append("buffer_load_dwordx4 v%d, s[%d:%d], s%d offen offset:%d lds" % (vG1w + j, s, s + 3, sOw, m * 2048 + j * 1024))
        o.append("s_add_u32 s%d, s%d, %d" % (sOw, sOw, 32 * 7168))
        return o
    def g1_prefetch(self, slots, shadow):
        k = self.k
        if not slots: return 0
        L = k.label("gp")
        if shadow: k("s_cmp_eq_u32 s%d, 0", sWv); k("s_cbranch_scc1 " + L)
        for s in slots:
            k("s_mov_b32 s%d, %d", sOw, s * 32 * 7168)
            for x in self.g1_wdma(self.g1_slot(s))[:-1]: k(x)
        if shadow:
            for s in slots:
                L2 = k.label("gq")
                w = 1 + s % 3
                k("s_cmp_lg_u32 s%d, %d", sWv, w); k("s_cbranch_scc1 " + L2)
                k("s_mov_b32 m0, 0x%x", L_G1 + self.g1_slot(s) * 16384)
                k("v_subrev_u32 v%d, %d, v%d", vT, w * 8 * 7168, vG1w); k("v_subrev_u32 v%d, %d, v%d", vT + 1, w * 8 * 7168, vG1w + 1)
                k("s_mov_b32 s%d, %d", sOw, s * 32 * 7168)
                for x in self.g1_wdma(s)[1:-1]: k(x.replace("dwordx4 v%d," % vG1w, "dwordx4 v%d," % vT).replace("dwordx4 v%d," % (vG1w + 1), "dwordx4 v%d," % (vT + 1)))
                k(L2 + ":")
        k(L + ":")
        return 0 if shadow else 4 * len(slots)
    def vm_reset(self): self.log = []
    def vm_note(self, ins, tag):
        self.log += [tag] * len([x for x in ins if x.startswith(("buffer", "global"))])
        return ins
    def vm_need(self, tags):
        last = max([i for i, t in enumerate(self.log) if t in tags] + [-1])
        return min(63, len([t for t in self.log[last + 1:] if t != "P"]))
    def unit(self, mf, rq, vq, nv, eq=None, cap=1, first=None):
        k = self.k; vs = self.opt.get("vs", (2, 6, 0, 4))[:nv]; rq = list(rq)
        for i, m in enumerate(mf):
            k(m); n = 0
            if i == 0 and first:
                for x in first: k(x)
                n = 2
            if vq and vq[0][0].startswith("buffer"):
                if i % 8 in vs and n == 0:
                    x, tag = vq.pop(0); k(self.vm_note([x], tag)[0]); n = 2
            elif vq and nv and n == 0:
                while vq and not vq[0][0].startswith("buffer") and n < 2: k(vq.pop(0)[0]); n += 1
            if rq and n == 0: k(rq.pop(0)); n += 1
            while eq and n < cap:
                x = eq.pop(0)
                if x is None: break
                if isinstance(x, tuple): k(self.vm_note([x[0]], x[1])[0]); n = cap
                else: k(x); n += 1
        for x in rq: k(x)
    ACC = 32
    NA = 3
    def g1_acc(self, ft, m, st): return self.ACC + ((ft * 2 + m) * 4 + st) * 4
    def g2_slot(self, j): return (4, 6, 2, 0, 8)[(j // 2) % 5] + (j & 1)
    def g1_slot(self, t): return (0, 2, 8)[(t // 2) % 3] + (t & 1)
    def g1_rd(self, s, a, buf):
        o = []
        for h in range(2):
            sl = self.g1_slot(2 * s + h)
            for hh in range(2):
                o.append("ds_read_b64_tr_b16 %s, v%d offset:%d" % (ar(buf * 8 + 4 * h + 2 * hh, 2), vG1r if sl < 4 else vT + 10, (sl % 4) * 16384 + hh * 8192 + (a % 2) * 2048 + (a // 2) * 32))
        return o
    def g1_xf(self, s, h, st): return 56 + (s % 3) * 32 + (h * 4 + st) * 4
    def g1_mf(self, s, a, buf):
        r = []
        for b in range(4):
            st = b if a % 2 == 0 else 3 - b
            c = self.g1_acc(a // 2, a % 2, st)
            for h in range(2):
                r.append("v_mfma_f32_16x16x32_bf16 %s, %s, %s, %s" % (vr(c), ar(buf * 8 + 4 * h), ar(self.g1_xf(s, h, st)), "0" if s == 0 and h == 0 else vr(c)))
        return r
    def g2_rows(self, j):
        if j < 8: return sDa, 2 * j * 7, (2 * j + 1) * 7
        if j < 12: return sDb, 4 * (j - 8) * 7 + 2, (4 * (j - 8) + 2) * 7 + 2
        if j < 28: return sDa, (j - 12) * 7 + 3, (j - 12) * 7 + 5
        return sDa, 112 + (j - 12 - self.opt.get("bal", 0)) * 7 + 3, 112 + (j - 12 - self.opt.get("bal", 0)) * 7 + 5
    def g2_wdma(self, j, running=False):
        base, r0, r1 = self.g2_rows(j)
        o = ["s_add_u32 m0, s%d, 0x%x" % (sM0, self.g2_slot(j) * 16384),
             "s_add_u32 s%d, s%d, %d" % (sOd, base, r0 * 16 * 2048), "s_add_u32 s%d, s%d, %d" % (sOe, base, r1 * 16 * 2048 - 2048)]
        if running:
            o = ["s_mov_b32 m0, s55", "s_add_u32 s55, s55, 0x4000", "s_add_u32 s%d, s%d, %d" % (sOd, sOd, 14 * 16 * 2048), "s_add_u32 s%d, s%d, %d" % (sOe, sOd, 7 * 16 * 2048 - 2048)]
        for b in range(4):
            o.append("buffer_load_dwordx4 v%d, s[%d:%d], s%d offen offset:%d lds" % (vG2w + (b & 1), sD, sD + 3, sOe if b >> 1 else sOd, b * 1024))
        return [(x, ("D", j)) for x in o]
    def g1_pre(self):
        k = self.k
        for a in range(6):
            for x in self.g1_rd(0, a, a): k(x)
        k("s_lshl_b32 s%d, s%d, 19", sOx, sMT); k("s_add_u32 s%d, s%d, 0x%x", sOx, sOx, XL_OFF)
        k("s_lshl_b32 s%d, s%d, 2", sT, sMT); k("s_add_u32 s%d, s%d, s%d", sT, sT, sWv); k("s_mul_i32 s%d, s%d, 448", sT, sT)
        k("s_lshr_b32 s%d, s%d, 4", sT + 1, sNT); k("s_mul_i32 s%d, s%d, 112", sT + 1, sT + 1); k("s_add_u32 s%d, s%d, s%d", sT, sT, sT + 1)
        k("s_lshl_b32 s%d, s%d, 10", sT, sT); k("s_add_u32 s%d, s%d, 0x%x", sT, sT, H_OFF)
        k("s_and_b32 s%d, s%d, 15", sT + 1, sNT)
        for j, (sh, off) in enumerate(((11, 0), (10, 32), (12, 48))):
            k("s_lshl_b32 s%d, s%d, %d", sT + 2, sT + 1, sh); k("s_add_u32 s%d, s%d, s%d", sT + 2, sT + 2, sT)
            k("s_add_u32 s%d, s%d, %d", sK + 2 * j, sT + 2, off * 1024); k("s_add_u32 s%d, s%d, %d", sK + 2 * j + 1, sT + 2, (off + 224) * 1024)
        k("v_lshlrev_b32 v%d, 4, v0", vT + 2)
        k("v_add_u32 v%d, 0x20000, v%d", vT + 10, vG1r)
        k("s_and_b32 s%d, s%d, 1", sT, sWv); k("s_lshl_b32 s%d, s%d, 1", sT, sT); k("s_lshr_b32 s%d, s%d, 1", sT + 1, sWv); k("s_add_u32 s%d, s%d, s%d", sT, sT, sT + 1)
        k("s_lshl_b32 s%d, s%d, 2", sT + 2, sMT2); k("s_add_u32 s%d, s%d, s%d", sT, sT, sT + 2)
        k("s_lshl_b32 s%d, s%d, 16", sK + 10, sT); k("s_lshl_b32 s%d, s%d, 12", sT + 2, sNT2); k("s_add_u32 s%d, s%d, s%d", sK + 10, sK + 10, sT + 2)
        k("s_lshl_b32 s%d, s%d, 22", sT + 2, sKH); k("s_add_u32 s%d, s%d, s%d", sK + 10, sK + 10, sT + 2); k("s_add_u32 s%d, s%d, 0x%x", sK + 10, sK + 10, PART_OFF)
        k("s_add_u32 s%d, s%d, 0x8000", sK + 11, sK + 10)
        k("s_lshl_b32 s%d, s%d, 12", sT + 1, sT + 1); k("s_mul_i32 s%d, s%d, %d", sT + 2, sKH, 112 * 1024); k("s_add_u32 s%d, s%d, s%d", sT + 1, sT + 1, sT + 2)
        k("s_add_u32 s%d, s%d, 0x%x", sT + 1, sT + 1, H_OFF)
        k("s_mul_i32 s%d, s%d, %d", sOh, sT, 224 * 1024); k("s_add_u32 s%d, s%d, s%d", sOh, sOh, sT + 1)
        k("s_xor_b32 s%d, s%d, 1", sT, sT); k("s_mul_i32 s%d, s%d, %d", sK + 7, sT, 224 * 1024); k("s_add_u32 s%d, s%d, s%d", sK + 7, sK + 7, sT + 1)
        k("s_lshr_b32 s%d, s%d, 4", sT + 1, sNT); k("s_lshl_b32 s%d, s%d, 1", sT + 2, sMT); k("s_add_u32 s%d, s%d, s%d", sT + 1, sT + 1, sT + 2)
        self.flag(sK + 8, FL_B4, sT + 1)
        k("s_and_b32 s%d, s%d, 14", sT + 1, sMT2); k("s_add_u32 s%d, s%d, s%d", sT + 1, sT + 1, sKH); self.flag(sK + 9, FL_B4, sT + 1)
        k("s_and_b32 s%d, s%d, 1", sT + 1, sNT2); k("s_lshl_b32 s%d, s%d, 7", sT + 1, sT + 1); k("s_add_u32 s%d, s%d, s%d", sK + 9, sK + 9, sT + 1)
        k("v_mov_b32 v%d, 1", vT + 9)
        if self.opt.get("lpf"):
            NL = 56 // self.opt.get("lpn", 8); k("s_mov_b32 s%d, 0x%x", sK + 6, (((1 << NL) - 1) << 2 * NL) & 0xffffffff)
    def lpf_setup(self):
        k = self.k; AH = self.opt["lpf"][0]; NP = self.opt.get("lpn", 8); NL = 56 // NP
        k("s_lshl_b32 s%d, s2, 2", sT); k("s_add_u32 s%d, s%d, s%d", sT, sT, sWv)
        k("s_mul_i32 s%d, s%d, %d", sT, sT, NL * 128); k("s_add_u32 s%d, s%d, %d", sT + 1, sT, int(AH * (1024 // NP) * 7168))
        k("v_add_u32 v20, s%d, v%d", sT + 1, vL128); k("v_mov_b32 v22, s68"); k("v_mov_b32 v23, s69")
        k("s_lshl_b64 exec, -1, %d", NL)
        k("v_subrev_u32 v20, %d, v20", NL * 128); k("v_mov_b32 v22, s70"); k("v_mov_b32 v23, s71")
        k("s_lshl_b64 exec, -1, %d", 2 * NL)
        k("v_subrev_u32 v20, %d, v%d", 2 * NL * 128, vL128); k("v_add_u32 v20, s%d, v20", sT); k("v_mov_b32 v22, s72"); k("v_mov_b32 v23, s73")
        k("s_mov_b64 exec, -1")
        k("v_add_co_u32 v20, vcc, v22, v20"); k("v_addc_co_u32 v21, vcc, 0, v23, vcc")
    def lpf(self):
        AH, AE = self.opt["lpf"]; L = self.k.label("lpf"); NP = self.opt.get("lpn", 8); NL = 56 // NP
        assert AE <= NP
        m = (1 << 3 * NL) - 1
        self.ool.append("\n".join([L + "b:", "s_cmp_lt_u32 s83, %d" % (AE - AH), "s_cselect_b32 exec_lo, 0x%x, s%d" % (m & 0xffffffff, sK + 6), "s_mov_b32 exec_hi, 0x%x" % (m >> 32),
                          "global_load_dword a255, v[20:21], off", "s_mov_b64 exec, -1", "s_add_u32 s83, s83, 1",
                          "v_add_co_u32 v20, vcc, 0x%x, v20" % (1024 // NP * 7168), "v_addc_co_u32 v21, vcc, 0, v21, vcc", "s_branch " + L]))
        self.log.append("T")
        return "\n".join(["s_cmp_eq_u32 s%d, 0" % sLay, "s_cbranch_scc1 " + L + "b", "buffer_load_dword a255, off, s[%d:%d], 0" % (sG, sG + 3), L + ":"])
    def code_touch(self, lab0, lab1):
        L = self.k.label("ct")
        self.ool.append("\n".join([L + "b:", "v_lshlrev_b32 v25, 1, v%d" % vG1x, "v_and_b32 v25, 0x6000, v25", "v_add_u32 v25, v25, v%d" % vL128,
                          "v_add_u32 v25, (%s-L_pc), v25" % lab0, "v_min_u32 v25, (%s-L_pc), v25" % lab1,
                          "global_load_dword a254, v25, s[66:67]", "s_branch " + L]))
        return "\n".join(["s_cmp_eq_u32 s%d, 0" % sLay, "s_cbranch_scc1 " + L + "b", L + ":"])
    def w0(self, body):
        L = self.k.label("w0")
        return "\n".join(["s_cmp_lg_u32 s%d, 0" % sWv, "s_cbranch_scc1 " + L] + body + [L + ":"])
    def h_arrive(self, off):
        return self.w0(["s_mov_b64 exec, 3", "buffer_atomic_add v%d, v%d, s[%d:%d], s%d offen offset:%d sc1" % (vT + 9, vL128, sFL, sFL + 3, sK + 8, off), "s_mov_b64 exec, -1"])
    def h_poll(self, off):
        return ["v_mov_b32 v%d, 0" % vT, "s_mov_b64 exec, 1", "buffer_atomic_add v%d, v%d, s[%d:%d], s%d offen offset:%d sc0 sc1" % (vT, vL128, sFL, sFL + 3, sK + 9, off), "s_mov_b64 exec, -1"]
    def h_check(self, off):
        LP = self.k.label("hp"); LX = self.k.label("hx")
        return self.w0(["s_mov_b32 s%d, 0" % sT, LP + ":", "v_readfirstlane_b32 s%d, v%d" % (sT + 1, vT), "s_cmp_eq_u32 s%d, 16" % (sT + 1), "s_cbranch_scc1 " + LX]
                       + self.h_poll(off) + ["s_waitcnt vmcnt(0)", "s_add_u32 s%d, s%d, 1" % (sT, sT), "s_cmp_lt_u32 s%d, 0x40000" % sT, "s_cbranch_scc1 " + LP, LX + ":"])
    def g1_unit(self, ft, pr, dst, packed):
        o = []
        for q in range(2):
            g = self.g1_acc(ft, 0, 2 * pr + q); u = self.g1_acc(ft, 1, 2 * pr + q)
            if packed: o += ["v_pk_mul_f32 %s, %s, %s" % (vr(g + h, 2), vr(g + h, 2), vr(u + h, 2)) for h in (0, 2)]
            else: o += ["v_mul_f32 v%d, v%d, v%d" % (g + h, g + h, u + h) for h in range(4)]
        c = []
        for q in range(2):
            g = self.g1_acc(ft, 0, 2 * pr + q)
            c += ["v_cvt_pk_bf16_f32 v%d, v%d, v%d" % (dst + 2 * q + h, g + 2 * h, g + 2 * h + 1) for h in (0, 1)]
        sw = ["v_permlane16_swap_b32 v%d, v%d" % (dst, dst + 2), "v_permlane16_swap_b32 v%d, v%d" % (dst + 1, dst + 3)]
        so, off = ((sK, ft) if ft < 2 else ((sK + 2, 0) if ft == 2 else (sK + 4, ft - 3)))
        st = "buffer_store_dwordx4 %s, v%d, s[%d:%d], s%d offen offset:%d%s" % (vr(dst), vT + 2, sWS, sWS + 3, so + pr, off * 1024, self.SF)
        return o, c, sw, st
    def g1(self):
        k = self.k; o = self.opt; NB, D = 7, 6
        def xld(s):
            r = []
            for h in range(2):
                r += ["buffer_load_dwordx4 %s, v%d, s[%d:%d], s%d offen offset:%d%s" % (ar(self.g1_xf(s, h, j)), vG1x, sWS, sWS + 3, sOx, j * 1024, self.LF) for j in range(4)]
                r += ["s_add_u32 s%d, s%d, 0x4000" % (sOx, sOx)]
            return [(x, ("X", s)) for x in r]
        groups = o.get("groups", [[0, 1], [2], [3], [4], [5], [6]])
        hold = o.get("hold", [5])
        seq = [(s, a) for s in range(14) for a in range(14)] + [(s, 2 * ft + m) for g in groups for s in (14, 15) for ft in g for m in range(2)]
        self.vm_reset()
        k("s_mov_b32 s%d, %d", sOw, 6 * 32 * 7168); k("s_mov_b32 s83, 0")
        for x, tag in xld(0): k(self.vm_note([x], tag)[0])
        k("s_add_u32 s55, s%d, 0x10000", sM0); k("s_sub_u32 s%d, s%d, %d", sOd, sDa, 14 * 16 * 2048)
        buf = {n: n % NB for n in range(196 + D)}
        def reads(n): return self.g1_rd(seq[n + D][0], seq[n + D][1], (n + D) % NB) if n + D < len(seq) else []
        def lgk(n): return min(12, 4 * min(D - 1, len(seq) - 1 - n))
        def sstep(s, vms=None):
            used = []; vq = (xld(1) if s == 0 else []) + xld(s + 2)
            if s in (3, 6, 9, 12): vq += self.g2_wdma(s // 3 - 1, running=True)
            for a in range(14):
                n = 14 * s + a; first = None
                if a == 0:
                    used.append(self.vm_need([("X", s)]))
                    k("s_waitcnt vmcnt(%d) lgkmcnt(%d)" % (used[-1] if vms is None else vms[0], lgk(n)))
                elif a == 14 - D:
                    used.append(self.vm_need([("W", s + 1)] + ([("W", 15)] if s == 13 else [])))
                    k("s_waitcnt vmcnt(%d) lgkmcnt(0)" % (used[-1] if vms is None else vms[1])); k("s_barrier")
                    for x, tag in vq: assert not x.startswith("buffer"); k(x)
                    vq = [x for j in (4, 5) for x in self.g2_wdma(j)] if s == 13 else [(x, ("W", s + 3)) for h in range(2) for x in self.g1_wdma(self.g1_slot(2 * s + h))]
                else: k("s_waitcnt lgkmcnt(%d)" % lgk(n))
                if o.get("lpf") and a == o.get("lpa", 4) and (s % 3 != 0 if o.get("lpn", 8) == 8 else s % 3 == 1) and s < 13: first = [self.lpf()]
                if o.get("ct") and s == 13 and a == 6: first = [self.code_touch("L_g1t", "L_end")]
                if o.get("ct", 0) > 1 and s == 0 and a == 7: first = [self.code_touch("L_g1m", "L_g1t")]
                nb = len([x for x in vq if x[0].startswith("buffer")])
                self.unit(self.g1_mf(s, a, buf[n]), reads(n), vq, 2 if nb > (14 - D if a < 14 - D else 14) - a or o.get("fast") else 1, first=first)
            for x, tag in vq: assert not x.startswith("buffer"); k(x)
            return used
        def loop(s0, s1):
            save = list(self.log); n0 = len(k.lines); nool = len(self.ool); vv = [sstep(s) for s in range(s0, s1)]
            del k.lines[n0:]; del self.ool[nool:]; endlog = list(self.log); self.log = save
            L = k.label("loop"); k(".p2align 6"); k(L + ":")
            for u in range(3): sstep(s0 + u, [min(v[j] for v in vv[u::3]) for j in range(2)])
            self.log = endlog
            k("s_sub_u32 s%d, s%d, 1", sIt, sIt); k("s_cmp_lg_u32 s%d, 0", sIt); k("s_cbranch_scc1 " + L)
        sstep(0)
        k("L_g1m:")
        k("s_mov_b32 s%d, 4", sIt)
        loop(1, 13)
        sstep(13)
        k("L_g1t:")
        self.mark("g1_s28")
        vq = []
        epi = []; self.late_stores = []; seen = set(); w15 = o.get("w15", 0)
        apos = o.get("apos", 20); ppos = o.get("ppos", 26); self.g2_w = 6
        nread = 196 + D; pool = [11, 12, 13, 14] if o.get("pool", 1) else []
        for i in range(28):
            n = 196 + i; s, a = seq[n]; first = []
            lg = min(12, 4 * (nread - 1 - n))
            if s not in seen: k("s_waitcnt vmcnt(%d) lgkmcnt(%d)" % (self.vm_need([("X", s)]), lg)); seen.add(s)
            elif i <= apos: k("s_waitcnt lgkmcnt(%d)" % lg)
            pool.append(buf[n - 1]); rq = []
            while pool and nread < len(seq) and len(rq) < (8 if i < 8 else 4):
                buf[nread] = pool.pop(0); rq += self.g1_rd(seq[nread][0], seq[nread][1], buf[nread]); nread += 1
            g = [g for g in groups if a // 2 in g][0]
            if (s, a) == (14, 2 * g[0]) and g != groups[0]:
                if not epi: epi += [None] * 4
                for ft in groups[groups.index(g) - 1]:
                    us = [self.g1_unit(ft, pr, self.g1_acc(ft, 1, 2 * pr), False) for pr in range(2)]
                    epi += us[1][0] + us[0][0] + us[1][1] + us[0][1] + us[1][2] + us[0][2]
                    if ft in hold: self.late_stores += [u[3] for u in us]
                    else: epi += [(u[3], "SA" if ft < self.NA else "SB") for u in us]
                if g == groups[-1]: epi += [x for t in range(4) for x in self.g2_rd(0, t)]
            if i == apos:
                assert not [x for x in epi if isinstance(x, tuple) and x[1] == "SA"] and not vq and not rq and nread == len(seq)
                first += ["s_waitcnt vmcnt(%d) lgkmcnt(0)" % self.vm_need(["SA", ("D", 5)]), "s_barrier", self.h_arrive(0)]
                vq = [x for j in range(6, 6 + o.get("wmore", 2)) for x in self.g2_wdma(j)]; self.g2_w += o.get("wmore", 2)
            if i == ppos: first += [self.w0(self.h_poll(0))]; self.log.append("P")
            self.unit(self.g1_mf(s, a, buf[n]), rq, vq, 1 if i < apos else 2, eq=epi, cap=2, first=first)
        for x, tag in vq: k(self.vm_note([x], tag)[0])
        self.mark("g1_loop")
        for x in epi: k(x)
        un = [self.g1_unit(ft, pr, self.g1_acc(ft, 1, 2 * pr), True) for ft in groups[-1] for pr in (1, 0)]
        for j in range(3):
            for u in un:
                for x in u[j]: k(x)
        self.late_stores += [u[3] for u in un]
        self.mark("g1_done")
        k("s_waitcnt vmcnt(%d)", self.vm_need(["P"]))
        k(self.h_check(0))
        k("s_barrier")
        self.mark("b4")
        self.g1_log = list(self.log)
    def g2_acc(self, t, st): return self.ACC + (t * 4 + st) * 4
    def g2_rd(self, u, t):
        off = self.g2_slot(2 * u) * 16384
        return ["ds_read_b64_tr_b16 %s, v%d offset:%d" % (vr(160 + t * 8 + 4 * kk + 2 * h, 2), (232, vG2r, 244)[off // 65536] + (t & 3), off % 65536 + h * 8192 + kk * 2048 + (t >> 2) * 1024)
                for kk in range(2) for h in range(2)]
    def g2(self, NU):
        k = self.k; o = self.opt; D = o.get("d2", 6); XS = o.get("xs2", 4); npre = o.get("npre", 2)
        def hf(u, kk, st): return (u % XS) * 32 + (kk * 4 + st) * 4
        def hld(u):
            r = []
            for b in range(2):
                so = sK + 7 if b else sOh
                if u == 14: r += ["s_add_u32 s%d, s%d, %d" % (so, so, (112 - 4 * o["bal"]) * 1024)]
                r += ["buffer_load_dwordx4 %s, v%d, s[%d:%d], s%d offen offset:%d%s" % (ar(hf(u, kk, 2 * b + st)), vG2h, sWS, sWS + 3, so, kk * 2048 + st * 256, self.LF) for kk in range(2) for st in range(2)]
                r += ["s_add_u32 s%d, s%d, 8192" % (so, so)]
            return [(x, ("H", u)) for x in r]
        def mf(u, t, sts):
            r = []
            for st in sts:
                a = self.g2_acc(t, st)
                for kk in range(2):
                    r.append("v_mfma_f32_16x16x32_bf16 %s, %s, %s, %s" % (vr(a), vr(160 + t * 8 + 4 * kk), ar(hf(u, kk, st)), "0" if u == 0 and kk == 0 else vr(a)))
            return r
        self.log = [t for t in self.g1_log if t != "P"]
        for x, tag in hld(0): k(self.vm_note([x], tag)[0])
        for x in self.vm_note(self.late_stores, "SB"): k(x)
        for t in range(4, D):
            for x in self.g2_rd(0, t): k(x)
        for x in range(4): k("v_subrev_u32 v%d, 0x10000, v%d", 232 + x, vG2r + x); k("v_add_u32 v%d, 0x10000, v%d", 244 + x, vG2r + x)
        k("v_lshrrev_b32 v230, 2, v%d", vI); k("v_and_b32 v231, 1, v0"); k("v_lshlrev_b32 v231, 4, v231"); k("v_lshlrev_b32 v231, v231, v%d", vT + 9)
        k("v_mul_u32_u24 v231, 0x3f80, v231"); k("v_cmp_eq_u32 vcc, v230, v%d", vG); k("v_cndmask_b32 v231, 0, v231, vcc")
        k("v_and_b32 v230, 2, v0"); k("v_cmp_eq_u32 vcc, 0, v230"); k("v_cndmask_b32 v226, 0, v231, vcc"); k("v_cndmask_b32 v227, v231, 0, vcc")
        k("v_mov_b64 v[224:225], 0"); k("v_mov_b64 v[228:229], 0")
        xo = self.g2_slot(2 * NU) * 16384
        k("s_lshl_b32 s%d, s%d, 13", sT, sWv); k("s_add_u32 s%d, s%d, 0x%x", sT + 1, sT, xo); k("v_add_u32 v230, s%d, v%d", sT + 1, vT + 2)
        k("s_xor_b32 s%d, s%d, 0x4000", sT, sT); k("s_add_u32 s%d, s%d, 0x%x", sT + 1, sT, xo); k("v_add_u32 v231, s%d, v%d", sT + 1, vT + 2)
        k("v_lshlrev_b32 v236, 6, v%d", vI); k("v_lshl_add_u32 v236, v%d, 4, v236", vG)
        if npre > 1:
            for x, tag in hld(1): k(self.vm_note([x], tag)[0])
        self.mark("g2_pre")
        NS = 2 * NU; grp = []
        for u in range(npre, NU):
            h = hld(u); cut = len(h) // 2
            rel = max(8 * (u - XS + 1), 32 if u >= 6 else 0, 96 if u >= 14 else 0)
            grp += [(8 * u, rel, h[:cut]), (8 * u, rel, h[cut:])]
        for j in range(self.g2_w, NS): grp.append((8 * (j // 2 - 1) + 8 - D, max(0, 8 * (j // 2 - 5) + 8 - D), self.g2_wdma(j)))
        uend = 8 * (NU - 1) - o.get("slack", 10); rho = min(2.0, 4.0 * len(grp) / uend); credit = 1.0; slack = []
        vq = []
        for u in range(NU):
            last = u == NU - 1
            for t in range(8):
                n = 8 * u + t; first = []
                lg = min(12, 4 * min(D - 1, 8 * NU - 1 - n))
                if t == 0:
                    tags = [("H", u)] + (["P"] if u in (4, 12) else [])
                    assert u < npre or self.log.count(("H", u)) == 8
                    k("s_waitcnt vmcnt(%d) lgkmcnt(%d)" % (self.vm_need(tags), lg))
                    if u == 4 or (u == 12 and NU > 14): k(self.h_check(1024 if u == 4 else 3072)); k("s_barrier")
                    if u in (0, 2, 6, 12): self.mark("g2_s%d" % (2 * u))
                    if u == 3 or (u == 11 and NU > 14):
                        first.append(self.w0(self.h_poll(1024 if u == 3 else 3072))); self.log.append("P")
                elif t == 8 - D and not last:
                    for j in (2 * u + 2, 2 * u + 3): assert self.log.count(("D", j)) == 4
                    k("s_waitcnt vmcnt(%d) lgkmcnt(0)" % self.vm_need([("D", 2 * u + 2), ("D", 2 * u + 3)] + (["SB"] if u == 1 else []))); k("s_barrier")
                    if u == 1: first.append(self.h_arrive(1024))
                elif not last: k("s_waitcnt lgkmcnt(%d)" % lg)
                if last: break
                ok = sorted([g for g in grp if g[1] <= n], key=lambda g: g[0])
                if ok and len([x for x in vq if x[0].startswith("buffer")]) < 2: vq += ok[0][2]; grp.remove(ok[0]); slack.append(ok[0][0] - n)
                credit = min(credit + rho, 3.0); nv = min(2, int(credit)); nl = len(self.log)
                m = n + D
                self.unit(mf(u, t, (0, 1, 2, 3) if t % 2 == 0 else (3, 2, 1, 0)), self.g2_rd(m // 8, m % 8), vq, nv, first=first)
                credit -= len(self.log) - nl
        if o.get("verbose"): print("rho", rho, "slack", slack)
        assert not vq and not grp
        u = NU - 1; eq = [x for t in range(D, 8) for x in self.g2_rd(u, t)]
        def pack(tp, st):
            d = self.g2_acc(tp, st); e = self.g2_acc(tp + 4, st)
            return ["v_cvt_pk_bf16_f32 v%d, v%d, v%d" % (d, d, d + 1), "v_cvt_pk_bf16_f32 v%d, v%d, v%d" % (d + 1, d + 2, d + 3),
                    "v_cvt_pk_bf16_f32 v%d, v%d, v%d" % (d + 2, e, e + 1), "v_cvt_pk_bf16_f32 v%d, v%d, v%d" % (d + 3, e + 2, e + 3)]
        def addmf(tp):
            return ["v_mfma_f32_16x16x32_bf16 %s, %s, %s, %s" % (vr(self.g2_acc(tp + 4 * hh, st)), vr(226 - 2 * hh), vr(self.g2_acc(tp + 4, st + 2)), vr(self.g2_acc(tp + 4 * hh, st)))
                    for st in range(2) for hh in range(2)]
        def fin(tp):
            r = []
            for st in range(2): r += pack(tp, st) + [("buffer_store_dwordx4 %s, v236, s[%d:%d], s%d offen offset:%d%s" % (vr(self.g2_acc(tp, st)), sWS, sWS + 3, sK + 10 + st, tp * 1024, self.SF), "S")]
            return r
        def S(tp): return mf(u, tp, (2, 3)) + mf(u, tp + 4, (2, 3))
        def K(tp): return mf(u, tp, (0, 1)) + mf(u, tp + 4, (0, 1))
        def snd(tp): return [x for st in (2, 3) for x in pack(tp, st) + ["ds_write_b128 v230, %s offset:%d" % (vr(self.g2_acc(tp, st)), (tp * 2 + st - 2) * 1024)]]
        def rcv(tp): return ["ds_read_b128 %s, v231 offset:%d" % (vr(self.g2_acc(tp + 4, st)), (tp * 2 + st - 2) * 1024) for st in (2, 3)]
        BAR = "s_waitcnt lgkmcnt(0)\ns_barrier"
        def run(m, pre=None, flush=False):
            if flush:
                for x in eq:
                    if x is not None: k(self.vm_note([x[0]], x[1])[0] if isinstance(x, tuple) else x)
                del eq[:]
            if pre: k(pre)
            self.unit(m, [], [], 0, eq=eq, cap=2)
        run(S(0), "s_waitcnt lgkmcnt(4)"); eq += [None] * 2 + snd(0)
        run(S(1), "s_waitcnt lgkmcnt(8)"); eq += [None] * 2 + snd(1)
        run(S(2), "s_waitcnt lgkmcnt(2)"); eq += [None] * 2 + [BAR] + rcv(0) + rcv(1) + snd(2)
        run(S(3)); eq += snd(3)
        run(K(0))
        run(addmf(0), "s_waitcnt lgkmcnt(4)", flush=True); eq += [None] * 2 + [BAR] + rcv(2) + rcv(3) + fin(0)
        run(K(1) + addmf(1)); eq += [None] * 3 + fin(1)
        run(K(2))
        run(addmf(2), "s_waitcnt lgkmcnt(0)"); eq += [None] * 4 + fin(2)
        run(K(3) + addmf(3))
        self.mark("g2_loop")
        for x in eq + fin(3):
            if x is not None: k(x[0] if isinstance(x, tuple) else x)
    def final(self):
        k = self.k
        k("s_lshl_b32 s%d, s%d, 20", sT, sWv); k("s_lshl_b32 s%d, s%d, 11", sT + 1, sN2); k("s_add_u32 s%d, s%d, s%d", sT, sT, sT + 1)
        k("s_add_u32 s%d, s%d, 0x80000", sT + 1, sT)
        n = 0
        for X in (self.XB, self.XC):
            for j in range(2):
                for q in range(2):
                    k("s_waitcnt vmcnt(%d)", 7 - n + (2 * (n - 4) if n > 4 else 0)); n += 1
                    for r in (self.LO[2 * j], self.LO[2 * j + 1]):
                        for c in range(2):
                            x = X + 8 * q + 2 * self.LO[r] + c; d = 64 + (q * 2 + c) * 8 + r
                            k("v_lshlrev_b32 v%d, 16, v%d", vT, x); k("v_and_b32 v%d, 0xffff0000, v%d", x, x)
                            k("v_add_f32 v%d, v%d, v%d", d, d, vT); k("v_add_f32 v%d, v%d, v%d", d + 4, d + 4, x)
                            if X == self.XC: k("v_cvt_pk_bf16_f32 v%d, v%d, v%d", x, d, d + 4)
                        if X == self.XC: k("buffer_store_dwordx2 %s, v%d, s[%d:%d], s%d offen offset:%d%s", vr(X + 8 * q + 2 * self.LO[r], 2), self.vP1x, sOUT, sOUT + 3, sT + q, r * 128, self.opt.get("ofl", ""))
    def flag(self, s, off, sgrp=None):
        k = self.k
        k("s_add_u32 s%d, s%d, 0x%x", s, sFo, off)
        if sgrp is not None: k("s_lshl_b32 s%d, s%d, 11", sgrp, sgrp); k("s_add_u32 s%d, s%d, s%d", s, s, sgrp)
    def build(self):
        k = self.k; o = self.opt
        stop = o.get("stop")
        def stopat(n):
            if stop == n: k("s_branch L_fin")
        S1, R1 = o.get("b1", (16, 16)); S3, R3 = o.get("b3", (2, 4)); S5, R5 = 1, o.get("r5", 2)
        gp = o.get("gp", {"2s": [0, 1, 2, 3], "3s": [4, 5]})
        self.prologue()
        k("L_layer:")
        self.p1_addr(); self.p1_pre()
        k("s_cmp_lg_u32 s%d, 0", sLay); k("s_cbranch_scc1 L_p1b")
        k("s_waitcnt vmcnt(%d)", 1 + (o.get("wtouch", 1) == 0) + self.npf0)
        L = k.label("rep")
        k("s_cmp_ge_u32 s%d, 4", sIt); k("s_cbranch_scc1 " + L)
        k("s_barrier")
        k("s_cmp_lg_u32 s%d, 0", sWv); k("s_cbranch_scc1 " + L)
        k("s_lshl_b32 s%d, s%d, 6", sT, sIt)
        k("v_mov_b32 v%d, 1", vT + 1); k("v_lshl_add_u32 v%d, v0, 2, s%d", vT, sT)
        setexec(k, 16)
        k("global_store_dword v%d, v%d, s[76:77] sc1", vT, vT + 1)
        setexec(k, 64)
        k(L + ":")
        if o.get("wtouch", 1) == 1: self.w_touch()
        self.pf(1)
        self.mark("p1_loaded")
        self.p1_a(self.XA, True)
        k("s_branch L_p1")
        k("L_last:")
        self.p1_addr()
        for l in range(4):
            for r in range(4):
                k("v_lshlrev_b32 v%d, 16, v%d", 64 + 8 * l + r, self.XA + 4 * l + self.RO[r]); k("v_and_b32 v%d, 0xffff0000, v%d", 64 + 8 * l + 4 + r, self.XA + 4 * l + self.RO[r])
        k("s_branch L_p1c")
        k("L_p1b:")
        self.p1_a(self.XA, True, swap=False)
        k("L_p1c:")
        self.part_addr()
        if o.get("g5"):
            self.flag(sT, FL_B5 - FL_LSTRIDE & 0xffffffff); k("s_and_b32 s%d, s2, %d", sT + 1, R1 - 1)
            self.watch(sT, S1, sT + 1, 256 // S1)
            k("s_lshr_b32 s%d, s2, %d", sT + 1, (256 // S1).bit_length() - 1)
            self.arrive(sT, S1, R1, sT + 1)
        else:
            k("s_lshr_b32 s%d, s%d, 4", sT + 1, sN2); self.flag(sT, FL_B5 - FL_LSTRIDE & 0xffffffff, sT + 1)
            k("s_and_b32 s%d, s%d, %d", sT + 1, sN2, R5 - 1)
            self.watch(sT, S5, sT + 1, 16 // S5)
            k("s_mov_b32 s%d, s%d", sT + 1, sMT2); self.flag(sT, FL_B5 - FL_LSTRIDE & 0xffffffff, sT + 1)
            self.arrive(sT, S5, R5, None)
        self.mark("a5")
        self.wait()
        self.mark("b5")
        self.p1_loads(1); self.p1_loads(2)
        k("s_cmp_eq_u32 s%d, 2", sLay); k("s_cbranch_scc1 L_final")
        k("s_waitcnt vmcnt(4)")
        self.p1_a(self.XB, False)
        k("s_waitcnt vmcnt(0)")
        self.mark("p1_ld2")
        self.p1_a(self.XC, False)
        k("L_p1:")
        self.p1()
        self.mark("p1_done")
        L = k.label("clr"); LP = k.label("clrp"); L1 = k.label("clr1")
        k("s_or_b32 s%d, s%d, s%d", sIt, sLay, sWv); k("s_cmp_lg_u32 s%d, 0", sIt); k("s_cbranch_scc1 " + L1)
        k("v_lshlrev_b32 v%d, 2, v0", self.vP + 1)
        k("global_load_dword v%d, v%d, s[76:77] sc1", self.vP, self.vP + 1)
        k(L1 + ":")
        self.p2_pre()
        k("s_cmp_lg_u32 s%d, 0", sIt); k("s_cbranch_scc1 " + L)
        k(LP + ":")
        k("s_waitcnt vmcnt(0)")
        k("v_cmp_ne_u32 vcc, 1, v%d", self.vP); k("s_cbranch_vccz " + L)
        k("v_lshlrev_b32 v%d, 2, v0", self.vP + 1)
        k("global_load_dword v%d, v%d, s[76:77] sc1", self.vP, self.vP + 1)
        k("s_add_u32 s%d, s%d, 1", sIt, sIt); k("s_cmp_lt_u32 s%d, 0x40000", sIt); k("s_cbranch_scc1 " + LP)
        k(L + ":")
        self.flag(sT, FL_B1); k("s_and_b32 s%d, s2, %d", sT + 1, R1 - 1)
        self.watch(sT, S1, sT + 1, 256 // S1)
        k("s_lshr_b32 s%d, s2, %d", sT + 1, (256 // S1).bit_length() - 1)
        self.arrive(sT, S1, R1, sT + 1)
        self.mark("a1")
        self.poll()
        L = k.label("once"); L2 = k.label("nsp"); L3 = k.label("both")
        k("s_cmp_lg_u32 s%d, 0", sLay); k("s_cbranch_scc1 " + L)
        self.w_loads(False)
        k("s_cmp_ge_u32 s2, 8"); k("s_cbranch_scc1 " + L2)
        self.w_loads(True)
        k(L2 + ":")
        self.g_addr()
        self.x_sum(True)
        k("s_cmp_eq_u32 s%d, 0", sWv); k("s_cbranch_scc1 " + L3)
        k("s_waitcnt vmcnt(0)")
        k("s_branch " + L3)
        k(L + ":")
        self.x_sum(False)
        k(L3 + ":")
        self.g1_prefetch(gp.get("1s"), True)
        self.pf("1s")
        self.wait()
        self.mark("b1")
        self.p2()
        self.mark("p2_done")
        self.p3_pre()
        self.flag(sT, FL_B2); k("s_and_b32 s%d, s2, %d", sT + 1, R1 - 1)
        self.watch(sT, S1, sT + 1, 256 // S1)
        k("s_lshr_b32 s%d, s2, %d", sT + 1, (256 // S1).bit_length() - 1)
        self.arrive(sT, S1, R1, sT + 1)
        self.mark("a2")
        self.g1_prefetch(gp.get("2s"), True)
        self.pf("2s")
        L = k.label("once")
        k("s_cmp_lg_u32 s%d, 0", sLay); k("s_cbranch_scc1 " + L)
        self.consts(True)
        if o.get("lpf"): self.lpf_setup()
        if o.get("otouch"):
            L2 = k.label("ot"); k("s_cmp_lg_u32 s%d, 3", sWv); k("s_cbranch_scc1 " + L2)
            k("v_lshlrev_b32 v%d, 19, v0", vT); k("s_lshl_b32 s%d, s%d, 11", sT, sN2)
            k("buffer_load_dword a255, v%d, s[%d:%d], s%d offen", vT, sOUT, sOUT + 3, sT)
            k(L2 + ":")
        k(L + ":")
        self.wait()
        self.mark("b2")
        self.p3(lambda: self.pf(3))
        self.mark("p3_done")
        self.x1_park()
        self.g1_pre()
        k("s_mov_b32 s%d, s%d", sT + 1, sMT); self.flag(sT, FL_B3, sT + 1); k("s_and_b32 s%d, s%d, %d", sT + 1, sNT, R3 - 1)
        self.watch(sT, S3, sT + 1, 32 // S3)
        k("s_lshr_b32 s%d, s%d, 5", sT + 1, sN2); self.flag(sT, FL_B3, sT + 1); k("s_and_b32 s%d, s%d, %d", sT + 1, sN2, S3 - 1)
        self.arrive(sT, S3, R3, sT + 1)
        self.mark("a3")
        self.poll()
        self.g1_prefetch(gp.get("3s"), True)
        self.pf("3s")
        self.wait()
        self.mark("b3")
        self.g1()
        if o.get("bal"):
            k("s_cmp_lg_u32 s%d, 0", sKH); k("s_cbranch_scc1 L_g2b")
            nm = self.nmark; self.g2(14 + o["bal"] // 2)
            k("s_branch L_g2e"); k("L_g2b:")
            self.nmark = nm
            if o.get("stamp"): del self.marknames[nm:]
            self.g2(14 - o["bal"] // 2)
            k("L_g2e:")
        else: self.g2(14)
        self.mark("g2_done")
        self.x1_read()
        k("s_add_u32 s%d, s%d, 0x%x", sXS, sWS, PART_OFF); k("s_addc_u32 s%d, s%d, 0", sXS + 1, sWS + 1); k("s_mov_b32 s%d, 0x800000", sXS + 2)
        k("s_add_u32 s%d, s%d, 0x%x", sWS, sWS, LSTRIDE); k("s_addc_u32 s%d, s%d, 0", sWS + 1, sWS + 1)
        k("s_add_u32 s%d, s%d, 0x%x", sFo, sFo, FL_LSTRIDE)
        k("s_cmp_eq_u32 s%d, 0", sLay); k("s_cselect_b32 s%d, 1, 2", sLay)
        k("s_cbranch_scc0 L_last")
        k("s_branch L_layer")
        for x in self.ool: k(x)
        k("L_final:")
        self.final()
        k("L_fin:")
        if o.get("padat"): k("s_waitcnt vmcnt(0)"); self.mark("fin")
        if o.get("stamp"):
            k("s_waitcnt vmcnt(0)")
            k("s_mov_b32 s%d, 1", sLay); self.nmark = 31; self.mark("end")
            srd(k, sTM, 78, 1 << 20, 240 << 20)
            k("s_lshl_b32 s%d, s2, 10", sT); k("s_lshl_b32 s%d, s%d, 8", sT + 1, sWv); k("s_add_u32 s%d, s%d, s%d", sT, sT, sT + 1)
            k("v_lshlrev_b32 v%d, 2, v0", vT)
            k("buffer_store_dword v31, v%d, s[%d:%d], s%d offen", vT, sTM, sTM + 3, sT)
        k("L_end:")
        k("s_endpgm")
        k.lines = hazard.fix(k.lines)
        return k

HEADER = open("interleave_layers__spectral_gfnet__glu_gated_bilinear__prompt.s.ref").read().split("; Override")[0]
DEFAULTS = {"lf": "", "polls": 0, "wtouch": 0,
            "pf": {2: [("g", 0), ("u", 0)]}, "lpf": (3, 8), "groups": [[0], [1], [2], [3], [4], [5], [6]], "apos": 19, "wp1": 2, "map2": 0, "ilv": 1, "wmore": 4, "slack": 6, "npre": 1, "b1": (8, 32), "b3": (2, 8), "r5": 4, "ct": 1}
def generate(path, opt):
    opt = dict(DEFAULTS, **opt)
    g = Gen(opt); k = g.build()
    o = [HEADER.rstrip("\n")]
    if opt.get("stamp"): o.append("; marks " + repr(g.marknames))
    o.append("; @launch grid=(256,1,1) block=(256,1,1) lds=%d" % LDS_BYTES)
    o += ['.amdgcn_target "amdgcn-amd-amdhsa--gfx950"', ".text", k.text(), '.section .rodata,"a"', k.desc()]
    open(path, "w").write("\n".join(o))
if __name__ == "__main__":
    generate(sys.argv[1], eval(sys.argv[2]) if len(sys.argv) > 2 else {})
```

```python
import sys, math
sys.path.insert(0, "tools")
from asmgen import *
import hazard
KNAME = "interleave_layers__spectral_gfnet__glu_gated_bilinear__prompt_kernel"
U_OFF, V_OFF, XL_OFF, PART_OFF, H_OFF, ST_OFF = 0x0, 0x400000, 0x800000, 0xC00000, 0x1400000, 0x2200000
LSTRIDE = 0x2400000
FL_OFF = 2 * LSTRIDE
FL_B1, FL_B2, FL_B3, FL_B4, FL_B5, FL_LSTRIDE = 0, 0x8000, 0x10000, 0x14000, 0x1C000, 0x24000
L_G1, L_G2 = 0, 0x10000
L_P1, L_P2, L_P3A, L_P3B = 0x10000, 0x1C000, 0x18000, 0x10000
L_W2 = L_P3A
L_W = 0x20000
LDS_BYTES = 0x28000
sWS, sXS, sG, sU, sD, sOUT, sFL, sTM = 4, 8, 12, 16, 20, 24, 28, 32
sN2, sWv, sLay = 40, 41, 42
sMT, sNT, sMT2, sNT2, sKH = 43, 44, 45, 46, 47
sFo = 48
sOx, sOw, sOh, sOd, sM0, sIt = 49, 50, 51, 52, 53, 54
sPo = 39
sDa, sDb, sOe = 36, 37, 38
sT = 56
sK = 84
vL, vI, vG = 0, 1, 2
vG1r, vG1x, vG1w = 3, 4, 5
vG2r, vG2w, vG2h = 7, 11, 15
vL128 = 16
vT = 17
aF, aGm, aM1, aM1H, aC, aCH = 176, 184, 192, 208, 224, 228
aX1, aW = 152, 232
EPS = 1e-5
import struct
def fl(x): return "0x%x" % struct.unpack("<I", struct.pack("<f", x))[0]
def vr(b, n=4): return "v[%d:%d]" % (b, b + n - 1)
def ar(b, n=4): return "a[%d:%d]" % (b, b + n - 1)
def setexec(k, n):
    if n == 64: k("s_mov_b64 exec, -1"); return
    m = (1 << n) - 1
    k("s_mov_b32 exec_lo, 0x%x" % (m & 0xffffffff)); k("s_mov_b32 exec_hi, 0x%x" % (m >> 32))

class Gen:
    def __init__(self, opt):
        self.opt = opt
        self.k = Kern(KNAME, vgprs=256, agprs=256, sgprs=102)
        self.nmark = 0; self.ool = []
        self.SF = " sc1"
        self.LF = opt.get("lf", " sc1")
    def mark(self, name):
        pad = self.opt.get("padat")
        if pad:
            k = self.k
            if name == "start": k("s_memrealtime s[100:101]"); k("s_waitcnt lgkmcnt(0)")
            if name == pad[0]:
                L = k.label("pad"); LX = k.label("padx")
                k("s_cmp_lg_u32 s%d, %d", sLay, pad[1]); k("s_cbranch_scc1 " + LX)
                k(L + ":"); k("s_memrealtime s[96:97]"); k("s_waitcnt lgkmcnt(0)")
                k("s_sub_u32 s96, s96, s100"); k("s_cmp_lt_u32 s96, %d", int(pad[2] * 100)); k("s_cbranch_scc1 " + L)
                k(LX + ":")
        if not self.opt.get("stamp"): return
        k = self.k; i = self.nmark; self.nmark += 1
        self.marknames = getattr(self, "marknames", []) + [name]
        k("s_memtime s[96:97]" if self.opt.get("cyc") else "s_memrealtime s[96:97]"); k("s_waitcnt lgkmcnt(0)")
        k("s_lshl_b32 s98, s%d, 5", sLay); k("s_add_u32 s98, s98, %d", i); k("s_mov_b32 s99, m0"); k("s_and_b32 m0, s98, 63")
        k("s_nop 0"); k("v_writelane_b32 v31, s96, m0"); k("s_mov_b32 m0, s99")
    def cs(self, dc, ds, vint, scale, add=None):
        k = self.k; t = vT + 13
        k("v_cvt_f32_u32 v%d, v%d", t, vint)
        k("v_mul_f32 v%d, %s, v%d", t, fl(scale), t)
        if add is not None: k("v_add_f32 v%d, v%d, v%d", t, add, t)
        k("v_fract_f32 v%d, v%d", t, t)
        k("v_cos_f32 v%d, v%d", dc, t); k("v_sin_f32 v%d, v%d", ds, t)
    def pack_to_a(self, a, lo, hi, neglo=False, neghi=False):
        k = self.k; t = vT + 12
        k("v_cvt_pk_bf16_f32 v%d, %sv%d, %sv%d", t, "-" if neglo else "", lo, "-" if neghi else "", hi)
        k("v_accvgpr_write_b32 a%d, v%d", a, t)
    vP, vQ = 13, 28
    def arrive(self, sbase, S, R, sshard, younger=0):
        k = self.k
        if sshard is not None:
            k("s_lshl_b32 s%d, s%d, 7", sT + 3, sshard); k("s_add_u32 s%d, s%d, s%d", sT + 3, sT + 3, sbase)
        else: k("s_mov_b32 s%d, s%d", sT + 3, sbase)
        k("v_mul_u32_u24 v%d, %d, v%d", vT, S, vL128); k("v_mov_b32 v%d, 1", vT + 1)
        k("s_waitcnt vmcnt(%d)", younger); k("s_barrier")
        L = k.label("arr")
        k("s_cmp_lg_u32 s%d, 0", sWv); k("s_cbranch_scc1 " + L)
        setexec(k, R)
        k("buffer_atomic_add v%d, v%d, s[%d:%d], s%d offen sc1", vT + 1, vT, sFL, sFL + 3, sT + 3)
        setexec(k, 64)
        k(L + ":")
    def watch(self, sbase, S, srep, count):
        k = self.k
        if srep is not None:
            k("s_mul_i32 s%d, s%d, %d", sPo, srep, S * 128); k("s_add_u32 s%d, s%d, s%d", sPo, sPo, sbase)
        else: k("s_mov_b32 s%d, s%d", sPo, sbase)
        self.wS, self.wcount, self.npoll = S, count, 0
    def poll(self, level=1):
        if level > self.opt.get("polls", 2): return
        k = self.k; L = k.label("pl"); v = self.vP + self.npoll; self.npoll += 1
        k("s_cmp_lg_u32 s%d, 0", sWv); k("s_cbranch_scc1 " + L)
        k("v_mov_b32 v%d, 0", v); setexec(k, self.wS)
        k("buffer_atomic_add v%d, v%d, s[%d:%d], s%d offen sc0 sc1", v, vL128, sFL, sFL + 3, sPo)
        setexec(k, 64)
        k(L + ":")
    def wait(self):
        k = self.k; S, count, n = self.wS, self.wcount, self.npoll
        L = k.label("wdone"); LP = k.label("poll"); LX = k.label("pollx")
        k("s_cmp_lg_u32 s%d, 0", sWv); k("s_cbranch_scc1 " + L)
        k("s_mov_b32 s%d, 0", sT + 2)
        setexec(k, S)
        k(LP + ":")
        k("v_mov_b32 v%d, 0", self.vQ)
        k("buffer_atomic_add v%d, v%d, s[%d:%d], s%d offen sc0 sc1", self.vQ, vL128, sFL, sFL + 3, sPo)
        for i in range(n):
            k("s_waitcnt vmcnt(%d)", n - i)
            k("v_cmp_ne_u32 vcc, %d, v%d", count, self.vP + i)
            k("s_cbranch_vccz " + LX)
        k("s_add_u32 s%d, s%d, 1", sT + 2, sT + 2); k("s_cmp_ge_u32 s%d, 0x40000", sT + 2); k("s_cbranch_scc1 " + LX)
        k("s_waitcnt vmcnt(0)")
        k("v_cmp_ne_u32 vcc, %d, v%d", count, self.vQ)
        k("s_cbranch_vccnz " + LP)
        k(LX + ":")
        setexec(k, 64)
        k(L + ":")
        k("s_barrier")
    def reduce4(self, p, q, r, s, c2, veps=None):
        k = self.k
        k("v_permlane16_swap_b32 v%d, v%d", p, q); k("v_permlane16_swap_b32 v%d, v%d", r, s)
        k("v_add_f32 v%d, v%d, v%d", p, p, q); k("v_add_f32 v%d, v%d, v%d", r, r, s)
        k("v_permlane32_swap_b32 v%d, v%d", p, r)
        k("v_add_f32 v%d, v%d, v%d", r, p, r)
        for sh in (8, 4, 2, 1): k("v_add_f32_dpp v%d, v%d, v%d row_ror:%d row_mask:0xf bank_mask:0xf", r, r, r, sh)
        k("v_mov_b32 v%d, v%d", p, r)
        k("v_permlane32_swap_b32 v%d, v%d", p, r)
        k("v_mul_f32 v%d, %s, v%d", p, fl(1.0 / 1024), p)
        k("v_mul_f32 v%d, %s, v%d", r, fl(c2), r)
        k("v_fma_f32 v%d, -v%d, v%d, v%d", r, p, p, r)
        k("v_max_f32 v%d, 0, v%d", r, r)
        k("v_add_f32 v%d, %s, v%d", r, fl(EPS) if veps is None else "v%d" % veps, r)
    def sums(self, base, t):
        k = self.k
        for j in range(8):
            for q in range(2):
                b = base + 16 * q + 2 * j
                if j == 0: k("v_pk_mul_f32 %s, %s, %s", vr(t + 4 + 2 * q, 2), vr(b, 2), vr(b, 2))
                else: k("v_pk_fma_f32 %s, %s, %s, %s", vr(t + 4 + 2 * q, 2), vr(b, 2), vr(b, 2), vr(t + 4 + 2 * q, 2))
                if j == 1: k("v_pk_add_f32 %s, %s, %s", vr(t + 2 * q, 2), vr(b - 2, 2), vr(b, 2))
                elif j > 1: k("v_pk_add_f32 %s, %s, %s", vr(t + 2 * q, 2), vr(t + 2 * q, 2), vr(b, 2))
        for j in range(4): k("v_add_f32 v%d, v%d, v%d", t + 2 * j, t + 2 * j, t + 2 * j + 1)
    def twiddle(self, re, im, tc, ts, tmp, out, conj=False, e=None):
        k = self.k
        for h in (0, 2):
            if e is None:
                k("v_pk_mul_f32 %s, %s, %s", vr(tmp + h, 2), vr(re + h, 2), vr(tc + h, 2))
                k("v_pk_mul_f32 %s, %s, %s", vr(tmp + 4 + h, 2), vr(im + h, 2), vr(tc + h, 2))
            else:
                k("v_pk_fma_f32 %s, %s, %s, %s op_sel_hi:[1,1,0]", vr(tmp + h, 2), vr(re + h, 2), vr(tc + h, 2), vr(e, 2))
                k("v_pk_fma_f32 %s, %s, %s, %s op_sel_hi:[1,1,0]", vr(tmp + 4 + h, 2), vr(im + h, 2), vr(tc + h, 2), vr(e, 2))
        neg = " neg_lo:[1,0,0] neg_hi:[1,0,0]"
        for h in (0, 2):
            k("v_pk_fma_f32 %s, %s, %s, %s%s", vr(tmp + h, 2), vr(im + h, 2), vr(ts + h, 2), vr(tmp + h, 2), neg if conj else "")
            k("v_pk_fma_f32 %s, %s, %s, %s%s", vr(tmp + 4 + h, 2), vr(re + h, 2), vr(ts + h, 2), vr(tmp + 4 + h, 2), "" if conj else neg)
        return self.cvts(out, tmp)
    def cvts(self, out, tmp): return ["v_cvt_pk_bf16_f32 v%d, v%d, v%d" % (out + r, tmp + r, tmp + 4 + r) for r in range(4)]
    def ms(self, d, a, b, c="0", kk=32):
        return "v_mfma_f32_16x16x%d_bf16 %s, %s, %s, %s" % (kk, vr(d), a, b, c if isinstance(c, str) else vr(c))
    def mf(self, d, a, b, c="0", kk=32): self.k(self.ms(d, a, b, c, kk))
    def mix(self, mfs, other, lead=0, skip=0):
        k = self.k; other = list(other)
        for x in other[:lead]: k(x)
        del other[:lead]
        for i, m in enumerate(mfs):
            k(m)
            if i >= skip:
                for x in other[:2]:
                    if x: k(x)
                del other[:2]
        for x in other:
            if x: k(x)

    def prologue(self):
        k = self.k; o = self.opt
        k("s_cmp_ge_u32 s2, 256"); k("s_cbranch_scc1 L_end")
        k("s_load_dwordx4 s[60:63], s[0:1], 0")
        k("s_load_dwordx2 s[64:65], s[0:1], 16")
        k("s_load_dwordx8 s[68:75], s[0:1], 32")
        k("s_load_dwordx4 s[76:79], s[0:1], 64")
        if not o.get("nocodepf"):
            k("s_getpc_b64 s[66:67]")
            k("L_pc:")
            k("v_lshlrev_b32 v%d, 7, v0", vT)
            k("v_min_u32 v%d, (L_end-L_pc), v%d", vT, vT)
            k("global_load_dword a254, v%d, s[66:67]", vT)
            k("v_add_u32 v%d, 0x8000, v%d", vT, vT); k("v_min_u32 v%d, (L_end-L_pc), v%d", vT, vT)
            k("global_load_dword a254, v%d, s[66:67]", vT)
        k("v_lshrrev_b32 v%d, 6, v0", vT); k("v_and_b32 v0, 63, v0")
        k("v_readfirstlane_b32 s%d, v%d", sWv, vT)
        k("v_and_b32 v%d, 15, v0", vI); k("v_lshrrev_b32 v%d, 4, v0", vG)
        k("v_lshlrev_b32 v%d, 7, v0", vL128)
        k("s_and_b32 s%d, s2, 7", sT); k("s_lshr_b32 s%d, s2, 3", sT + 1)
        k("s_lshl_b32 s%d, s%d, 5", sN2, sT); k("s_add_u32 s%d, s%d, s%d", sN2, sN2, sT + 1)
        k("s_and_b32 s%d, s%d, 1", sKH, sT); k("s_lshr_b32 s%d, s%d, 1", sT, sT)
        k("s_lshr_b32 s%d, s%d, 1", sT + 2, sT); k("s_lshl_b32 s%d, s%d, 2", sT + 2, sT + 2)
        k("s_and_b32 s%d, s%d, 3", sT + 3, sT + 1); k("s_add_u32 s%d, s%d, s%d", sMT, sT + 3, sT + 2)
        k("s_lshr_b32 s%d, s%d, 2", sT + 1, sT + 1)
        k("s_and_b32 s%d, s%d, 1", sT + 2, sT); k("s_lshl_b32 s%d, s%d, 3", sT + 2, sT + 2); k("s_lshl_b32 s%d, s%d, 4", sNT, sKH)
        k("s_add_u32 s%d, s%d, s%d", sNT, sNT, sT + 2); k("s_add_u32 s%d, s%d, s%d", sNT, sNT, sT + 1)
        if o.get("map2", 0) == 0:
            k("s_lshl_b32 s%d, s%d, 2", sMT2, sT); k("s_add_u32 s%d, s%d, s%d", sMT2, sMT2, sT + 3); k("s_mov_b32 s%d, s%d", sNT2, sT + 1)
        else:
            k("s_and_b32 s%d, s%d, 1", sT + 3, sT + 1); k("s_lshl_b32 s%d, s%d, 1", sMT2, sMT); k("s_add_u32 s%d, s%d, s%d", sMT2, sMT2, sT + 3)
            k("s_lshr_b32 s%d, s%d, 1", sT + 2, sT + 2); k("s_lshr_b32 s%d, s%d, 1", sNT2, sT + 1); k("s_add_u32 s%d, s%d, s%d", sNT2, sNT2, sT + 2)
        k("s_mov_b32 s%d, 0", sLay); k("s_mov_b32 s%d, 0", sFo)
        k("s_lshl_b32 s%d, s%d, 12", sM0, sWv)
        if o.get("stamp"): k("v_mov_b32 v31, 0")
        self.p1_addr()
        k("v_lshlrev_b32 v%d, 4, v0", vT); k("v_mov_b64 v[20:21], 0"); k("v_mov_b64 v[22:23], 0")
        k("s_waitcnt lgkmcnt(0)")
        srd(k, sXS, 60, 2048 * 2048)
        srd(k, sFL, 78, 2 * FL_LSTRIDE, FL_OFF)
        self.mark("start")
        L = k.label("nz")
        k("s_sub_u32 s%d, s2, 8", sIt); k("s_cmp_ge_u32 s%d, 4", sIt); k("s_cbranch_scc1 " + L)
        k("s_lshl_b32 s%d, s%d, 13", sT, sIt); k("s_lshl_b32 s%d, s%d, 11", sT + 1, sWv); k("s_add_u32 s%d, s%d, s%d", sT, sT, sT + 1)
        for j in range(2): k("buffer_store_dwordx4 v[20:23], v%d, s[%d:%d], s%d offen offset:%d sc1", vT, sFL, sFL + 3, sT, j * 1024)
        k(L + ":")
        self.p1_loads(0, o.get("xfl", ""))
        srd(k, sWS, 78, LSTRIDE)
        srd(k, sG, 68, 1024 * 7168)
        k("s_sub_u32 s%d, s70, 2048", sU); k("s_subb_u32 s%d, s71, 0", sU + 1)
        k("s_mov_b32 s%d, 0x%x", sU + 2, 1024 * 7168 + 2048); k("s_mov_b32 s%d, 0x20000", sU + 3)
        k("s_sub_u32 s%d, s72, 3072", sD); k("s_subb_u32 s%d, s73, 0", sD + 1)
        k("s_mov_b32 s%d, 0x%x", sD + 2, 3584 * 2048 + 3072); k("s_mov_b32 s%d, 0x20000", sD + 3)
        srd(k, sOUT, 74, 2048 * 2048)
        k("s_lshl_b32 s%d, s2, 10", sT); k("s_lshl_b32 s%d, s%d, 8", sT + 1, sWv); k("s_add_u32 s%d, s%d, s%d", sT, sT, sT + 1); k("s_add_u32 s%d, s%d, 0x8000", sT, sT)
        setexec(k, 16)
        k("buffer_store_dwordx4 v[20:23], v%d, s[%d:%d], s%d offen sc1", vT, sFL, sFL + 3, sT)
        setexec(k, 64)
        self.w_prep()
        self.npf0 = self.pf(0)
        self.consts(False)
        k("v_mov_b32 v254, 0")
    def w_prep(self):
        k = self.k
        k("s_lshr_b32 s%d, s%d, 5", sT, sN2); k("s_and_b32 s%d, s%d, 31", sT + 1, sN2)
        k("s_lshl_b32 s80, s%d, 4", sT + 1); k("s_sub_u32 s%d, 1010, s80", sT + 3)
        k("s_cmp_ge_u32 s%d, 2", sWv); k("s_cselect_b32 s80, s%d, s80", sT + 3); k("s_cselect_b32 s%d, -1, 0", sT + 3); k("s_cselect_b32 s%d, 508, 0", sT + 2)
        k("s_bitcmp1_b32 s%d, 0", sWv); k("s_cselect_b32 s%d, s64, s62", sTM); k("s_cselect_b32 s%d, s65, s63", sTM + 1)
        k("s_mov_b32 s%d, 0x%x", sTM + 2, 2048 * 1026); k("s_mov_b32 s%d, 0x20000", sTM + 3)
        def row(d, src):
            k("v_xor_b32 v%d, s%d, v%d", d, sT + 3, src); k("v_subrev_u32 v%d, s%d, v%d", d, sT + 3, d)
            k("v_and_b32 v%d, 2047, v%d", d, d); k("v_mul_u32_u24 v%d, 1026, v%d", d, d)
        k("s_lshl_b32 s81, s%d, 6", sT + 1); k("s_add_u32 s81, s81, s%d", sT)
        k("v_and_b32 v%d, 56, v0", vT); k("v_add_u32 v%d, s81, v%d", vT, vT); row(vT, vT)
        k("v_and_b32 v%d, 7, v0", vT + 1); k("v_lshlrev_b32 v%d, 7, v%d", vT + 1, vT + 1); k("v_min_u32 v%d, 514, v%d", vT + 1, vT + 1)
        k("v_add3_u32 v214, v%d, v%d, s%d", vT, vT + 1, sT + 2)
        if self.opt.get("wtouch", 1) == 0: self.w_touch()
        k("v_lshlrev_b32 v%d, 3, v%d", vT, vI); k("v_lshl_add_u32 v%d, v%d, 9, v%d", vT, vG, vT); k("v_add_u32 v%d, s%d, v%d", vT, sT, vT)
        for r in range(4):
            k("v_add_u32 v%d, %d, v%d", 208 + r, 128 * r, vT); row(208 + r, 208 + r)
        for j in range(2):
            k("s_and_b32 s%d, s%d, 2", sT, sWv); k("s_add_u32 s%d, s%d, %d", sT, sT, j); k("s_lshl_b32 s%d, s%d, 7", sT, sT)
            k("v_add_u32 v%d, s%d, v%d", 212 + j, sT, vT); k("v_mul_u32_u24 v%d, 1026, v%d", 212 + j, 212 + j); k("v_add_u32 v%d, 512, v%d", 212 + j, 212 + j)
    def w_touch(self):
        self.k("buffer_load_dword a255, v214, s[%d:%d], 0 offen%s", sTM, sTM + 3, self.opt.get("wfl", ""))
    def w_in_p1(self, rs):
        k = self.k
        rs = [r for r in rs if r < self.opt.get("wp1", 0)]
        if not rs: return
        L = k.label("wp"); k("s_cmp_lg_u32 s%d, 0", sLay); k("s_cbranch_scc1 " + L)
        self.w_loads(False, rs)
        k(L + ":")
    def w_loads(self, special, rs=None):
        k = self.k
        if rs is None: rs = range(self.opt.get("wp1", 0), 4)
        if self.opt.get("now"): return
        if special:
            k("s_lshl_b32 s%d, s%d, 9", sT, sWv)
            for j in range(2):
                k("s_add_u32 m0, s%d, 0x%x", sT, L_W2 + j * 256)
                k("buffer_load_ushort v%d, s[%d:%d], 0 offen lds", 212 + j, sTM, sTM + 3)
            return
        for r in rs:
            k("s_add_u32 m0, s%d, 0x%x", sM0, L_W + r * 1024)
            k("buffer_load_dwordx4 v%d, s[%d:%d], s80 offen lds", 208 + r, sTM, sTM + 3)
    def w_park(self):
        k = self.k; W = 152
        L = k.label("nsp")
        k("s_and_b32 s%d, s%d, 31", sT, sN2); k("s_or_b32 s%d, s%d, s%d", sT, sT, sWv)
        k("s_cmp_lg_u32 s%d, 0", sT); k("s_cbranch_scc1 " + L)
        k("v_lshlrev_b32 v%d, 4, v0", vT); k("v_add_u32 v%d, 0x%x, v%d", vT, L_W, vT)
        k("v_lshlrev_b32 v%d, 2, v0", vT + 1); k("v_add_u32 v%d, 0x%x, v%d", vT + 1, L_W2, vT + 1)
        for r in range(4):
            for m in range(2): k("ds_read_b32 v%d, v%d offset:%d", W + 4 * m + r, vT + 1, ((r & 2) + m) * 512 + (r & 1) * 256)
        k("s_waitcnt lgkmcnt(0)")
        for r in range(4):
            for m in range(2): k("ds_write_b16 v%d, v%d offset:%d", vT, W + 4 * m + r, m * 4096 + r * 1024)
        k(L + ":")
    def pf(self, window):
        k = self.k; n = 0
        todo = self.opt.get("pf", {}).get(window, [])
        if not todo: return 0
        shadow = str(window).endswith("s")
        L = k.label("pf")
        if shadow:
            k("s_sub_u32 s%d, s%d, 1", sT + 1, sWv); k("s_lshl_b32 s%d, s%d, 4", sT, sLay); k("s_add_u32 s%d, s%d, s%d", sT + 1, sT + 1, sT)
            k("s_cmp_ge_u32 s%d, 2", sT + 1); k("s_cbranch_scc1 " + L)
            k("s_lshl_b32 s%d, s2, 1", sT); k("s_add_u32 s%d, s%d, s%d", sT, sT, sT + 1); k("s_mul_i32 s%d, s%d, %d", sT, sT, 28 * 128)
            setexec(k, 28)
        else:
            k("s_lshl_b32 s%d, s2, 2", sT); k("s_add_u32 s%d, s%d, s%d", sT, sT, sWv); k("s_mul_i32 s%d, s%d, %d", sT, sT, 14 * 128)
            k("s_cmp_eq_u32 s%d, 0", sLay); k("s_cselect_b64 exec, 0x3fff, 1")
        for (m, c) in todo:
            r, bias = {"g": (sG, 0), "u": (sU, 2048), "d": (sD, 3072)}[m]
            k("s_add_u32 s%d, s%d, %d", sT + 1, sT, int(c * (7340032 // 4)) + bias)
            k("buffer_load_dword a255, v%d, s[%d:%d], s%d offen", vL128, r, r + 3, sT + 1); n += 1
        setexec(k, 64)
        k(L + ":")
        return 0 if shadow else n
    def consts(self, inv):
        k = self.k; c, s, n = vT, vT + 1, vT + 2
        for r in range(4):
            k("v_lshl_add_u32 v%d, v%d, 2, %d", n + 1, vG, r)
            k("v_mul_u32_u24 v%d, v%d, v%d", n, vI, n + 1)
            if not inv:
                self.cs(c, s, n, 1.0 / 16)
                self.pack_to_a(aF + r, c, s); self.pack_to_a(aF + 4 + r, s, c, neglo=True)
                self.pack_to_a(aGm + r, c, s, neghi=True); self.pack_to_a(aGm + 4 + r, s, c)
                k("v_lshl_add_u32 v%d, v%d, 1, v%d", n + 2, n, vI)
                self.cs(c, s, n + 2, 1.0 / 32)
                self.pack_to_a(aM1 + r, c, s); self.pack_to_a(aM1 + 4 + r, s, c, neglo=True)
                self.pack_to_a(aM1 + 8 + r, c, s, True, True); self.pack_to_a(aM1 + 12 + r, s, c, neghi=True)
            else:
                k("v_lshl_add_u32 v%d, v%d, 1, v%d", n + 2, n, n + 1)
                self.cs(c, s, n + 2, 1.0 / 32)
                self.pack_to_a(aM1H + r, c, s, neghi=True); self.pack_to_a(aM1H + 4 + r, s, c)
                self.pack_to_a(aM1H + 8 + r, c, s, neglo=True); self.pack_to_a(aM1H + 12 + r, s, c, True, True)
        k("v_and_b32 v%d, 1, v%d", n + 3, vI); k("v_cvt_f32_u32 v%d, v%d", n + 4, n + 3); k("v_mul_f32 v%d, 0x3e800000, v%d", n + 4, n + 4)
        if inv: k("v_mul_u32_u24 v%d, 0x8000, v%d", n + 3, n + 3); k("v_lshl_or_b32 v%d, v%d, 16, v%d", n + 3, n + 3, n + 3)
        k("v_lshrrev_b32 v%d, 1, v%d", n + 5, vI)
        for q in range(2):
            k("v_lshl_add_u32 v%d, v%d, 1, %d", n + 1, vG, q)
            if not inv:
                k("v_lshlrev_b32 v%d, 8, v%d", n, n + 1); k("v_add_u32 v%d, s%d, v%d", n, sN2, n); k("v_mul_u32_u24 v%d, v%d, v%d", n, n, n + 5)
                self.cs(c, s, n, 1.0 / 2048, add=n + 4)
                self.pack_to_a(aC + q, c, s); self.pack_to_a(aC + 2 + q, c, s, neghi=True)
            else:
                k("v_lshlrev_b32 v%d, 8, v%d", n, n + 5); k("v_add_u32 v%d, s%d, v%d", n, sN2, n); k("v_mul_u32_u24 v%d, v%d, v%d", n, n, n + 1)
                self.cs(c, s, n, -1.0 / 2048, add=n + 4)
                self.pack_to_a(aCH + q, c, s)
                k("v_xor_b32 v%d, v%d, v%d", vT + 12, vT + 12, n + 3); k("v_accvgpr_write_b32 a%d, v%d", aCH + 2 + q, vT + 12)
    def g_addr(self):
        k = self.k; t = vT
        k("v_lshlrev_b32 v%d, 4, v0", t); k("v_add_u32 v%d, s%d, v%d", vG1x, sM0, t)
        k("v_lshrrev_b32 v%d, 5, v0", t); k("v_lshlrev_b32 v%d, 12, v%d", t, t)
        k("v_bfe_u32 v%d, v0, 4, 1", t + 1); k("v_mul_u32_u24 v%d, 1152, v%d", t + 1, t + 1)
        k("v_bfe_u32 v%d, v0, 2, 2", t + 2); k("v_mul_u32_u24 v%d, 224, v%d", t + 2, t + 2)
        k("v_and_b32 v%d, 3, v0", t + 3); k("v_lshlrev_b32 v%d, 3, v%d", t + 3, t + 3)
        k("v_add3_u32 v%d, v%d, v%d, v%d", t + 1, t, t + 1, t + 2); k("v_add_u32 v%d, v%d, v%d", vG1r, t + 1, t + 3)
        for j in range(2):
            k("s_lshl_b32 s%d, s%d, 3", sT, sWv); k("s_add_u32 s%d, s%d, %d", sT, sT, 4 * j)
            k("s_mul_i32 s%d, s%d, 7168", sT, sT); k("s_mul_i32 s%d, s%d, 224", sT + 1, sNT); k("s_add_u32 s%d, s%d, s%d", sT, sT, sT + 1)
            if j: k("s_sub_u32 s%d, s%d, 1024", sT, sT)
            k("v_subrev_u32 v%d, %d, v0", t + 4, 8 * j)
            k("v_mul_u32_u24 v%d, 4682, v%d", t + 5, t + 4); k("v_lshrrev_b32 v%d, 16, v%d", t + 5, t + 5)
            k("v_mul_u32_u24 v%d, 14, v%d", t + 6, t + 5); k("v_sub_u32 v%d, v%d, v%d", t + 6, t + 4, t + 6)
            k("v_mul_u32_u24 v%d, 7168, v%d", t + 5, t + 5); k("v_lshl_add_u32 v%d, v%d, 4, v%d", t + 5, t + 6, t + 5)
            k("v_add_u32 v%d, s%d, v%d", t + 5, sT, t + 5)
            k("v_cmp_gt_u32 vcc, 56, v%d", t + 4)
            k("v_mov_b32 v%d, 0x80000000", t + 6)
            k("v_cndmask_b32 v%d, v%d, v%d, vcc", vG1w + j, t + 6, t + 5)
        k("v_lshlrev_b32 v%d, 4, v%d", t + 4, vI); k("v_lshl_add_u32 v%d, v%d, 9, v%d", vG2h, vG, t + 4)
        k("v_bfe_u32 v%d, v0, 2, 3", t + 4); k("v_lshrrev_b32 v%d, 1, v%d", t + 5, t + 4)
        k("v_lshl_add_u32 v%d, v%d, 7, v%d", t + 4, t + 4, t); k("v_add_u32 v%d, v%d, v%d", t + 4, t + 4, t + 3)
        k("s_lshr_b32 s%d, s%d, 1", sT, sWv); k("s_lshl_b32 s%d, s%d, 14", sT, sT); k("s_add_u32 s%d, s%d, 0x10000", sT, sT); k("v_add_u32 v%d, s%d, v%d", t + 4, sT, t + 4)
        for x in range(4):
            k("v_xor_b32 v%d, %d, v%d", t + 6, x, t + 5); k("v_lshl_add_u32 v%d, v%d, 5, v%d", vG2r + x, t + 6, t + 4)
        k("s_lshr_b32 s%d, s%d, 1", sT, sWv); k("s_lshl_b32 s%d, s%d, 13", sT, sT)
        if self.opt.get("ilv"):
            k("s_lshr_b32 s%d, s%d, 1", sT + 1, sNT2); k("s_lshl_b32 s%d, s%d, 9", sT + 1, sT + 1); k("s_add_u32 s%d, s%d, s%d", sT, sT, sT + 1)
            k("s_and_b32 s%d, s%d, 1", sT + 1, sNT2); k("s_lshl_b32 s%d, s%d, 7", sT + 1, sT + 1); k("s_add_u32 s%d, s%d, s%d", sT, sT, sT + 1)
        else: k("s_lshl_b32 s%d, s%d, 8", sT + 1, sNT2); k("s_add_u32 s%d, s%d, s%d", sT, sT, sT + 1)
        k("v_lshrrev_b32 v%d, 5, v0", t + 4); k("v_bfe_u32 v%d, v0, 3, 2", t + 5); k("v_lshl_add_u32 v%d, v%d, 3, v%d", t + 4, t + 4, t + 5)
        k("v_lshlrev_b32 v%d, 11, v%d", t + 4, t + 4)
        k("v_bfe_u32 v%d, v0, 1, 2", t + 5); k("v_xor_b32 v%d, v%d, v%d", t + 5, t + 5, vG)
        k("v_lshl_add_u32 v%d, v%d, 5, v%d", t + 4, t + 5, t + 4)
        k("v_and_b32 v%d, 1, v0", t + 5); k("v_lshl_add_u32 v%d, v%d, 4, v%d", t + 4, t + 5, t + 4)
        k("v_add_u32 v%d, s%d, v%d", t + 4, sT, t + 4)
        for b in range(2): k("v_add_u32 v%d, 0x%x, v%d", vG2w + b, 3072 + b * (256 if self.opt.get("ilv") else 128) - b * 1024, t + 4)
        k("s_mul_i32 s%d, s%d, %d", sT, sKH, 1792 * 2048); k("s_and_b32 s%d, s%d, 1", sT + 1, sWv)
        k("s_mul_i32 s%d, s%d, %d", sDa, sT + 1, 16 * 2048); k("s_add_u32 s%d, s%d, s%d", sDa, sDa, sT)
        k("s_mul_i32 s%d, s%d, %d", sDb, sT + 1, 112 * 2048); k("s_add_u32 s%d, s%d, s%d", sDb, sDb, sT)
        if self.opt.get("dbg_lin"):
            k("s_lshl_b32 s%d, s%d, 1", sDa, sNT2); k("s_add_u32 s%d, s%d, s%d", sDa, sDa, sKH); k("s_mul_i32 s%d, s%d, %d", sDa, sDa, 28 * 16384)

    XA, XB, XC = 32, 48, 208
    vP1x = 240
    def p1_addr(self):
        k = self.k
        k("v_lshlrev_b32 v%d, 3, v%d", self.vP1x, vI); k("v_lshl_add_u32 v%d, v%d, 9, v%d", self.vP1x, vG, self.vP1x)
    def p1_loads(self, src, fl_=None):
        k = self.k; X = (self.XA, self.XB, self.XC)[src]
        if src == 0:
            k("s_lshl_b32 s%d, s%d, 20", sT, sWv); k("s_lshl_b32 s%d, s%d, 11", sT + 1, sN2); k("s_add_u32 s%d, s%d, s%d", sT, sT, sT + 1)
            for q in range(2):
                for r in range(4):
                    k("buffer_load_dwordx2 %s, v%d, s[%d:%d], s%d offen offset:%d%s", vr(X + 8 * q + 2 * self.LO[r], 2), self.vP1x, sXS, sXS + 3, sT, r * 128, fl_)
                if q == 0: k("s_add_u32 s%d, s%d, 0x80000", sT, sT)
            return
        for j in range(2):
            for q in range(2):
                k("buffer_load_dwordx4 %s, v247, s[%d:%d], s%d offen offset:%d%s", vr(X + 8 * q + 4 * j), sXS, sXS + 3, sK + 2 * (src - 1) + j, q * 64, self.LF)
    @property
    def RO(self): return (0, 1, 2, 3) if self.opt.get("ilv") else (0, 2, 1, 3)
    @property
    def LO(self): return (0, 2, 1, 3) if self.opt.get("ilv") else (0, 1, 2, 3)
    def part_addr(self):
        k = self.k
        k("v_lshrrev_b32 v247, 2, v%d", vI); k("v_lshl_add_u32 v247, v%d, 3, v247", vG); k("v_lshlrev_b32 v247, 10, v247")
        k("v_and_b32 v%d, 3, v0", vT); k("v_lshl_add_u32 v247, v%d, 4, v247", vT)
        k("s_lshr_b32 s%d, s%d, 1", sT, sN2); k("s_lshl_b32 s%d, s%d, 15", sT, sT); k("s_and_b32 s%d, s%d, 1", sT + 1, sN2); k("s_lshl_b32 s%d, s%d, 9", sT + 1, sT + 1)
        k("s_add_u32 s%d, s%d, s%d", sT, sT, sT + 1); k("s_lshl_b32 s%d, s%d, 7", sT + 1, sWv); k("s_add_u32 s%d, s%d, s%d", sK, sT, sT + 1)
        k("s_add_u32 s%d, s%d, 4096", sK + 1, sK); k("s_add_u32 s%d, s%d, 0x400000", sK + 2, sK); k("s_add_u32 s%d, s%d, 0x401000", sK + 3, sK)
    def exch_addr(self, base, a):
        k = self.k
        k("s_lshl_b32 s%d, s%d, 9", sT, sWv)
        k("v_lshlrev_b32 v%d, 12, v%d", a + 2, vG); k("v_add_u32 v%d, 0x%x, v%d", a + 2, base, a + 2)
        k("v_lshl_add_u32 v%d, v%d, 4, s%d", a + 3, vI, sT)
        k("v_add_u32 v%d, v%d, v%d", a, a + 2, a + 3)
        k("v_sub_u32 v%d, v%d, v%d", a + 1, a + 2, a + 3); k("v_add_u32 v%d, %d, v%d", a + 1, (512 - 33) * 8, a + 1)
        k("v_cmp_eq_u32 vcc, 0, v%d", a + 3)
        k("v_add_u32 v%d, %d, v%d", a + 2, (256 - 33) * 8, a + 2)
        k("v_cndmask_b32 v%d, v%d, v%d, vcc", a + 2, a + 1, a + 2)
        k("v_lshlrev_b32 v%d, 3, v%d", a + 3, vI); k("v_lshl_add_u32 v%d, v%d, 9, v%d", a + 3, vG, a + 3)
        k("s_add_u32 s%d, s%d, 0x%x", sT, sM0, base); k("v_add_u32 v%d, s%d, v%d", a + 3, sT, a + 3)
    def p1_pre(self):
        k = self.k; T1 = 96
        for c in range(2):
            for r in range(4):
                k("v_lshl_add_u32 v%d, v%d, 3, %d", vT, vG, 2 * r + c); k("v_mul_u32_u24 v%d, v%d, v%d", vT, vT, vI)
                self.cs(T1 + 8 * c + r, T1 + 8 * c + 4 + r, vT, 1.0 / 512)
        self.exch_addr(L_P1, 241)
        k("v_cmp_eq_u32 vcc, 0, v%d", vI); k("v_cndmask_b32 v245, 0, 1.0, vcc")
        k("v_lshlrev_b32 v246, 12, v%d", vG); k("v_lshl_add_u32 v246, v%d, 4, v246", vI)
    def p1_a(self, X, first, swap=True, D=64):
        k = self.k
        if swap:
            for q in range(2):
                k("v_swap_b32 v%d, v%d", X + 8 * q + 1, X + 8 * q + 4); k("v_swap_b32 v%d, v%d", X + 8 * q + 3, X + 8 * q + 6)
        for l in range(4):
            for p in range(2): self.mf(D + (l * 2 + p) * 4, vr(X + 4 * l), ar(aF + 4 * p), "0" if first else D + (l * 2 + p) * 4)
    def x1_read(self):
        k = self.k
        for j in range(16): k("v_accvgpr_read_b32 v%d, a%d", self.XA + j, aX1 + j)
        k("v_accvgpr_read_b32 v253, a%d", aX1 + 16); k("v_accvgpr_read_b32 v254, a%d", aX1 + 17)
        k("v_rcp_f32 v255, v253")
        for q in range(2): k("v_readlane_b32 s%d, v255, %d", sK + 8 + q, 16 * q)
        for q in range(2): k("v_readlane_b32 s%d, v254, %d", sK + 10 + q, 16 * q)
    def p1_join(self):
        for q in range(2):
            for j in range(8):
                self.k("v_pk_fma_f32 %s, %s, s[%d:%d], %s op_sel:[0,%d,0] op_sel_hi:[1,%d,1]", vr(64 + 16 * q + 2 * j, 2), vr(160 + 16 * q + 2 * j, 2), sK + 8, sK + 9, vr(64 + 16 * q + 2 * j, 2), q, q)
    def x1_park(self):
        k = self.k; XI, O, t = 32, 112, 176
        self.sums(XI, t)
        self.reduce4(t, t + 2, t + 4, t + 6, 1.0 / 1024)
        for q in range(2):
            for r in range(4):
                for c in range(2): k("v_accvgpr_write_b32 a%d, v%d", aX1 + 4 * (2 * q + c) + self.RO[r], O + 8 * q + 2 * r + c)
        k("v_accvgpr_write_b32 a%d, v%d", aX1 + 16, t + 4); k("v_accvgpr_write_b32 a%d, v254", aX1 + 17)
    def p1(self):
        k = self.k
        D, T1, T1s, O, B, E = 64, 96, 112, 144, 160, 192
        t = O
        self.sums(D, t)
        k("v_mul_f32 v%d, v245, v%d", t, t); k("v_mul_f32 v%d, v245, v%d", t + 2, t + 2)
        self.w_in_p1(self.opt.get("wpa", [0, 1]))
        self.reduce4(t, t + 2, t + 4, t + 6, 1.0 / (16 * 1024))
        k("v_rsq_f32 v%d, v%d", t + 4, t + 4)
        k("v_mov_b32 v252, v%d", t)
        k("v_mul_f32 v%d, %s, v%d", t, fl(-16.0), t); k("v_mul_f32 v%d, v%d, v%d", t, t, t + 4)
        for q in range(2):
            k("v_readlane_b32 s%d, v%d, %d", sK + 2 * q, t + 4, 16 * q); k("v_readlane_b32 s%d, v%d, %d", sK + 2 * q + 1, t, 16 * q)
        for q in range(2):
            for j in range(8): k("v_pk_mul_f32 %s, %s, s[%d:%d] op_sel_hi:[1,0]", vr(T1s + 16 * q + 2 * j, 2), vr(T1 + 2 * j, 2), sK + 2 * q, sK + 2 * q + 1)
            k("v_mul_f32 v%d, s%d, v245", 248 + 2 * q, sK + 2 * q + 1)
        cv = []
        for l in (0, 2, 1, 3):
            q, c = l >> 1, l & 1
            cv += self.twiddle(D + l * 8, D + l * 8 + 4, T1s + 16 * q + 8 * c, T1s + 16 * q + 8 * c + 4, B + 8 * l, O + 4 * l, e=248 + 2 * q)
        self.w_in_p1(self.opt.get("wpb", [2, 3]))
        def b(q, t_, p): return D + ((q * 2 + t_) * 2 + p) * 4
        mfs = [self.ms(b(q, 0, p), ar(aF + 4 * p), vr(O + 8 * q)) for q in range(2) for p in range(2)]
        mfs += [self.ms(b(q, 1, p), ar(aM1 + 8 + 4 * p), vr(O + 8 * q + 4), b(q, 0, p)) for q in range(2) for p in range(2)]
        mfs += [self.ms(b(q, 0, p), ar(aM1 + 4 * p), vr(O + 8 * q + 4), b(q, 0, p)) for q in range(2) for p in range(2)]
        cv += [None] * 12
        for t_ in (1, 0):
            cv += ["v_cvt_pk_bf16_f32 v%d, v%d, v%d" % (E + (t_ * 4 + r) * 2, b(0, t_, 0) + r, b(0, t_, 1) + r) for r in range(4)]
            for r in range(4):
                e = E + (t_ * 4 + r) * 2
                cv += ["v_cvt_pk_bf16_f32 v%d, v%d, v%d" % (e + 1, b(1, t_, 0) + r, b(1, t_, 1) + r), "ds_write_b64 v244, %s offset:%d" % (vr(e, 2), r * 128 + t_ * 2048)]
        self.mix(mfs, cv, lead=6)
        k("s_waitcnt lgkmcnt(0)"); k("s_barrier")
        for u in range(2):
            k("ds_read_b128 %s, v241 offset:%d", vr(O + 8 * u), u * 256)
            for e in range(2): k("ds_read_b64 %s, v%d offset:%d", vr(O + 8 * u + 4 + 2 * e, 2), 243 if (u, e) == (0, 0) else 242, (33 - 32 * u - e) * 8)
        k("s_lshl_b32 s%d, s%d, 14", sT, sN2); k("s_lshl_b32 s%d, s%d, 9", sT + 1, sWv); k("s_add_u32 s%d, s%d, s%d", sT, sT, sT + 1)
        if U_OFF: k("s_add_u32 s%d, s%d, 0x%x", sT, sT, U_OFF)
        mfs = []; cv = []
        for u in range(2):
            for e in range(4):
                w = "s_waitcnt lgkmcnt(%d)\n" % (5 - 3 * u - max(0, e - 1)) if e != 1 else ""
                mfs.append(w + self.ms(D + (u * 4 + e) * 4, ar(aC + (e & 2), 2), vr(O + 8 * u + 2 * e, 2), kk=16))
            for e in range(4):
                for p in range(2): cv.append("v_cvt_pk_bf16_f32 v%d, v%d, v%d" % (E + (u * 2 + p) * 4 + e, D + (u * 4 + e) * 4 + 2 * p, D + (u * 4 + e) * 4 + 2 * p + 1))
            for p in range(2): cv.append("buffer_store_dwordx4 %s, v246, s[%d:%d], s%d offen offset:%d%s" % (vr(E + (u * 2 + p) * 4), sWS, sWS + 3, sT, p * 2048 + u * 256, self.SF))
        self.mix(mfs, cv, skip=4)
    def p2_pre(self):
        k = self.k; T2, CO = 64, 72
        for r in range(4):
            k("v_lshl_add_u32 v%d, v%d, 2, %d", vT, vG, r); k("v_mul_u32_u24 v%d, v%d, v%d", vT, vT, vI)
            self.cs(T2 + r, T2 + 4 + r, vT, 1.0 / 256)
        k("v_lshl_add_u32 v241, v%d, 6, v%d", vG, vI)
        k("v_lshlrev_b32 v240, 14, v241")
        k("v_bfe_u32 v242, v0, 1, 2"); k("v_xor_b32 v242, s%d, v242", sWv); k("v_lshlrev_b32 v242, 4, v242")
        k("v_lshl_add_u32 v241, v241, 6, v242"); k("v_add_u32 v241, 0x%x, v241", L_P2)
        k("v_bfe_u32 v242, v0, 3, 2"); k("v_xor_b32 v242, v0, v242"); k("v_lshlrev_b32 v242, 4, v242")
        k("s_add_u32 s%d, s%d, 0x%x", sT, sM0, L_P2); k("v_add_u32 v242, s%d, v242", sT)
    def p2_coef(self):
        k = self.k; T2, CO = 64, 72; WP = 136
        L = k.label("once")
        k("s_cmp_lg_u32 s%d, 0", sLay); k("s_cbranch_scc1 " + L)
        self.w_park()
        k("s_lshl_b32 s%d, s%d, 2", sT, sWv); k("s_add_u32 s%d, s%d, 0x%x", sT + 1, sT, L_W); k("s_sub_u32 s%d, 0x%x, s%d", sT, L_W + 8192 + 12, sT)
        k("v_lshl_add_u32 v243, v0, 4, s%d", sT + 1); k("v_lshl_add_u32 v244, v0, 4, s%d", sT)
        for j in range(8):
            k("ds_read_b32 a%d, v243 offset:%d", aW + j, j * 1024); k("ds_read_b32 a%d, v244 offset:%d", aW + 8 + j, j * 1024)
        k(L + ":")
        k("s_and_b32 s%d, s%d, 31", sT, sN2); k("s_lshl_b32 s%d, s%d, 3", sT, sT); k("s_lshl_b32 s%d, s%d, 1", sT + 1, sWv); k("s_add_u32 s%d, s%d, s%d", sT, sT, sT + 1)
        k("s_add_u32 s%d, s%d, 1", sT + 1, sT); k("s_cmp_eq_u32 s%d, 0", sT); k("s_cselect_b32 s%d, 256, s%d", sT, sT)
        NRM = 1.0 / (2048 * 512)
        W1, W2 = 120, 128
        for x in range(2):
            k("v_mov_b32 v%d, s%d", vT, sT + x)
            self.cs(vT + 1, vT + 3, vT, 1.0 / 1024)
            k("v_mul_f32 v%d, 0.5, v%d", vT + 1, vT + 1)
            k("v_fma_f32 v%d, v%d, -0.5, 0.5", vT + 3, vT + 3)
            if x == 0:
                k("s_waitcnt lgkmcnt(0)")
                for j in range(16): k("v_accvgpr_read_b32 v%d, a%d", WP + j, aW + j)
            for j in range(8):
                k("v_and_b32 v%d, 0xffff0000, v%d" % (W1 + j, WP + j) if x else "v_lshlrev_b32 v%d, 16, v%d" % (W1 + j, WP + j))
                k("v_lshlrev_b32 v%d, 16, v%d" % (W2 + j, WP + 8 + j) if x else "v_and_b32 v%d, 0xffff0000, v%d" % (W2 + j, WP + 8 + j))
            for j in range(8):
                k("v_mul_f32 v%d, %s, v%d", W1 + j, fl(NRM), W1 + j); k("v_mul_f32 v%d, %s, v%d", W2 + j, fl(-NRM if j >= 4 else NRM), W2 + j)
            c = CO + 24 * x
            for j in range(0, 8, 2):
                k("v_pk_add_f32 %s, %s, %s neg_lo:[0,1] neg_hi:[0,1]", vr(c + 16 + j, 2), vr(W1 + j, 2), vr(W2 + j, 2))
            for j in range(0, 8, 2):
                k("v_pk_fma_f32 %s, %s, %s, %s op_sel_hi:[1,0,1]", vr(c + j, 2), vr(c + 16 + j, 2), vr(vT + 3, 2), vr(W2 + j, 2))
                k("v_pk_fma_f32 %s, %s, %s, %s op_sel_hi:[1,0,1] neg_lo:[1,0,0] neg_hi:[1,0,0]", vr(c + 8 + j, 2), vr(c + 16 + j, 2), vr(vT + 3, 2), vr(W1 + j, 2))
                k("v_pk_mul_f32 %s, %s, %s op_sel_hi:[1,0]", vr(c + 16 + j, 2), vr(c + 16 + j, 2), vr(vT + 1, 2))
    def p2(self):
        k = self.k; T2, CO = 64, 72
        Lx, D, O, tmp = 224, 120, 152, 168
        k("s_lshl_b32 s%d, s%d, 6", sT, sN2); k("s_lshl_b32 s%d, s%d, 4", sT + 1, sWv); k("s_add_u32 s%d, s%d, s%d", sT, sT, sT + 1)
        if U_OFF: k("s_add_u32 s%d, s%d, 0x%x", sT, sT, U_OFF)
        for r in range(4):
            k("buffer_load_dwordx4 %s, v240, s[%d:%d], s%d offen%s", vr(Lx + 4 * r), sWS, sWS + 3, sT, self.LF)
            if r < 3: k("s_add_u32 s%d, s%d, 0x40000", sT, sT)
        n = self.pf(2)
        self.p2_coef()
        k("s_waitcnt vmcnt(%d)", n)
        self.mark("p2_loaded")
        sw = ["v_swap_b32 v%d, v%d" % (Lx + 4 * a + b, Lx + 4 * b + a) for a in range(4) for b in range(a + 1, 4)]
        self.mix([self.ms(D + 8 * e + 4 * p, vr(Lx + 4 * e), ar(aF + 4 * p)) for e in range(4) for p in range(2)], sw[:5] + [sw[5], None], lead=5)
        EO = (0, 2, 1, 3)
        cv = [x for e in EO for x in self.twiddle(D + 8 * e, D + 8 * e + 4, T2, T2 + 4, tmp + 8 * e, O + 4 * e)]
        self.mix([self.ms(D + 8 * e + 4 * p, ar(aF + 4 * p), vr(O + 4 * e)) for e in EO for p in range(2)], cv, lead=6)
        neg = " neg_lo:[1,0,0] neg_hi:[1,0,0]"
        for x in range(2):
            c = CO + 24 * x; Z = D + 8 * x; V = D + 8 * (2 + x); z = tmp + 8 * x; v = tmp + 8 * (2 + x)
            terms = [(z, [(c, Z, 0), (c + 4, Z + 4, 1), (c + 20, V, 1), (c + 16, V + 4, 1)]),
                     (z + 4, [(c, Z + 4, 0), (c + 4, Z, 0), (c + 16, V, 0), (c + 20, V + 4, 1)]),
                     (v, [(c + 8, V, 0), (c + 12, V + 4, 1), (c + 20, Z, 0), (c + 16, Z + 4, 0)]),
                     (v + 4, [(c + 8, V + 4, 0), (c + 12, V, 0), (c + 16, Z, 1), (c + 20, Z + 4, 0)])]
            for j in range(4):
                for h in (0, 2):
                    for d, tl in terms:
                        a, b, n = tl[j]
                        if j == 0: k("v_pk_mul_f32 %s, %s, %s", vr(d + h, 2), vr(a + h, 2), vr(b + h, 2))
                        else: k("v_pk_fma_f32 %s, %s, %s, %s%s", vr(d + h, 2), vr(a + h, 2), vr(b + h, 2), vr(d + h, 2), neg if n else "")
        self.mix([self.ms(D + 8 * e + 4 * p, vr(O + 4 * e), ar(aGm + 4 * p)) for e in EO for p in range(2)], [x for e in EO for x in self.cvts(O + 4 * e, tmp + 8 * e)], lead=6)
        cv = [x for e in EO for x in self.twiddle(D + 8 * e, D + 8 * e + 4, T2, T2 + 4, tmp + 8 * e, O + 4 * e, conj=True)]
        for e in EO:
            for r in range(4):
                cv.append("v_cvt_pk_bf16_f32 v%d, v%d, v%d" % (Lx + 4 * r + e, D + 8 * e + r, D + 8 * e + 4 + r))
                if e == 3: cv.append("ds_write_b128 v241, %s offset:%d" % (vr(Lx + 4 * r), r * 1024))
        self.mix([self.ms(D + 8 * e + 4 * p, ar(aGm + 4 * p), vr(O + 4 * e)) for e in EO for p in range(2)], cv, lead=6)
        k("s_lshl_b32 s%d, s%d, 14", sT, sN2); k("s_add_u32 s%d, s%d, 0x%x", sT, sT, V_OFF)
        k("s_waitcnt lgkmcnt(0)"); k("s_barrier")
        for j in range(4): k("ds_read_b128 %s, v242 offset:%d", vr(O + 4 * j), j * 1024)
        for j in range(4):
            k("s_waitcnt lgkmcnt(%d)", 3 - j)
            k("buffer_store_dwordx4 %s, v%d, s[%d:%d], s%d offen offset:%d%s", vr(O + 4 * j), vG1x, sWS, sWS + 3, sT, j * 1024, self.SF)
    def x_sum(self, single):
        k = self.k; XI = 32; T = 32 if single else 120
        for l in (3, 2, 1, 0):
            if single and l == 0 and self.RO[1] != 1: k("v_swap_b32 v%d, v%d", self.XA + 1, self.XA + 2)
            ro = (0, 1, 2, 3) if single and l == 0 else self.RO
            for r in range(4): k("v_and_b32 v%d, 0xffff0000, v%d", T + 8 * l + 4 + r, self.XA + 4 * l + ro[r])
            for r in range(4): k("v_lshlrev_b32 v%d, 16, v%d", T + 8 * l + r, self.XA + 4 * l + ro[r])
        for q in range(2): k("v_readlane_b32 s%d, v252, %d", sK + 4 + q, 16 * q)
        k("v_add_f32 v254, v254, v252")
        for q in range(2):
            for j in range(8):
                x = T + 16 * q + 2 * j
                k("v_pk_add_f32 %s, %s, s[%d:%d] op_sel:[0,%d] op_sel_hi:[1,%d] neg_lo:[0,1] neg_hi:[0,1]", vr(x, 2), vr(x, 2), sK + 4, sK + 5, q, q)
        if single: return
        for X, d in ((self.XB, T), (self.XC, XI)):
            for l in range(4):
                for r in range(4):
                    k("v_lshlrev_b32 v%d, 16, v%d", 152 + r, X + 4 * l + self.RO[r]); k("v_and_b32 v%d, 0xffff0000, v%d", 156 + r, X + 4 * l + self.RO[r])
                for h in range(0, 8, 2):
                    k("v_pk_fma_f32 %s, %s, s[%d:%d], %s op_sel:[0,%d,0] op_sel_hi:[1,%d,1]", vr(d + 8 * l + h, 2), vr(152 + h, 2), sK + 8, sK + 9, vr(T + 8 * l + h, 2), l >> 1, l >> 1)
    def p3_pre(self):
        k = self.k; T3 = 64
        for c in range(2):
            for r in range(4):
                k("v_lshl_add_u32 v%d, v%d, 2, %d", vT, vG, r); k("v_lshl_add_u32 v%d, v%d, 1, %d", vT + 1, vI, c); k("v_mul_u32_u24 v%d, v%d, v%d", vT, vT, vT + 1)
                self.cs(T3 + 8 * c + r, T3 + 8 * c + 4 + r, vT, 1.0 / 512)
        self.exch_addr(L_P3A, 241)
        k("v_cndmask_b32 v250, 0, -0.5, vcc")
        k("v_add_u32 v245, 2048, v244")
        k("v_lshrrev_b32 v240, 2, v%d", vI); k("v_lshl_add_u32 v240, v%d, 6, v240", vG); k("v_lshlrev_b32 v240, 14, v240")
        k("v_and_b32 v246, 3, v0"); k("v_lshl_add_u32 v240, v246, 4, v240")
        k("s_mul_i32 s%d, s%d, 4224", sT, sWv); k("s_add_u32 s%d, s%d, 0x%x", sT, sT, L_P3B)
        k("v_and_b32 v247, 8, v0"); k("v_lshlrev_b32 v247, 3, v247"); k("v_lshl_add_u32 v246, v246, 4, v247")
        k("v_and_b32 v247, 4, v0"); k("v_lshl_add_u32 v246, v247, 1, v246")
        k("v_lshl_add_u32 v246, v%d, 9, v246", vG); k("v_add_u32 v246, s%d, v246", sT)
        k("s_lshl_b32 s%d, s%d, 9", sT, sWv); k("s_add_u32 s%d, s%d, 0x%x", sT, sT, L_P3B)
        k("v_and_b32 v248, 7, v0"); k("v_mul_u32_u24 v247, 2112, v248"); k("v_lshrrev_b32 v249, 3, v0")
        k("v_lshl_add_u32 v247, v249, 4, v247"); k("v_add_u32 v247, s%d, v247", sT)
        k("v_lshlrev_b32 v248, 4, v248"); k("v_and_b32 v249, 3, v249"); k("v_lshl_add_u32 v248, v249, 8, v248")
        k("v_lshrrev_b32 v249, 5, v0"); k("v_lshl_add_u32 v248, v249, 14, v248")
    def p3(self, after_loads=None):
        k = self.k; T3, XI = 64, 32
        Lx, D, O, tmp = 112, 128, 160, 176
        k("s_lshl_b32 s%d, s%d, 6", sT, sN2); k("s_lshl_b32 s%d, s%d, 17", sT + 1, sWv); k("s_add_u32 s%d, s%d, s%d", sT, sT, sT + 1)
        k("s_add_u32 s%d, s%d, 0x%x", sT, sT, V_OFF)
        for u in range(2):
            for p in range(2):
                k("s_add_u32 s%d, s%d, 0x%x", sT + 1, sT, (32 * p + 4 * u) * 16384)
                k("buffer_load_dwordx4 %s, v240, s[%d:%d], s%d offen%s", vr(Lx + 8 * u + 4 * p), sWS, sWS + 3, sT + 1, self.LF)
        n = after_loads() if after_loads else 0
        k("s_lshr_b32 s%d, s%d, 5", sT, sN2); k("s_lshl_b32 s%d, s%d, 19", sT, sT); k("s_lshl_b32 s%d, s%d, 17", sT + 1, sWv); k("s_add_u32 s%d, s%d, s%d", sT, sT, sT + 1)
        k("s_bfe_u32 s%d, s%d, 0x40001", sT + 1, sN2); k("s_lshl_b32 s%d, s%d, 10", sT + 1, sT + 1); k("s_add_u32 s%d, s%d, s%d", sT, sT, sT + 1)
        k("s_and_b32 s%d, s%d, 1", sT + 1, sN2); k("s_lshl_b32 s%d, s%d, 7", sT + 1, sT + 1); k("s_add_u32 s%d, s%d, s%d", sT, sT, sT + 1)
        k("s_add_u32 s%d, s%d, 0x%x", sT, sT, XL_OFF)
        k("s_waitcnt vmcnt(%d)", n)
        self.mark("p3_loaded")
        for u in range(2):
            b = Lx + 8 * u
            k("v_swap_b32 v%d, v%d", b + 1, b + 4); k("v_swap_b32 v%d, v%d", b + 3, b + 6)
        pos = {0: 0, 2: 2, 1: 4, 3: 6}
        cv = ["v_add_f32 v%d, v%d, v%d" % (vT + q, D + 2 * q, D + 2 * q + 1) for q in range(2)]
        cv += ["v_fmac_f32 v%d, v250, v%d" % (D + j, vT + (j >> 1)) for j in range(4)]
        for u in range(2):
            for e in range(4):
                d = D + (u * 4 + e) * 4
                for q in range(2): cv.append("v_cvt_pk_bf16_f32 v%d, v%d, v%d" % (O + 8 * u + 2 * e + q, d + 2 * q, d + 2 * q + 1))
                if e == 1: cv.append("ds_write_b128 v241, %s offset:%d" % (vr(O + 8 * u), u * 256))
                if e >= 2: cv.append("ds_write_b64 v%d, %s offset:%d" % (243 if (u, e) == (0, 2) else 242, vr(O + 8 * u + 2 * e, 2), (33 - 32 * u - (e - 2)) * 8))
        self.mix([self.ms(D + (u * 4 + e) * 4, ar(aCH + (e & 2), 2), vr(Lx + 8 * u + pos[e], 2), kk=16) for u in range(2) for e in range(4)], cv, skip=7)
        k("s_waitcnt lgkmcnt(0)"); k("s_barrier")
        for q in range(2):
            for t_ in range(2):
                for h in (0, 2): k("ds_read2_b32 %s, v%d offset0:%d offset1:%d", vr(Lx + (q * 2 + t_) * 4 + h, 2), 244 + t_, h * 32 + q, (h + 1) * 32 + q)
        for q in range(2):
            k("s_waitcnt lgkmcnt(%d)", 4 - 4 * q)
            for t_ in range(2):
                for c in range(2):
                    for p in range(2):
                        d = D + ((q * 2 + c) * 2 + p) * 4
                        m = aGm + 4 * p if c == 0 else aM1H + 8 * t_ + 4 * p
                        self.mf(d, vr(Lx + (q * 2 + t_) * 4), ar(m), d if t_ else "0")
        cv = [x for l in range(4) for x in self.twiddle(D + 8 * l, D + 8 * l + 4, T3 + 8 * (l & 1), T3 + 8 * (l & 1) + 4, tmp + 8 * l, O + 4 * l, conj=True)]
        for l in range(4):
            q, c = l >> 1, l & 1
            for r in range(4):
                cv.append("v_cvt_pk_bf16_f32 v%d, v%d, v%d" % (Lx + 8 * q + 2 * r + c, XI + 8 * l + r, XI + 8 * l + 4 + r))
                if c: cv.append("ds_write_b64 v246, %s offset:%d" % (vr(Lx + 8 * q + 2 * r, 2), q * 2112 + r * 128))
        self.mix([self.ms(XI + 8 * l + 4 * p, ar(aGm + 4 * p), vr(O + 4 * l), XI + 8 * l + 4 * p) for l in range(4) for p in range(2)], cv, lead=6)
        k("s_waitcnt lgkmcnt(0)"); k("s_barrier")
        for j in range(4): k("ds_read_b128 %s, v247 offset:%d", vr(D + 4 * j), j * 128)
        for j in range(4):
            k("s_waitcnt lgkmcnt(%d)", 3 - j)
            k("buffer_store_dwordx4 %s, v248, s[%d:%d], s%d offen%s", vr(D + 4 * j), sWS, sWS + 3, sT, self.SF)
            if j < 3: k("s_add_u32 s%d, s%d, 0x8000", sT, sT)
    def g1_wdma(self, slot):
        o = ["s_add_u32 m0, s%d, 0x%x" % (sM0, L_G1 + slot * 16384)]
        for m in range(2):
            for j in range(2):
                s = sU if m else sG
                o.append("buffer_load_dwordx4 v%d, s[%d:%d], s%d offen offset:%d lds" % (vG1w + j, s, s + 3, sOw, m * 2048 + j * 1024))
        o.append("s_add_u32 s%d, s%d, %d" % (sOw, sOw, 32 * 7168))
        return o
    def g1_prefetch(self, slots, shadow):
        k = self.k
        if not slots: return 0
        L = k.label("gp")
        if shadow: k("s_cmp_eq_u32 s%d, 0", sWv); k("s_cbranch_scc1 " + L)
        for s in slots:
            k("s_mov_b32 s%d, %d", sOw, s * 32 * 7168)
            for x in self.g1_wdma(self.g1_slot(s))[:-1]: k(x)
        if shadow:
            for s in slots:
                L2 = k.label("gq")
                w = 1 + s % 3
                k("s_cmp_lg_u32 s%d, %d", sWv, w); k("s_cbranch_scc1 " + L2)
                k("s_mov_b32 m0, 0x%x", L_G1 + self.g1_slot(s) * 16384)
                k("v_subrev_u32 v%d, %d, v%d", vT, w * 8 * 7168, vG1w); k("v_subrev_u32 v%d, %d, v%d", vT + 1, w * 8 * 7168, vG1w + 1)
                k("s_mov_b32 s%d, %d", sOw, s * 32 * 7168)
                for x in self.g1_wdma(s)[1:-1]: k(x.replace("dwordx4 v%d," % vG1w, "dwordx4 v%d," % vT).replace("dwordx4 v%d," % (vG1w + 1), "dwordx4 v%d," % (vT + 1)))
                k(L2 + ":")
        k(L + ":")
        return 0 if shadow else 4 * len(slots)
    def vm_reset(self): self.log = []
    def vm_note(self, ins, tag):
        self.log += [tag] * len([x for x in ins if x.startswith(("buffer", "global"))])
        return ins
    def vm_need(self, tags):
        last = max([i for i, t in enumerate(self.log) if t in tags] + [-1])
        return min(63, len([t for t in self.log[last + 1:] if t != "P"]))
    def unit(self, mf, rq, vq, nv, eq=None, cap=1, first=None):
        k = self.k; vs = self.opt.get("vs", (2, 6, 0, 4))[:nv]; rq = list(rq)
        for i, m in enumerate(mf):
            k(m); n = 0
            if i == 0 and first:
                for x in first: k(x)
                n = 2
            if vq and vq[0][0].startswith("buffer"):
                if i % 8 in vs and n == 0:
                    x, tag = vq.pop(0); k(self.vm_note([x], tag)[0]); n = 2
            elif vq and nv and n == 0:
                while vq and not vq[0][0].startswith("buffer") and n < 2: k(vq.pop(0)[0]); n += 1
            if rq and n == 0 and (i % 2 or not self.opt.get("oddrd") or len(rq) > (len(mf) - i) // 2): k(rq.pop(0)); n += 1
            while eq and n < cap:
                x = eq.pop(0)
                if x is None: break
                if isinstance(x, tuple): k(self.vm_note([x[0]], x[1])[0]); n = cap
                else: k(x); n += 1
        for x in rq: k(x)
    ACC = 32
    NA = 3
    def g1_acc(self, ft, m, st): return self.ACC + ((ft * 2 + m) * 4 + st) * 4
    def g2_pair(self, u):
        return (4, 6, 2, 0, 8)[u % 5]
    def g2_slot(self, j): return self.g2_pair(j // 2) + (j & 1)
    def g1_slot(self, t): return (0, 2, 8)[(t // 2) % 3] + (t & 1)
    def g1_rd(self, s, a, buf):
        o = []
        for h in range(2):
            sl = self.g1_slot(2 * s + h)
            for hh in range(2):
                o.append("ds_read_b64_tr_b16 %s, v%d offset:%d" % (ar(buf * 8 + 4 * h + 2 * hh, 2), vG1r if sl < 4 else vT + 10, (sl % 4) * 16384 + hh * 8192 + (a % 2) * 2048 + (a // 2) * 32))
        return o
    def g1_xf(self, s, h, st): return 56 + (s % 3) * 32 + (h * 4 + st) * 4
    def g1_mf(self, s, a, buf):
        r = []
        for b in range(4):
            st = b if a % 2 == 0 or self.opt.get("nosnake") else 3 - b
            c = self.g1_acc(a // 2, a % 2, st)
            hs = (1, 0) if self.opt.get("alt") and b % 2 else (0, 1)
            for h in hs:
                r.append("v_mfma_f32_16x16x32_bf16 %s, %s, %s, %s" % (vr(c), ar(buf * 8 + 4 * h), ar(self.g1_xf(s, h, st)), "0" if s == 0 and h == hs[0] else vr(c)))
        return r
    def g2_rows(self, j):
        if j < 8: return sDa, 2 * j * 7, (2 * j + 1) * 7
        if j < 12: return sDb, 4 * (j - 8) * 7 + 2, (4 * (j - 8) + 2) * 7 + 2
        if j < 28: return sDa, (j - 12) * 7 + 3, (j - 12) * 7 + 5
        return sDa, 112 + (j - 12 - self.g2_extra) * 7 + 3, 112 + (j - 12 - self.g2_extra) * 7 + 5
    def g2_wdma(self, j, running=False):
        base, r0, r1 = self.g2_rows(j)
        o = ["s_add_u32 m0, s%d, 0x%x" % (sM0, self.g2_slot(j) * 16384),
             "s_add_u32 s%d, s%d, %d" % (sOd, base, r0 * 16 * 2048), "s_add_u32 s%d, s%d, %d" % (sOe, base, r1 * 16 * 2048 - 2048)]
        if running:
            o = ["s_mov_b32 m0, s55", "s_add_u32 s55, s55, 0x4000", "s_add_u32 s%d, s%d, %d" % (sOd, sOd, 14 * 16 * 2048), "s_add_u32 s%d, s%d, %d" % (sOe, sOd, 7 * 16 * 2048 - 2048)]
        for b in range(4):
            o.append("buffer_load_dwordx4 v%d, s[%d:%d], s%d offen offset:%d lds" % (vG2w + (b & 1), sD, sD + 3, sOe if b >> 1 else sOd, b * 1024))
        return [(x, ("D", j)) for x in o]
    def g1_pre(self):
        k = self.k
        for a in range(6):
            for x in self.g1_rd(0, a, a): k(x)
        k("s_lshl_b32 s%d, s%d, 19", sOx, sMT); k("s_add_u32 s%d, s%d, 0x%x", sOx, sOx, XL_OFF)
        k("s_lshl_b32 s%d, s%d, 2", sT, sMT); k("s_add_u32 s%d, s%d, s%d", sT, sT, sWv); k("s_mul_i32 s%d, s%d, 448", sT, sT)
        k("s_lshr_b32 s%d, s%d, 4", sT + 1, sNT); k("s_mul_i32 s%d, s%d, 112", sT + 1, sT + 1); k("s_add_u32 s%d, s%d, s%d", sT, sT, sT + 1)
        k("s_lshl_b32 s%d, s%d, 10", sT, sT); k("s_add_u32 s%d, s%d, 0x%x", sT, sT, H_OFF)
        k("s_and_b32 s%d, s%d, 15", sT + 1, sNT)
        for j, (sh, off) in enumerate(((11, 0), (10, 32), (12, 48))):
            k("s_lshl_b32 s%d, s%d, %d", sT + 2, sT + 1, sh); k("s_add_u32 s%d, s%d, s%d", sT + 2, sT + 2, sT)
            k("s_add_u32 s%d, s%d, %d", sK + 2 * j, sT + 2, off * 1024); k("s_add_u32 s%d, s%d, %d", sK + 2 * j + 1, sT + 2, (off + 224) * 1024)
        k("v_lshlrev_b32 v%d, 4, v0", vT + 2)
        k("v_add_u32 v%d, 0x20000, v%d", vT + 10, vG1r)
        k("s_and_b32 s%d, s%d, 1", sT, sWv); k("s_lshl_b32 s%d, s%d, 1", sT, sT); k("s_lshr_b32 s%d, s%d, 1", sT + 1, sWv); k("s_add_u32 s%d, s%d, s%d", sT, sT, sT + 1)
        k("s_lshl_b32 s%d, s%d, 2", sT + 2, sMT2); k("s_add_u32 s%d, s%d, s%d", sT, sT, sT + 2)
        k("s_lshl_b32 s%d, s%d, 16", sK + 10, sT); k("s_lshl_b32 s%d, s%d, 12", sT + 2, sNT2); k("s_add_u32 s%d, s%d, s%d", sK + 10, sK + 10, sT + 2)
        k("s_lshl_b32 s%d, s%d, 22", sT + 2, sKH); k("s_add_u32 s%d, s%d, s%d", sK + 10, sK + 10, sT + 2); k("s_add_u32 s%d, s%d, 0x%x", sK + 10, sK + 10, PART_OFF)
        k("s_add_u32 s%d, s%d, 0x8000", sK + 11, sK + 10)
        k("s_lshl_b32 s%d, s%d, 12", sT + 1, sT + 1); k("s_mul_i32 s%d, s%d, %d", sT + 2, sKH, 112 * 1024); k("s_add_u32 s%d, s%d, s%d", sT + 1, sT + 1, sT + 2)
        k("s_add_u32 s%d, s%d, 0x%x", sT + 1, sT + 1, H_OFF)
        k("s_mul_i32 s%d, s%d, %d", sOh, sT, 224 * 1024); k("s_add_u32 s%d, s%d, s%d", sOh, sOh, sT + 1)
        k("s_xor_b32 s%d, s%d, 1", sT, sT); k("s_mul_i32 s%d, s%d, %d", sK + 7, sT, 224 * 1024); k("s_add_u32 s%d, s%d, s%d", sK + 7, sK + 7, sT + 1)
        k("s_lshr_b32 s%d, s%d, 4", sT + 1, sNT); k("s_lshl_b32 s%d, s%d, 1", sT + 2, sMT); k("s_add_u32 s%d, s%d, s%d", sT + 1, sT + 1, sT + 2)
        self.flag(sK + 8, FL_B4, sT + 1)
        k("s_and_b32 s%d, s%d, 14", sT + 1, sMT2); k("s_add_u32 s%d, s%d, s%d", sT + 1, sT + 1, sKH); self.flag(sK + 9, FL_B4, sT + 1)
        k("s_and_b32 s%d, s%d, 1", sT + 1, sNT2); k("s_lshl_b32 s%d, s%d, 7", sT + 1, sT + 1); k("s_add_u32 s%d, s%d, s%d", sK + 9, sK + 9, sT + 1)
        k("v_mov_b32 v%d, 1", vT + 9)
        if self.opt.get("lpf"):
            NL = 56 // self.opt.get("lpn", 8); k("s_mov_b32 s%d, 0x%x", sK + 6, (((1 << NL) - 1) << 2 * NL) & 0xffffffff)
    def lpf_setup(self):
        k = self.k; AH = self.opt["lpf"][0]; NP = self.opt.get("lpn", 8); NL = 56 // NP
        k("s_lshl_b32 s%d, s2, 2", sT); k("s_add_u32 s%d, s%d, s%d", sT, sT, sWv)
        k("s_mul_i32 s%d, s%d, %d", sT, sT, NL * 128); k("s_add_u32 s%d, s%d, %d", sT + 1, sT, int(AH * (1024 // NP) * 7168))
        k("v_add_u32 v20, s%d, v%d", sT + 1, vL128); k("v_mov_b32 v22, s68"); k("v_mov_b32 v23, s69")
        k("s_lshl_b64 exec, -1, %d", NL)
        k("v_subrev_u32 v20, %d, v20", NL * 128); k("v_mov_b32 v22, s70"); k("v_mov_b32 v23, s71")
        k("s_lshl_b64 exec, -1, %d", 2 * NL)
        k("v_subrev_u32 v20, %d, v%d", 2 * NL * 128, vL128); k("v_add_u32 v20, s%d, v20", sT); k("v_mov_b32 v22, s72"); k("v_mov_b32 v23, s73")
        k("s_mov_b64 exec, -1")
        k("v_add_co_u32 v20, vcc, v22, v20"); k("v_addc_co_u32 v21, vcc, 0, v23, vcc")
    def lpf(self):
        AH, AE = self.opt["lpf"]; L = self.k.label("lpf"); NP = self.opt.get("lpn", 8); NL = 56 // NP
        assert AE <= NP
        m = (1 << 3 * NL) - 1
        self.ool.append("\n".join([L + "b:", "s_cmp_lt_u32 s83, %d" % (AE - AH), "s_cselect_b32 exec_lo, 0x%x, s%d" % (m & 0xffffffff, sK + 6), "s_mov_b32 exec_hi, 0x%x" % (m >> 32),
                          "global_load_dword a255, v[20:21], off", "s_mov_b64 exec, -1", "s_add_u32 s83, s83, 1",
                          "v_add_co_u32 v20, vcc, 0x%x, v20" % (1024 // NP * 7168), "v_addc_co_u32 v21, vcc, 0, v21, vcc", "s_branch " + L]))
        self.log.append("T")
        return "\n".join(["s_cmp_eq_u32 s%d, 0" % sLay, "s_cbranch_scc1 " + L + "b", "buffer_load_dword a255, off, s[%d:%d], 0" % (sG, sG + 3), L + ":"])
    def code_touch(self, lab0, lab1):
        L = self.k.label("ct")
        self.ool.append("\n".join([L + "b:", "v_lshlrev_b32 v25, 1, v%d" % vG1x, "v_and_b32 v25, 0x6000, v25", "v_add_u32 v25, v25, v%d" % vL128,
                          "v_add_u32 v25, (%s-L_pc), v25" % lab0, "v_min_u32 v25, (%s-L_pc), v25" % lab1,
                          "global_load_dword a254, v25, s[66:67]", "s_branch " + L]))
        return "\n".join(["s_cmp_eq_u32 s%d, 0" % sLay, "s_cbranch_scc1 " + L + "b", L + ":"])
    def w0(self, body):
        L = self.k.label("w0")
        return "\n".join(["s_cmp_lg_u32 s%d, 0" % sWv, "s_cbranch_scc1 " + L] + body + [L + ":"])
    def h_arrive(self, off):
        return self.w0(["s_mov_b64 exec, 3", "buffer_atomic_add v%d, v%d, s[%d:%d], s%d offen offset:%d sc1" % (vT + 9, vL128, sFL, sFL + 3, sK + 8, off), "s_mov_b64 exec, -1"])
    def h_poll(self, off):
        return ["v_mov_b32 v%d, 0" % vT, "s_mov_b64 exec, 1", "buffer_atomic_add v%d, v%d, s[%d:%d], s%d offen offset:%d sc0 sc1" % (vT, vL128, sFL, sFL + 3, sK + 9, off), "s_mov_b64 exec, -1"]
    def h_check(self, off):
        LP = self.k.label("hp"); LX = self.k.label("hx")
        return self.w0(["s_mov_b32 s%d, 0" % sT, LP + ":", "v_readfirstlane_b32 s%d, v%d" % (sT + 1, vT), "s_cmp_eq_u32 s%d, 16" % (sT + 1), "s_cbranch_scc1 " + LX]
                       + self.h_poll(off) + ["s_waitcnt vmcnt(0)", "s_add_u32 s%d, s%d, 1" % (sT, sT), "s_cmp_lt_u32 s%d, 0x40000" % sT, "s_cbranch_scc1 " + LP, LX + ":"])
    def g1_unit(self, ft, pr, dst, packed):
        o = []
        for q in range(2):
            g = self.g1_acc(ft, 0, 2 * pr + q); u = self.g1_acc(ft, 1, 2 * pr + q)
            if packed: o += ["v_pk_mul_f32 %s, %s, %s" % (vr(g + h, 2), vr(g + h, 2), vr(u + h, 2)) for h in (0, 2)]
            else: o += ["v_mul_f32 v%d, v%d, v%d" % (g + h, g + h, u + h) for h in range(4)]
        c = []
        for q in range(2):
            g = self.g1_acc(ft, 0, 2 * pr + q)
            c += ["v_cvt_pk_bf16_f32 v%d, v%d, v%d" % (dst + 2 * q + h, g + 2 * h, g + 2 * h + 1) for h in (0, 1)]
        sw = ["v_permlane16_swap_b32 v%d, v%d" % (dst, dst + 2), "v_permlane16_swap_b32 v%d, v%d" % (dst + 1, dst + 3)]
        so, off = ((sK, ft) if ft < 2 else ((sK + 2, 0) if ft == 2 else (sK + 4, ft - 3)))
        st = "buffer_store_dwordx4 %s, v%d, s[%d:%d], s%d offen offset:%d%s" % (vr(dst), vT + 2, sWS, sWS + 3, so + pr, off * 1024, self.SF)
        return o, c, sw, st
    def g1(self):
        k = self.k; o = self.opt; NB, D = 7, 6
        def xld(s):
            r = []
            for h in range(2):
                r += ["buffer_load_dwordx4 %s, v%d, s[%d:%d], s%d offen offset:%d%s" % (ar(self.g1_xf(s, h, j)), vG1x, sWS, sWS + 3, sOx, j * 1024, self.LF) for j in range(4)]
                r += ["s_add_u32 s%d, s%d, 0x4000" % (sOx, sOx)]
            return [(x, ("X", s)) for x in r]
        groups = o.get("groups", [[0, 1], [2], [3], [4], [5], [6]])
        hold = o.get("hold", [5])
        seq = [(s, a) for s in range(14) for a in range(14)] + [(s, 2 * ft + m) for g in groups for s in (14, 15) for ft in g for m in range(2)]
        self.vm_reset()
        k("s_mov_b32 s%d, %d", sOw, 6 * 32 * 7168); k("s_mov_b32 s83, 0")
        for x, tag in xld(0): k(self.vm_note([x], tag)[0])
        if o.get("parklate") == 2: self.x1_park()
        k("s_add_u32 s55, s%d, 0x10000", sM0); k("s_sub_u32 s%d, s%d, %d", sOd, sDa, 14 * 16 * 2048)
        buf = {n: n % NB for n in range(196 + D)}
        def reads(n): return self.g1_rd(seq[n + D][0], seq[n + D][1], (n + D) % NB) if n + D < len(seq) else []
        def lgk(n): return min(12, 4 * min(D - 1, len(seq) - 1 - n))
        def sstep(s, vms=None):
            used = []; vq = (xld(1) if s == 0 else []) + xld(s + 2)
            if s in (3, 6, 9, 12): vq += self.g2_wdma(s // 3 - 1, running=True)
            for a in range(14):
                n = 14 * s + a; first = None
                if a == 0:
                    used.append(self.vm_need([("X", s)]))
                    k("s_waitcnt vmcnt(%d) lgkmcnt(%d)" % (used[-1] if vms is None else vms[0], lgk(n)))
                elif a == 14 - D:
                    used.append(self.vm_need([("W", s + 1)] + ([("W", 15)] if s == 13 else [])))
                    k("s_waitcnt vmcnt(%d) lgkmcnt(0)" % (used[-1] if vms is None else vms[1])); k("s_barrier")
                    for x, tag in vq: assert not x.startswith("buffer"); k(x)
                    vq = [x for j in (4, 5) for x in self.g2_wdma(j)] if s == 13 else [(x, ("W", s + 3)) for h in range(2) for x in self.g1_wdma(self.g1_slot(2 * s + h))]
                elif not o.get("fewwait") or a in (3, 6): k("s_waitcnt lgkmcnt(%d)" % lgk(n))
                if o.get("lpf") and a == o.get("lpa", 4) and (s % 3 != 0 if o.get("lpn", 8) == 8 else s % 3 == 1) and s < 13: first = [self.lpf()]
                if o.get("ct") and s == 13 and a == 6: first = [self.code_touch("L_g1t", "L_end")]
                if o.get("ct", 0) > 1 and s == 0 and a == 7: first = [self.code_touch("L_g1m", "L_g1t")]
                nb = len([x for x in vq if x[0].startswith("buffer")])
                self.unit(self.g1_mf(s, a, buf[n]), reads(n), vq, 2 if nb > (14 - D if a < 14 - D else 14) - a or o.get("fast") else 1, first=first)
            for x, tag in vq: assert not x.startswith("buffer"); k(x)
            return used
        def loop(s0, s1):
            save = list(self.log); n0 = len(k.lines); nool = len(self.ool); vv = [sstep(s) for s in range(s0, s1)]
            del k.lines[n0:]; del self.ool[nool:]; endlog = list(self.log); self.log = save
            L = k.label("loop"); k(".p2align 6"); k(L + ":")
            for u in range(3): sstep(s0 + u, [min(v[j] for v in vv[u::3]) for j in range(2)])
            self.log = endlog
            k("s_sub_u32 s%d, s%d, 1", sIt, sIt); k("s_cmp_lg_u32 s%d, 0", sIt); k("s_cbranch_scc1 " + L)
        sstep(0)
        k("L_g1m:")
        k("s_mov_b32 s%d, 4", sIt)
        loop(1, 13)
        sstep(13)
        k("L_g1t:")
        self.mark("g1_s28")
        vq = []
        epi = []; self.late_stores = []; seen = set(); w15 = o.get("w15", 0)
        apos = o.get("apos", 20); ppos = o.get("ppos", 26); self.g2_w = 6
        nread = 196 + D; pool = [11, 12, 13, 14] if o.get("pool", 1) else []
        for i in range(28):
            n = 196 + i; s, a = seq[n]; first = []
            lg = min(12, 4 * (nread - 1 - n))
            if s not in seen: k("s_waitcnt vmcnt(%d) lgkmcnt(%d)" % (self.vm_need([("X", s)]), lg)); seen.add(s)
            elif i <= apos: k("s_waitcnt lgkmcnt(%d)" % lg)
            pool.append(buf[n - 1]); rq = []
            while pool and nread < len(seq) and len(rq) < (8 if i < 8 else 4):
                buf[nread] = pool.pop(0); rq += self.g1_rd(seq[nread][0], seq[nread][1], buf[nread]); nread += 1
            g = [g for g in groups if a // 2 in g][0]
            if (s, a) == (14, 2 * g[0]) and g != groups[0]:
                if not epi: epi += [None] * 4
                for ft in groups[groups.index(g) - 1]:
                    us = [self.g1_unit(ft, pr, self.g1_acc(ft, 1, 2 * pr), False) for pr in range(2)]
                    epi += us[1][0] + us[0][0] + us[1][1] + us[0][1] + us[1][2] + us[0][2]
                    if ft in hold: self.late_stores += [u[3] for u in us]
                    else: epi += [(u[3], "SA" if ft < self.NA else "SB") for u in us]
                if g == groups[-1]: epi += [x for t in range(4) for x in self.g2_rd(0, t)]
            if i == apos:
                assert not [x for x in epi if isinstance(x, tuple) and x[1] == "SA"] and not vq and not rq and nread == len(seq)
                first += ["s_waitcnt vmcnt(%d) lgkmcnt(0)" % self.vm_need(["SA", ("D", 5)]), "s_barrier", self.h_arrive(0)]
                vq = [x for j in range(6, 6 + o.get("wmore", 2)) for x in self.g2_wdma(j)]; self.g2_w += o.get("wmore", 2)
            if i == ppos: first += [self.w0(self.h_poll(0))]; self.log.append("P")
            self.unit(self.g1_mf(s, a, buf[n]), rq, vq, 1 if i < apos else 2, eq=epi, cap=2, first=first)
        for x, tag in vq: k(self.vm_note([x], tag)[0])
        self.mark("g1_loop")
        for x in epi: k(x)
        un = [self.g1_unit(ft, pr, self.g1_acc(ft, 1, 2 * pr), True) for ft in groups[-1] for pr in (1, 0)]
        for j in range(3):
            for u in un:
                for x in u[j]: k(x)
        self.late_stores += [u[3] for u in un]
        self.mark("g1_done")
        k("s_waitcnt vmcnt(%d)", self.vm_need(["P"]))
        k(self.h_check(0))
        k("s_barrier")
        self.mark("b4")
        self.g1_log = list(self.log)
    def g2_acc(self, t, st): return self.ACC + (t * 4 + st) * 4
    def g2_rd(self, u, t):
        off = self.g2_slot(2 * u) * 16384
        return ["ds_read_b64_tr_b16 %s, v%d offset:%d" % (vr(160 + t * 8 + 4 * kk + 2 * h, 2), (232, vG2r, 244)[off // 65536] + (t & 3), off % 65536 + h * 8192 + kk * 2048 + (t >> 2) * 1024)
                for kk in range(2) for h in range(2)]
    def g2(self, NU, NH=0):
        k = self.k; o = self.opt; D = o.get("d2", 6); XS = 4; npre = o.get("npre", 2)
        NS = 2 * NU + NH; other = NS > 28; jump = (112 - 4 * (NS - 28)) * 1024
        self.g2_extra = NS - 28
        def hf(u, kk, st): return (u % XS) * 32 + (kk * 4 + st) * 4
        def hl(u, b, so): return ["buffer_load_dwordx4 %s, v%d, s[%d:%d], s%d offen offset:%d%s" % (ar(hf(u, kk, 2 * b + st)), vG2h, sWS, sWS + 3, so, kk * 2048 + st * 256, self.LF) for kk in range(2) for st in range(2)]
        def hld(u, b):
            so = sK + 7 if b and u < NU else sOh; r = []
            if u == NU and b == 0: r += ["s_sub_u32 s%d, s%d, s55" % (so, so)]
            if 2 * u + (b if u == NU else 0) == 28: r += ["s_add_u32 s%d, s%d, %d" % (so, so, jump)]
            r += hl(u, b, so) + ["s_add_u32 s%d, s%d, %d" % (so, so, 8192 if u < NU else 4096)]
            return [(x, ("H", u)) for x in r]
        def mf(u, t, sts):
            r = []
            for st in sts:
                a = self.g2_acc(t, st)
                for kk in range(2):
                    r.append("v_mfma_f32_16x16x32_bf16 %s, %s, %s, %s" % (vr(a), vr(160 + t * 8 + 4 * kk), ar(hf(u, kk, st)), "0" if u == 0 and kk == 0 else vr(a)))
            return r
        self.log = [t for t in self.g1_log if t != "P"]
        for x, tag in hld(0, 0) + hld(0, 1): k(self.vm_note([x], tag)[0])
        for x in self.vm_note(self.late_stores, "SB"): k(x)
        for t in range(4, D):
            for x in self.g2_rd(0, t): k(x)
        for x in range(4): k("v_subrev_u32 v%d, 0x10000, v%d", 232 + x, vG2r + x); k("v_add_u32 v%d, 0x10000, v%d", 244 + x, vG2r + x)
        k("v_lshrrev_b32 v230, 2, v%d", vI); k("v_and_b32 v231, 1, v0"); k("v_lshlrev_b32 v231, 4, v231"); k("v_lshlrev_b32 v231, v231, v%d", vT + 9)
        k("v_mul_u32_u24 v231, 0x3f80, v231"); k("v_cmp_eq_u32 vcc, v230, v%d", vG); k("v_cndmask_b32 v231, 0, v231, vcc")
        k("v_and_b32 v230, 2, v0"); k("v_cmp_eq_u32 vcc, 0, v230"); k("v_cndmask_b32 v226, 0, v231, vcc"); k("v_cndmask_b32 v227, v231, 0, vcc")
        k("v_mov_b64 v[224:225], 0"); k("v_mov_b64 v[228:229], 0")
        xo = self.g2_pair(NU + 1) * 16384
        k("s_lshl_b32 s%d, s%d, 13", sT, sWv); k("s_add_u32 s%d, s%d, 0x%x", sT + 1, sT, xo); k("v_add_u32 v230, s%d, v%d", sT + 1, vT + 2)
        k("s_xor_b32 s%d, s%d, 0x4000", sT, sT); k("s_add_u32 s%d, s%d, 0x%x", sT + 1, sT, xo); k("v_add_u32 v231, s%d, v%d", sT + 1, vT + 2)
        k("v_lshlrev_b32 v236, 6, v%d", vI); k("v_lshl_add_u32 v236, v%d, 4, v236", vG)
        if NH:
            k("s_and_b32 s%d, s%d, 2", sT, sWv); k("s_lshl_b32 s55, s%d, 11", sT); k("s_lshl_b32 s%d, s%d, 13", sT, sT)
            k("s_sub_u32 s%d, 0x%x, s%d", sT, self.g2_pair(NU) * 16384, sT)
            for x in range(4): k("v_add_u32 v%d, s%d, v%d", 252 + x, sT, 232 + x)
        if npre > 1:
            for x, tag in hld(1, 0) + hld(1, 1): k(self.vm_note([x], tag)[0])
        self.mark("g2_pre")
        grp = []; uc = NU - 2
        for u in range(npre, NU + 1):
            for b in range(2 if u < NU else NH):
                rel = max(8 * (u - XS + 1), 32 if u >= 6 else 0, 8 * uc if 2 * u + (b if u == NU else 0) >= 28 else 0)
                grp.append((8 * u if u < NU else 8 * NU - 3.5, rel, hld(u, b)))
        for j in range(self.g2_w, NS):
            prev = [v for v in range(j // 2) if self.g2_pair(v) == self.g2_pair(j // 2)]
            grp.append((8 * (j // 2 - 1) + 8 - D, 8 * prev[-1] + 8 - D if prev else 0, self.g2_wdma(j)))
        uend = 8 * (NU - 1) - o.get("slack", 10) + (o.get("slackh", 4) if NH else 0); rho = min(2.0, 4.0 * len(grp) / uend); credit = 1.0; slack = []
        vq = []
        for u in range(NU):
            last = u == NU - 1
            for t in range(8):
                n = 8 * u + t; first = []
                lg = min(12, 4 * min(D - 1, 8 * NU - 1 - n))
                if t == 0:
                    chk = u == 4 or (u == uc and other)
                    assert self.log.count(("H", u)) == 8
                    k("s_waitcnt vmcnt(%d) lgkmcnt(%d)" % (self.vm_need([("H", u)] + (["P"] if chk else [])), lg))
                    if chk: k(self.h_check(1024 if u == 4 else 3072)); k("s_barrier")
                    if u in (0, 2, 6, 12): self.mark("g2_s%d" % (2 * u))
                    if u == 3 or (u == uc - 1 and other):
                        first.append(self.w0(self.h_poll(1024 if u == 3 else 3072))); self.log.append("P")
                elif t == 8 - D and not last:
                    for j in (2 * u + 2, 2 * u + 3): assert self.log.count(("D", j)) == 4
                    k("s_waitcnt vmcnt(%d) lgkmcnt(0)" % self.vm_need([("D", 2 * u + 2), ("D", 2 * u + 3)] + (["SB"] if u == 1 else []))); k("s_barrier")
                    if u == 1: first.append(self.h_arrive(1024))
                if last: break
                ok = sorted([g for g in grp if g[1] <= n], key=lambda g: g[0])
                if ok and len([x for x in vq if x[0].startswith("buffer")]) < 2: vq += ok[0][2]; grp.remove(ok[0]); slack.append(ok[0][0] - n)
                credit = min(credit + rho, 3.0); nv = min(2, int(credit)); nl = len(self.log)
                m = n + D
                self.unit(mf(u, t, (0, 1, 2, 3) if t % 2 == 0 else (3, 2, 1, 0)), self.g2_rd(m // 8, m % 8), vq, nv, first=first)
                credit -= len(self.log) - nl
        if o.get("verbose"): print("rho", rho, "slack", slack)
        assert not grp and not vq
        u = NU - 1; eq = [x for t in range(D, 8) for x in self.g2_rd(u, t)]
        def pack(tp, st):
            d = self.g2_acc(tp, st); e = self.g2_acc(tp + 4, st)
            return ["v_cvt_pk_bf16_f32 v%d, v%d, v%d" % (d, d, d + 1), "v_cvt_pk_bf16_f32 v%d, v%d, v%d" % (d + 1, d + 2, d + 3),
                    "v_cvt_pk_bf16_f32 v%d, v%d, v%d" % (d + 2, e, e + 1), "v_cvt_pk_bf16_f32 v%d, v%d, v%d" % (d + 3, e + 2, e + 3)]
        def addmf(tp):
            return ["v_mfma_f32_16x16x32_bf16 %s, %s, %s, %s" % (vr(self.g2_acc(tp + 4 * hh, st)), vr(226 - 2 * hh), vr(self.g2_acc(tp + 4, st + 2)), vr(self.g2_acc(tp + 4 * hh, st)))
                    for st in range(2) for hh in range(2)]
        def fin(tp):
            r = []
            for st in range(2): r += pack(tp, st) + [("buffer_store_dwordx4 %s, v236, s[%d:%d], s%d offen offset:%d%s" % (vr(self.g2_acc(tp, st)), sWS, sWS + 3, sK + 10 + st, tp * 1024, self.SF), "S")]
            return r
        def S(tp): return mf(u, tp, (2, 3)) + mf(u, tp + 4, (2, 3))
        def K(tp): return mf(u, tp, (0, 1)) + mf(u, tp + 4, (0, 1))
        def hb(tp, i, hh): return ((NU + 1 + (tp & 1)) % XS) * 32 + (i * 2 + hh) * 8
        def hrd(tp):
            return ["ds_read_b64_tr_b16 %s, v%d offset:%d" % (ar(hb(tp, i, hh) + 4 * kk + 2 * h, 2), 252 + tp, i * 16384 + h * 8192 + kk * 2048 + hh * 1024)
                    for i in range(NH) for hh in range(2) for kk in range(2) for h in range(2)]
        def KH(tp):
            return ["v_mfma_f32_16x16x32_bf16 %s, %s, %s, %s" % (vr(self.g2_acc(tp + 4 * hh, st)), ar(hb(tp, i, hh) + 4 * kk), ar(hf(NU, kk, 2 * i + st)), vr(self.g2_acc(tp + 4 * hh, st)))
                    for i in range(NH) for hh in range(2) for st in range(2) for kk in range(2)]
        def snd(tp): return [x for st in (2, 3) for x in pack(tp, st) + ["ds_write_b128 v230, %s offset:%d" % (vr(self.g2_acc(tp, st)), (tp * 2 + st - 2) * 1024)]]
        def rcv(tp): return ["ds_read_b128 %s, v231 offset:%d" % (vr(self.g2_acc(tp + 4, st)), (tp * 2 + st - 2) * 1024) for st in (2, 3)]
        BAR = "s_waitcnt lgkmcnt(0)\ns_barrier"
        BAR0 = "s_waitcnt vmcnt(%d) lgkmcnt(0)\ns_barrier" % self.vm_need([("D", j) for j in range(2 * NU, NS)])
        def run(m, pre=None):
            if not m: return
            src = set()
            for x in m: i = hazard.I(x); src |= i.A | i.B
            hit = [n for n, x in enumerate(eq) if isinstance(x, str) and x.startswith("ds_read") and hazard.I(x).w & src]
            for x in eq[:hit[-1] + 1 if hit else 0]:
                if x is not None: k(self.vm_note([x[0]], x[1])[0] if isinstance(x, tuple) else x)
            del eq[:hit[-1] + 1 if hit else 0]
            cnt = 0
            for l in reversed(k.lines):
                l = l.strip()
                if "lgkmcnt(0)" in l: break
                if l.startswith("ds_"):
                    if l.startswith("ds_read") and hazard.I(l).w & src: k("s_waitcnt lgkmcnt(%d)" % min(cnt, 12)); break
                    cnt += 1
            if pre: k(pre)
            self.unit(m, [], [], 0, eq=eq, cap=2)
        run(S(0)); eq += [None] * 2 + snd(0)
        run(S(1)); eq += [None] * 2 + snd(1)
        run(S(2)); eq += [None] * 2 + [BAR0] + hrd(0) + rcv(0) + snd(2)
        run(S(3)); eq += snd(3) + rcv(1) + hrd(1)
        run(K(0)); run(KH(0), "s_waitcnt vmcnt(0)")
        run(addmf(0)); eq += [None] * (0 if eq else 2) + [BAR] + fin(0) + hrd(2) + rcv(2) + rcv(3)
        run(K(1)); run(KH(1)); run(addmf(1)); eq += [None] * (0 if len(eq) > 4 else 3) + fin(1) + hrd(3)
        run(K(2)); run(KH(2)); run(addmf(2)); eq += [None] * (0 if len(eq) > 4 else 4) + fin(2)
        run(K(3)); run(KH(3)); run(addmf(3))
        self.mark("g2_loop")
        for x in eq + fin(3):
            if x is not None: k(x[0] if isinstance(x, tuple) else x)
    def final(self):
        k = self.k
        k("s_lshl_b32 s%d, s%d, 20", sT, sWv); k("s_lshl_b32 s%d, s%d, 11", sT + 1, sN2); k("s_add_u32 s%d, s%d, s%d", sT, sT, sT + 1)
        k("s_add_u32 s%d, s%d, 0x80000", sT + 1, sT)
        n = 0
        for X in (self.XB, self.XC):
            for j in range(2):
                for q in range(2):
                    k("s_waitcnt vmcnt(%d)", 7 - n + (2 * (n - 4) if n > 4 else 0)); n += 1
                    for r in (self.LO[2 * j], self.LO[2 * j + 1]):
                        for c in range(2):
                            x = X + 8 * q + 2 * self.LO[r] + c; d = 64 + (q * 2 + c) * 8 + r
                            k("v_lshlrev_b32 v%d, 16, v%d", vT, x); k("v_and_b32 v%d, 0xffff0000, v%d", x, x)
                            k("v_fmac_f32 v%d, s%d, v%d", d, sK + 8 + q, vT); k("v_fmac_f32 v%d, s%d, v%d", d + 4, sK + 8 + q, x)
                            if X == self.XC: k("v_cvt_pk_bf16_f32 v%d, v%d, v%d", x, d, d + 4)
                        if X == self.XC: k("buffer_store_dwordx2 %s, v%d, s[%d:%d], s%d offen offset:%d%s", vr(X + 8 * q + 2 * self.LO[r], 2), self.vP1x, sOUT, sOUT + 3, sT + q, r * 128, self.opt.get("ofl", ""))
    def flag(self, s, off, sgrp=None):
        k = self.k
        k("s_add_u32 s%d, s%d, 0x%x", s, sFo, off)
        if sgrp is not None: k("s_lshl_b32 s%d, s%d, 11", sgrp, sgrp); k("s_add_u32 s%d, s%d, s%d", s, s, sgrp)
    def build(self):
        k = self.k; o = self.opt
        stop = o.get("stop")
        def stopat(n):
            if stop == n: k("s_branch L_fin")
        S1, R1 = o.get("b1", (16, 16)); S3, R3 = o.get("b3", (2, 4)); S5, R5 = 1, o.get("r5", 2)
        gp = o.get("gp", {"2s": [0, 1, 2, 3], "3s": [4, 5]})
        self.prologue()
        k("L_layer:")
        self.p1_addr(); self.p1_pre()
        k("s_cmp_lg_u32 s%d, 0", sLay); k("s_cbranch_scc1 L_p1b")
        k("s_waitcnt vmcnt(%d)", 1 + (o.get("wtouch", 1) == 0) + self.npf0)
        L = k.label("rep")
        k("s_cmp_ge_u32 s%d, 4", sIt); k("s_cbranch_scc1 " + L)
        k("s_barrier")
        k("s_cmp_lg_u32 s%d, 0", sWv); k("s_cbranch_scc1 " + L)
        k("s_lshl_b32 s%d, s%d, 6", sT, sIt)
        k("v_mov_b32 v%d, 1", vT + 1); k("v_lshl_add_u32 v%d, v0, 2, s%d", vT, sT)
        setexec(k, 16)
        k("global_store_dword v%d, v%d, s[76:77] sc1", vT, vT + 1)
        setexec(k, 64)
        k(L + ":")
        if o.get("wtouch", 1) == 1: self.w_touch()
        self.pf(1)
        self.mark("p1_loaded")
        self.w_loads(False, o.get("wp0", []))
        self.p1_a(self.XA, True)
        k("s_branch L_p1")
        k("L_last:")
        self.p1_addr()
        for l in range(4):
            for r in range(4):
                k("v_lshlrev_b32 v%d, 16, v%d", 64 + 8 * l + r, self.XA + 4 * l + self.RO[r]); k("v_and_b32 v%d, 0xffff0000, v%d", 64 + 8 * l + 4 + r, self.XA + 4 * l + self.RO[r])
        for j in range(32): k("v_add_f32 v%d, s%d, v%d", 64 + j, sK + 10 + (j >> 4), 64 + j)
        k("s_branch L_p1c")
        k("L_p1b:")
        self.p1_a(self.XA, True, swap=False)
        k("L_p1c:")
        self.part_addr()
        two = o.get("two5"); S5 = 2 if two else 1
        k("s_lshr_b32 s%d, s%d, 4", sT + 1, sN2); self.flag(sT, FL_B5 - FL_LSTRIDE & 0xffffffff, sT + 1)
        k("s_and_b32 s%d, s%d, %d", sT + 1, sN2, R5 - 1)
        self.watch(sT, S5, sT + 1, 16 // S5)
        k("s_mov_b32 s%d, s%d", sT + 1, sMT2); self.flag(sT, FL_B5 - FL_LSTRIDE & 0xffffffff, sT + 1)
        self.arrive(sT, S5, R5, sKH if two else None)
        self.mark("a5")
        if two:
            LO = k.label("oth"); LA = k.label("pa"); LB = k.label("pb"); LC = k.label("pc"); LD = k.label("pd"); LJ = k.label("pj")
            k("s_cmp_lg_u32 s%d, 0", sWv); k("s_cbranch_scc1 " + LO)
            k("s_mov_b32 s%d, 0", sT + 2); setexec(k, 2)
            def once():
                k("v_mov_b32 v%d, 0", self.vQ)
                k("buffer_atomic_add v%d, v%d, s[%d:%d], s%d offen sc0 sc1", self.vQ, vL128, sFL, sFL + 3, sPo)
                k("s_add_u32 s%d, s%d, 1", sT + 2, sT + 2)
                k("s_waitcnt vmcnt(0)")
                k("v_cmp_ne_u32 vcc, 8, v%d", self.vQ)
            k(LA + ":"); once()
            k("s_cmp_ge_u32 s%d, 0x40000", sT + 2); k("s_cbranch_scc1 " + LB)
            k("s_bitcmp1_b32 vcc_lo, 0"); k("s_cbranch_scc1 " + LA)
            k(LB + ":"); k("s_barrier")
            k("s_cbranch_vccz " + LD)
            k(LC + ":"); once()
            k("s_cmp_ge_u32 s%d, 0x40000", sT + 2); k("s_cbranch_scc1 " + LD)
            k("s_cbranch_vccnz " + LC)
            k(LD + ":"); setexec(k, 64); k("s_barrier")
            self.p1_loads(1)
            k("s_branch " + LJ)
            k(LO + ":"); k("s_barrier"); self.p1_loads(1); k("s_barrier")
            k(LJ + ":")
            self.mark("b5")
            self.p1_loads(2)
        else:
            self.wait()
            self.mark("b5")
            self.p1_loads(1); self.p1_loads(2)
        k("s_cmp_eq_u32 s%d, 2", sLay); k("s_cbranch_scc1 L_final")
        k("s_waitcnt vmcnt(4)")
        self.p1_a(self.XB, True, D=160)
        k("s_waitcnt vmcnt(0)")
        self.mark("p1_ld2")
        self.p1_a(self.XC, False, D=160)
        self.p1_join()
        k("L_p1:")
        self.p1()
        self.mark("p1_done")
        L = k.label("clr"); LP = k.label("clrp"); L1 = k.label("clr1")
        k("s_or_b32 s%d, s%d, s%d", sIt, sLay, sWv); k("s_cmp_lg_u32 s%d, 0", sIt); k("s_cbranch_scc1 " + L1)
        k("v_lshlrev_b32 v%d, 2, v0", self.vP + 1)
        k("global_load_dword v%d, v%d, s[76:77] sc1", self.vP, self.vP + 1)
        k(L1 + ":")
        self.p2_pre()
        k("s_cmp_lg_u32 s%d, 0", sIt); k("s_cbranch_scc1 " + L)
        k(LP + ":")
        k("s_waitcnt vmcnt(0)")
        k("v_cmp_ne_u32 vcc, 1, v%d", self.vP); k("s_cbranch_vccz " + L)
        k("v_lshlrev_b32 v%d, 2, v0", self.vP + 1)
        k("global_load_dword v%d, v%d, s[76:77] sc1", self.vP, self.vP + 1)
        k("s_add_u32 s%d, s%d, 1", sIt, sIt); k("s_cmp_lt_u32 s%d, 0x40000", sIt); k("s_cbranch_scc1 " + LP)
        k(L + ":")
        self.flag(sT, FL_B1); k("s_and_b32 s%d, s2, %d", sT + 1, R1 - 1)
        self.watch(sT, S1, sT + 1, 256 // S1)
        k("s_lshr_b32 s%d, s2, %d", sT + 1, (256 // S1).bit_length() - 1)
        self.arrive(sT, S1, R1, sT + 1)
        self.mark("a1")
        self.poll()
        L = k.label("once"); L2 = k.label("nsp"); L3 = k.label("both")
        k("s_cmp_lg_u32 s%d, 0", sLay); k("s_cbranch_scc1 " + L)
        self.w_loads(False)
        k("s_cmp_ge_u32 s2, 8"); k("s_cbranch_scc1 " + L2)
        self.w_loads(True)
        k(L2 + ":")
        self.g_addr()
        self.x_sum(True)
        k("s_cmp_eq_u32 s%d, 0", sWv); k("s_cbranch_scc1 " + L3)
        k("s_waitcnt vmcnt(0)")
        k("s_branch " + L3)
        k(L + ":")
        self.x_sum(False)
        k(L3 + ":")
        self.g1_prefetch(gp.get("1s"), True)
        self.pf("1s")
        self.wait()
        self.mark("b1")
        self.p2()
        self.mark("p2_done")
        ny = self.g1_prefetch(gp.get("2d"), False)
        self.p3_pre()
        self.flag(sT, FL_B2); k("s_and_b32 s%d, s2, %d", sT + 1, R1 - 1)
        self.watch(sT, S1, sT + 1, 256 // S1)
        k("s_lshr_b32 s%d, s2, %d", sT + 1, (256 // S1).bit_length() - 1)
        self.arrive(sT, S1, R1, sT + 1, ny)
        self.mark("a2")
        self.g1_prefetch(gp.get("2s"), True)
        self.pf("2s")
        L = k.label("once")
        k("s_cmp_lg_u32 s%d, 0", sLay); k("s_cbranch_scc1 " + L)
        self.consts(True)
        if o.get("lpf"): self.lpf_setup()
        if o.get("otouch"):
            L2 = k.label("ot"); k("s_cmp_lg_u32 s%d, 3", sWv); k("s_cbranch_scc1 " + L2)
            k("v_lshlrev_b32 v%d, 19, v0", vT); k("s_lshl_b32 s%d, s%d, 11", sT, sN2)
            k("buffer_load_dword a255, v%d, s[%d:%d], s%d offen", vT, sOUT, sOUT + 3, sT)
            k(L2 + ":")
        k(L + ":")
        self.wait()
        self.mark("b2")
        self.p3(lambda: self.pf(3))
        self.mark("p3_done")
        ny = self.g1_prefetch(gp.get("3d"), False)
        if not o.get("parklate"): self.x1_park()
        self.g1_pre()
        k("s_mov_b32 s%d, s%d", sT + 1, sMT); self.flag(sT, FL_B3, sT + 1); k("s_and_b32 s%d, s%d, %d", sT + 1, sNT, R3 - 1)
        self.watch(sT, S3, sT + 1, 32 // S3)
        k("s_lshr_b32 s%d, s%d, 5", sT + 1, sN2); self.flag(sT, FL_B3, sT + 1); k("s_and_b32 s%d, s%d, %d", sT + 1, sN2, S3 - 1)
        self.arrive(sT, S3, R3, sT + 1, ny)
        self.mark("a3")
        self.poll()
        self.g1_prefetch(gp.get("3s"), True)
        self.pf("3s")
        if o.get("parklate") == 1: self.x1_park()
        self.wait()
        self.mark("b3")
        self.g1()
        ev, od = o.get("split", ((14, 0), (14, 0)))
        assert 2 * ev[0] + ev[1] + 2 * od[0] + od[1] == 56 and 2 * od[0] + od[1] <= 28
        if ev != od:
            k("s_cmp_lg_u32 s%d, 0", sKH); k("s_cbranch_scc1 L_g2b")
            nm = self.nmark; self.g2(*ev)
            k("s_branch L_g2e"); k("L_g2b:")
            self.nmark = nm
            if o.get("stamp"): del self.marknames[nm:]
            self.g2(*od)
            k("L_g2e:")
        else: self.g2(*ev)
        self.mark("g2_done")
        self.x1_read()
        k("s_add_u32 s%d, s%d, 0x%x", sXS, sWS, PART_OFF); k("s_addc_u32 s%d, s%d, 0", sXS + 1, sWS + 1); k("s_mov_b32 s%d, 0x800000", sXS + 2)
        k("s_add_u32 s%d, s%d, 0x%x", sWS, sWS, LSTRIDE); k("s_addc_u32 s%d, s%d, 0", sWS + 1, sWS + 1)
        k("s_add_u32 s%d, s%d, 0x%x", sFo, sFo, FL_LSTRIDE)
        k("s_cmp_eq_u32 s%d, 0", sLay); k("s_cselect_b32 s%d, 1, 2", sLay)
        k("s_cbranch_scc0 L_last")
        k("s_branch L_layer")
        for x in self.ool: k(x)
        k("L_final:")
        self.final()
        k("L_fin:")
        if o.get("padat"): k("s_waitcnt vmcnt(0)"); self.mark("fin")
        if o.get("stamp"):
            k("s_waitcnt vmcnt(0)")
            k("s_mov_b32 s%d, 1", sLay); self.nmark = 31; self.mark("end")
            srd(k, sTM, 78, 1 << 20, 240 << 20)
            k("s_lshl_b32 s%d, s2, 10", sT); k("s_lshl_b32 s%d, s%d, 8", sT + 1, sWv); k("s_add_u32 s%d, s%d, s%d", sT, sT, sT + 1)
            k("v_lshlrev_b32 v%d, 2, v0", vT)
            k("buffer_store_dword v31, v%d, s[%d:%d], s%d offen", vT, sTM, sTM + 3, sT)
        k("L_end:")
        k("s_endpgm")
        k.lines = hazard.fix(k.lines)
        return k

HEADER = open("interleave_layers__spectral_gfnet__glu_gated_bilinear__prompt.s.ref").read().split("; Override")[0]
DEFAULTS = {"lf": "", "polls": 0, "wtouch": 0,
            "pf": {2: [("g", 0), ("u", 0)]}, "lpf": (3, 8), "groups": [[0], [1], [2], [3], [4], [5], [6]], "apos": 19, "wp1": 2, "map2": 0, "ilv": 1, "wmore": 4, "slack": 6, "npre": 1, "b1": (8, 32), "b3": (2, 8), "r5": 4, "ct": 1, "parklate": 2, "fewwait": 1, "vs": (5, 1), "two5": 1, "ofl": " sc1", "split": ((14, 1), (13, 1))}
def generate(path, opt):
    opt = dict(DEFAULTS, **opt)
    g = Gen(opt); k = g.build()
    o = [HEADER.rstrip("\n")]
    if opt.get("stamp"): o.append("; marks " + repr(g.marknames))
    o.append("; @launch grid=(256,1,1) block=(256,1,1) lds=%d" % LDS_BYTES)
    o += ['.amdgcn_target "amdgcn-amd-amdhsa--gfx950"', ".text", k.text(), '.section .rodata,"a"', k.desc()]
    open(path, "w").write("\n".join(o))
if __name__ == "__main__":
    generate(sys.argv[1], eval(sys.argv[2]) if len(sys.argv) > 2 else {})
```
